```python
import torch

def _softmax(x, axis=-1):
    return torch.softmax(x, dim=axis)

def _gelu(x):
    return torch.nn.functional.gelu(x, approximate='tanh')

def _silu(x):
    return torch.nn.functional.silu(x)

def _sigmoid(x):
    return torch.sigmoid(x)

def _layernorm(x, axis=-1, eps=1e-05):
    m = x.mean(dim=axis, keepdim=True)
    v = x.var(dim=axis, keepdim=True, unbiased=False)
    return (x - m) / torch.sqrt(v + eps)

def _scatter_add(tgt, idx, src, axis=0):
    return tgt.clone().index_add_(axis, idx, src)

def _segment_sum(src, seg, n):
    out = torch.zeros((n,) + src.shape[1:], dtype=src.dtype)
    return out.index_add_(0, seg, src)

def _pad(x, pw):
    flat = tuple((v for pair in reversed(pw) for v in pair))
    return torch.nn.functional.pad(x, flat)
kernel_name = 'adaLN_cond__memory_aug_recurrent_mem_tr__dense_activation_relu__prompt'

def setup_inputs():

    _w = lambda a: (lambda t: t.to(torch.bfloat16) if t.is_floating_point() else t)(torch.as_tensor(a))

    def _A_setup():
        B, S, Dm = (1, 2048, 1024)
        H, Dh = (32, 128)
        M, seg = (8, 32)
        seg = min(seg, S)
        S = S // seg * seg
        return {'x': _w((lambda *s: torch.randn(*s, dtype=torch.bfloat16) * 0.05)(B, S, Dm)), 'mem0': _w((lambda *s: torch.randn(*s, dtype=torch.bfloat16) * 0.4)(B, M, Dm)), 'Wq': _w((lambda *s: torch.randn(*s, dtype=torch.bfloat16) * 3.2)(Dm, H, Dh) * Dm ** (-0.5)), 'Wk': _w((lambda *s: torch.randn(*s, dtype=torch.bfloat16) * 3.2)(Dm, H, Dh) * Dm ** (-0.5)), 'Wv': _w((lambda *s: torch.randn(*s, dtype=torch.bfloat16) * 0.4)(Dm, H, Dh) * Dm ** (-0.5)), 'Wo': _w((lambda *s: torch.randn(*s, dtype=torch.bfloat16) * 0.4)(H, Dh, Dm) * (H * Dh) ** (-0.5)), 'seg_len': seg}
    _A_in = _A_setup()

    def _B_setup():
        B, S, D, Dff = (1, 2048, 1024, 3584)
        return {'x': _w((lambda *s: torch.randn(*s, dtype=torch.bfloat16) * 0.05)(B, S, D)), 'w1': _w((lambda *s: torch.randn(*s, dtype=torch.bfloat16) * 0.05)(D, Dff)), 'w2': _w((lambda *s: torch.randn(*s, dtype=torch.bfloat16) * 0.05)(Dff, D))}
    _B_in = _B_setup()
    return {'A_x': _A_in['x'], 'A_mem0': _A_in['mem0'], 'A_Wq': _A_in['Wq'], 'A_Wk': _A_in['Wk'], 'A_Wv': _A_in['Wv'], 'A_Wo': _A_in['Wo'], 'A_seg_len': _A_in['seg_len'], 'B_x': _B_in['x'], 'B_w1': _B_in['w1'], 'B_w2': _B_in['w2'], 'c': _w((lambda *s: torch.randn(*s, dtype=torch.bfloat16) * 0.1)(1, 1024) * 8.0), 'w_mod': _w((lambda *s: torch.randn(*s, dtype=torch.bfloat16) * 0.1)(1024, 6 * 1024) * 1024 ** (-0.5) * 8.0)}

def reference(A_x, A_mem0, A_Wq, A_Wk, A_Wv, A_Wo, A_seg_len, B_x, B_w1, B_w2, c, w_mod):

    def _A_ref(x, mem0, Wq, Wk, Wv, Wo, seg_len):
        B, S, Dm = x.shape
        H, Dh = (Wq.shape[1], Wq.shape[2])
        M = mem0.shape[1]
        scale = Dh ** (-0.5)
        n_seg = S // seg_len
        L = M + seg_len
        idx = torch.arange(L)
        mask = (idx[:, None] < M) | (idx[:, None] >= idx[None, :])
        mem = mem0
        outs = []
        for s in range(n_seg):
            xs = x[:, s * seg_len:(s + 1) * seg_len, :].clone()
            h = torch.concatenate([mem, xs], axis=1)
            q = torch.einsum('btd,dhe->bhte', h, Wq)
            k = torch.einsum('btd,dhe->bhte', h, Wk)
            v = torch.einsum('btd,dhe->bhte', h, Wv)
            scores = torch.einsum('bhqe,bhke->bhqk', q, k) * scale
            scores = torch.where(mask[None, None], scores, -1000000000.0)
            p = _softmax(scores, axis=-1)
            o = torch.einsum('bhqk,bhke->bhqe', p, v)
            o = torch.einsum('bhte,hed->btd', o, Wo)
            mem = o[:, :M, :].clone()
            outs.append(o[:, M:, :])
        return torch.concatenate(outs, axis=1)

    def _B_ref(x, w1, w2):
        h = torch.einsum('bsd,df->bsf', x, w1)
        zero = torch.zeros_like(h)
        h = torch.maximum(h, zero)
        return torch.einsum('bsf,fd->bsd', h, w2)
    x = A_x
    mod = (_silu(c) @ w_mod).reshape(c.shape[0], 6, 1, -1)
    sa, ca, ga, sb, cb, gb = (mod[:, 0].clone(), mod[:, 1].clone(), mod[:, 2].clone(), mod[:, 3].clone(), mod[:, 4].clone(), mod[:, 5].clone())
    h = _layernorm(x, axis=-1) * (1 + ca) + sa
    x = x + ga * _A_ref(h, A_mem0, A_Wq, A_Wk, A_Wv, A_Wo, A_seg_len)
    h = _layernorm(x, axis=-1) * (1 + cb) + sb
    x = x + gb * _B_ref(h, B_w1, B_w2)
    return x
```

```python
import re
TRANS = ("v_exp_f32","v_log_f32","v_rcp_f32","v_rsq_f32","v_sqrt_f32","v_sin_f32","v_cos_f32")
def regs(tok):
    tok = tok.strip()
    m = re.fullmatch(r"([vas])(\d+)", tok)
    if m: return [(m.group(1), int(m.group(2)))]
    m = re.fullmatch(r"([vas])\[(\d+):(\d+)\]", tok)
    if m: return [(m.group(1), i) for i in range(int(m.group(2)), int(m.group(3))+1)]
    if tok in ("vcc","vcc_lo","vcc_hi"): return [("s", "vcc")]
    if tok == "m0": return [("s", "m0")]
    if tok == "exec": return [("s", "exec")]
    m = re.fullmatch(r"-?\|?([vas]\d+)\|?", tok)
    if m: return regs(m.group(1))
    return []
def parse(line):
    s = line.split(";")[0].strip()
    if not s or s.endswith(":") or s.startswith("."): return None
    parts = s.split(None, 1)
    op = parts[0]; ops = []
    if len(parts) > 1:
        for t in parts[1].split(","):
            ops.append(t.strip().split()[0] if t.strip() else "")
    d = dict(op=op, wr=[], rd=[], kind="other", passes=0, text=s, cr=[], ab=[])
    R = [regs(o) for o in ops]
    flat = lambda L: [x for l in L for x in l]
    if op.startswith("v_mfma") or op.startswith("v_smfmac"):
        d["kind"] = "mfma"; d["passes"] = 8 if "32x32" in op else 4
        d["wr"] = R[0]
        if op.startswith("v_smfmac"): d["cr"] = R[0]; d["ab"] = flat(R[1:4])
        else: d["cr"] = R[3]; d["ab"] = flat(R[1:3])
        d["rd"] = d["cr"] + d["ab"]
    elif op.startswith("v_"):
        d["kind"] = "valu"
        if op.startswith("v_cmp"):
            d["wr"] = R[0]; d["rd"] = flat(R[1:])
        elif op.startswith("v_permlane") and "swap" in op:
            d["wr"] = flat(R[:2]); d["rd"] = flat(R[:2]); d["perm"] = True
        else:
            d["wr"] = R[0]; d["rd"] = flat(R[1:])
            if op.startswith("v_fmac") or op.startswith("v_pk_fmac") or "dpp" in s or "row_" in s or "quad_perm" in s or op.startswith("v_writelane") or op.startswith("v_dot2c"): d["rd"] = d["rd"] + R[0]
            if op.startswith("v_cndmask") and len(ops) == 3: d["rd"] = d["rd"] + [("s","vcc")]
            if op.startswith("v_add_co") or op.startswith("v_addc_co") or op.startswith("v_div_scale"): d["wr"] = R[0] + R[1]
        if "row_" in s or "quad_perm" in s or "_dpp" in op or "wave_" in s: d["dpp"] = True
        if op.replace("_e32","").replace("_e64","") in TRANS: d["trans"] = True
        if op.startswith("v_readfirstlane") or op.startswith("v_readlane"): d["rdl"] = True
    elif op.startswith("buffer_") or op.startswith("global_"):
        d["kind"] = "vmem"
        lds = (" lds" in s) or ("_lds_" in op)
        if "load" in op and not lds: d["wr"] = R[0]; d["rd"] = flat(R[1:])
        elif "atomic" in op and (" sc0" in s):
            d["rd"] = flat(R); d["wr"] = R[0]
        else: d["rd"] = flat(R)
        if lds: d["rd"] = d["rd"] + [("s","m0")]; d["dma"] = True
        if "store" in op and ("x4" in op or "x3" in op):
            d["sdata"] = R[0] if op.startswith("buffer_") else R[1]
    elif op.startswith("ds_"):
        d["kind"] = "ds"
        if op.startswith("ds_read") or "_rtn" in op or op.startswith("ds_bpermute") or op.startswith("ds_swizzle"): d["wr"] = R[0]; d["rd"] = flat(R[1:])
        else: d["rd"] = flat(R)
    elif op == "s_nop":
        d["kind"] = "nop"; d["n"] = int(ops[0]) + 1
    elif op.startswith("s_"):
        d["kind"] = "salu"
        if op.startswith("s_cmp") or op.startswith("s_cbranch") or op.startswith("s_waitcnt") or op in ("s_barrier","s_branch","s_endpgm","s_setprio","s_sleep"): d["rd"] = flat(R)
        else: d["wr"] = R[0] if R else []; d["rd"] = flat(R[1:])
    return d
def need(p, c):
    n = 0
    pw = set(p["wr"]); crd = set(c["rd"]); cwr = set(c["wr"])
    if p["kind"] == "valu":
        vw = {x for x in pw if x[0] != "s"}; sw = pw - vw
        if c["kind"] == "mfma" and vw & crd: n = max(n, 2)
        if c.get("dpp") and vw & crd: n = max(n, 2)
        if c.get("perm") and vw & crd: n = max(n, 2)
        if c.get("rdl") and vw & crd: n = max(n, 1)
        if p.get("trans") and c["kind"] in ("valu","mfma","vmem","ds") and vw & crd: n = max(n, 1)
        if sw & crd:
            if c["kind"] == "vmem": n = max(n, 5)
            elif c["kind"] == "valu": n = max(n, 4 if c.get("rdl") else 2)
            elif c["kind"] == "salu": n = max(n, 1)
    if p["kind"] == "mfma":
        big = 12 if p["passes"] == 8 else 8
        if c["kind"] == "mfma":
            if pw & set(c["ab"]): n = max(n, big)
            if pw & set(c["cr"]) and not (set(c["cr"]) == pw and c["op"] == p["op"]): n = max(n, big - 2)
            if pw & cwr and not (pw & set(c["cr"])): n = max(n, big - 2)
        elif c["kind"] in ("valu","vmem","ds"):
            if pw & (crd | cwr): n = max(n, big)
            if c["kind"] == "valu" and set(p["cr"]) & cwr: n = max(n, 7 if p["passes"] == 8 else 3)
            if set(p["ab"]) & cwr and c["kind"] == "valu": n = max(n, 1)
    if p["kind"] == "salu" and ("s","m0") in pw and c.get("dma"): n = max(n, 1)
    if p.get("sdata") and set(p["sdata"]) & cwr: n = max(n, 2)
    return n
class Asm:
    def __init__(self): self.l = []; self.uid = 0
    def __call__(self, s):
        for x in s.split("\n"):
            x = x.strip()
            if x: self.l.append(x)
    def lab(self, base):
        self.uid += 1; return f"{base}_{self.uid}"
    def finish(self):
        out = []; win = []
        self.nops = 0
        for line in self.l:
            d = parse(line)
            if d is None:
                out.append(line); continue
            if d["kind"] != "nop":
                req = 0
                for p, dist in win:
                    r = need(p, d) - dist
                    if r > req: req = r
                if req > 0:
                    self.nops += req
                    k = req
                    while k > 0:
                        m = min(k, 8); out.append(f"s_nop {m-1}"); k -= m
                    win = [(p, dist + req) for p, dist in win]
            out.append(line)
            step = d.get("n", 1)
            win = [(p, dist + step) for p, dist in win if dist + step < 14]
            if d["kind"] != "nop": win.append((d, 0))
            if d["op"] in ("s_branch", "s_endpgm"): win = []
        return "\n".join(("" if (x.endswith(":") or x.startswith(".")) else "  ") + x for x in out) + "\n"
def kdesc(name, vgpr=512, accum=256):
    return f""".section .rodata,"a"
.p2align 6
.amdhsa_kernel {name}
  .amdhsa_next_free_vgpr {vgpr}
  .amdhsa_next_free_sgpr 102
  .amdhsa_accum_offset {accum}
  .amdhsa_group_segment_fixed_size 0
  .amdhsa_kernarg_size 120
  .amdhsa_user_sgpr_count 2
  .amdhsa_user_sgpr_kernarg_segment_ptr 1
  .amdhsa_system_sgpr_workgroup_id_x 1
.end_amdhsa_kernel
"""
```

```python
from layout import *
S_WG=2; S_XCC=3
SRD_WS=8
SRD_A=12
SRD_B=16
SRD_DBG=20
S_P=24
P_X,P_MEM0,P_WQ,P_WK,P_WV,P_WO,P_SEG,P_BX,P_W1,P_W2,P_C,P_WMOD,P_OUT,P_DBG,P_WS = [24+2*i for i in range(15)]
S_W=54; S_TEAM=55; S_RANK=56; S_BUD=57; S_STEP=58
S_T0=59; S_T1=60; S_T2=61; S_T3=62; S_T4=63
S_MEM=64; S_MEMN=65; S_SC=66; S_O=67; S_PART=68; S_KV=69; S_KM=70; S_FL=71; S_MODE=72
S_PR=76
L_X=0
L_WO=9216
L_V=18432
L_KV=24576
L_STAGE=0
def srd(e, d, p, size):
    e(f"s_mov_b32 s{d}, s{p}\ns_mov_b32 s{d+1}, s{p+1}\ns_mov_b32 s{d+2}, {hex(size)}\ns_mov_b32 s{d+3}, 0x00020000")
WS=f"s[{SRD_WS}:{SRD_WS+3}]"
vL=0; vT=1; vT2=2; vT3=3; vG=4; vIdx=5; vXw=6; vVw=7; vXr=8; vVr=9; vWr=10; vKr=11; vVk=12
vSCw=13; vSCw0=14; vSCr=15; vSCr0=16; vOw=17; vPw=18; vPr=19; vMw=20; vPois=21
vZ=22; vKMw=23
vP4=24
vA=28
vD=44
vX=172
vXb=76
vK=80
vVV=88
vS=96
vC=108
vVm=128
vVq=204
vPb=136
vO=144
vU=152
vZ4=168
def lane_setup(e):
    e(f"""v_and_b32 v{vT}, 15, v{vL}
v_lshrrev_b32 v{vT2}, 4, v{vL}
s_lshl_b32 s{S_T0}, s{S_TEAM}, 16
s_lshl_b32 s{S_T1}, s{S_W}, 12
s_add_u32 s{S_T1}, s{S_T1}, s{S_T0}
v_lshlrev_b32 v{vG}, 4, v{vL}
v_add_u32 v{vG}, s{S_T1}, v{vG}
v_mov_b32 v{vIdx}, 0x4444
v_mov_b32 v{vT3}, 0xeeee
v_cmp_le_u32 vcc, 8, v{vT}
v_cndmask_b32 v{vIdx}, v{vIdx}, v{vT3}, vcc
v_and_b32 v{vT3}, 1, v{vT2}
v_mul_u32_u24 v{vXw}, 576, v{vT3}
v_lshl_add_u32 v{vXw}, v{vT}, 2, v{vXw}
v_lshrrev_b32 v{vU}, 1, v{vT2}
v_lshl_add_u32 v{vXw}, v{vU}, 6, v{vXw}
s_mul_i32 s{S_T1}, s{S_W}, 2304
v_add_u32 v{vXw}, s{S_T1}, v{vXw}
v_lshlrev_b32 v{vVw}, 4, v{vT3}
v_lshl_add_u32 v{vVw}, v{vT}, 5, v{vVw}
v_lshl_add_u32 v{vVw}, v{vU}, 9, v{vVw}
s_lshl_b32 s{S_T1}, s{S_W}, 10
v_add_u32 v{vVw}, s{S_T1}, v{vVw}
v_mul_u32_u24 v{vXr}, 144, v{vT}
v_lshl_add_u32 v{vXr}, v{vT3}, 4, v{vXr}
v_lshl_add_u32 v{vXr}, v{vU}, 6, v{vXr}
v_lshlrev_b32 v{vVr}, 5, v{vT}
v_lshl_add_u32 v{vVr}, v{vT2}, 3, v{vVr}
v_bfe_u32 v{vU+1}, v{vL}, 1, 3
v_mul_u32_u24 v{vWr}, 144, v{vU+1}
v_lshl_add_u32 v{vWr}, v{vT2}, 5, v{vWr}
v_and_b32 v{vU+1}, 1, v{vL}
v_lshl_add_u32 v{vWr}, v{vU+1}, 4, v{vWr}
v_lshlrev_b32 v{vVk}, 10, v{vU}
v_lshl_add_u32 v{vVk}, v{vT3}, 9, v{vVk}
v_add_u32 v{vVk}, {L_KV}, v{vVk}
v_lshrrev_b32 v{vU+1}, 3, v{vT}
v_lshl_add_u32 v{vKr}, v{vU+1}, 8, v{vVk}
v_and_b32 v{vU+2}, 7, v{vL}
v_lshl_add_u32 v{vKr}, v{vU+2}, 4, v{vKr}
v_lshl_add_u32 v{vVk}, v{vT}, 4, v{vVk}
s_mul_i32 s{S_T1}, s{S_TEAM}, 163840
s_mul_i32 s{S_T2}, s{S_RANK}, 1280
s_add_u32 s{S_T2}, s{S_T2}, s{S_T1}
v_lshlrev_b32 v{vSCw}, 7, v{vT2}
v_lshl_add_u32 v{vSCw}, v{vT}, 4, v{vSCw}
s_lshl_b32 s{S_T3}, s{S_RANK}, 9
s_add_u32 s{S_T3}, s{S_T3}, s{S_T0}
v_add_u32 v{vOw}, s{S_T3}, v{vSCw}
v_add_u32 v{vSCw}, s{S_T2}, v{vSCw}
v_add_u32 v{vSCw0}, 768, v{vSCw}
v_mov_b32 v{vU+3}, {hex(OOB)}
v_cmp_le_u32 vcc, 8, v{vT}
v_cndmask_b32 v{vSCw}, v{vSCw}, v{vU+3}, vcc
v_cndmask_b32 v{vOw}, v{vOw}, v{vU+3}, vcc
v_cndmask_b32 v{vSCw0}, v{vSCw0}, v{vU+3}, vcc
v_cmp_gt_u32 vcc, 2, v{vT2}
v_cndmask_b32 v{vSCw0}, v{vSCw0}, v{vU+3}, vcc
s_and_b32 s{S_T2}, s{S_RANK}, 28
s_mul_i32 s{S_T2}, s{S_T2}, 1280
s_add_u32 s{S_T2}, s{S_T2}, s{S_T1}
v_lshlrev_b32 v{vSCr}, 9, v{vU+1}
v_lshl_add_u32 v{vSCr}, v{vT2}, 7, v{vSCr}
v_lshl_add_u32 v{vSCr}, v{vU+2}, 4, v{vSCr}
v_add_u32 v{vSCr}, s{S_T2}, v{vSCr}
v_lshrrev_b32 v{vSCr0}, 5, v{vL}
v_lshlrev_b32 v{vSCr0}, 7, v{vSCr0}
v_lshl_add_u32 v{vSCr0}, v{vU+2}, 4, v{vSCr0}
v_bfe_u32 v{vU+4}, v{vL}, 3, 2
v_lshl_add_u32 v{vSCr0}, v{vU+4}, 2, v{vSCr0}
s_add_u32 s{S_T2}, s{S_T2}, 1024
v_add_u32 v{vSCr0}, s{S_T2}, v{vSCr0}
s_lshl_b32 s{S_T2}, s{S_RANK}, 12
v_lshlrev_b32 v{vPr}, 4, v{vL}
v_add_u32 v{vPr}, s{S_T2}, v{vPr}
s_lshl_b32 s{S_T2}, s{S_TEAM}, 10
v_add_u32 v{vPw}, s{S_T2}, v{vPr}
v_lshlrev_b32 v{vMw}, 3, v{vL}
v_add_u32 v{vMw}, s{S_T3}, v{vMw}
v_mov_b32 v{vZ}, 0""")
    for i in range(4): e(f"v_mov_b32 v{vP4+i}, -1\nv_mov_b32 v{vZ4+i}, 0")
    e(f"v_mov_b32 v{vPb+5}, 0\nv_mov_b32 v{vVm+5}, 0\nv_mov_b32 v{vVm+7}, 0")

def poison(e, slotreg, st):
    e(f"""s_lshl_b32 s{S_T0}, s{slotreg}, 14
s_add_u32 s{S_T1}, s{S_T0}, {CH_O}
buffer_store_dwordx2 v[{vP4}:{vP4+1}], v{vMw}, {WS}, s{S_T0} offen {st}
buffer_store_dwordx2 v[{vP4}:{vP4+1}], v{vMw}, {WS}, s{S_T1} offen {st}
s_mul_i32 s{S_T0}, s{slotreg}, 40960
s_add_u32 s{S_T0}, s{S_T0}, {CH_SC}
s_lshl_b32 s{S_T1}, s{slotreg}, 17
s_add_u32 s{S_T1}, s{S_T1}, {CH_PART}
buffer_store_dwordx4 v[{vP4}:{vP4+3}], v{vU+8}, {WS}, s{S_T0} offen {st}
buffer_store_dword v{vP4}, v{vU+9}, {WS}, s{S_T0} offen {st}
buffer_store_dwordx4 v[{vP4}:{vP4+3}], v{vPw}, {WS}, s{S_T1} offen sc1""")

def load_weights(e):
    vR=vU; vB1=vU+1; vB2=vU+2; vAd=vU+3
    e(f"""v_lshrrev_b32 v{vR}, 2, v{vL}
v_and_b32 v{vT3}, 3, v{vL}
v_lshlrev_b32 v{vT3}, 4, v{vT3}
s_lshl_b32 s{S_T0}, s{S_W}, 8
v_add_u32 v{vR}, s{S_T0}, v{vR}
s_lshl_b32 s{S_T1}, s{S_TEAM}, 11
s_lshl_b32 s{S_T2}, s{S_RANK}, 6
s_add_u32 s{S_T1}, s{S_T1}, s{S_T2}
v_lshl_add_u32 v{vB1}, v{vR}, 13, v{vT3}
v_add_u32 v{vB1}, s{S_T1}, v{vB1}
s_lshl_b32 s{S_T1}, s{S_TEAM}, 21
s_add_u32 s{S_T1}, s{S_T1}, s{S_T2}
v_lshl_add_u32 v{vB2}, v{vR}, 11, v{vT3}
v_add_u32 v{vB2}, s{S_T1}, v{vB2}
s_lshl_b32 s{S_T4}, s{S_W}, 15
s_add_u32 s{S_T4}, s{S_T4}, {L_STAGE}""")
    vq=vU+4; vo=vU+5; t=vU+6; t2=vU+7
    e(f"""v_lshrrev_b32 v{t}, 1, v{vT2}
v_and_b32 v{t2}, 1, v{vT2}
v_lshlrev_b32 v{vq}, 4, v{t}
v_lshl_add_u32 v{vq}, v{t2}, 2, v{vq}
v_lshlrev_b32 v{vo}, 3, v{t}
v_lshl_add_u32 v{vo}, v{t2}, 4, v{vo}
v_bfe_u32 v{t}, v{vL}, 3, 1
v_lshl_add_u32 v{vq}, v{t}, 3, v{vq}
v_lshl_add_u32 v{vo}, v{t}, 2, v{vo}
v_bfe_u32 v{t}, v{vL}, 2, 1
v_add_u32 v{vq}, v{vq}, v{t}
v_add_u32 v{vo}, v{vo}, v{t}
v_and_b32 v{t}, 3, v{vL}
v_lshlrev_b32 v{t}, 3, v{t}
v_add_u32 v{t}, s{S_T4}, v{t}
v_lshl_add_u32 v{vq}, v{vq}, 6, v{t}
v_lshl_add_u32 v{vo}, v{vo}, 6, v{t}""")
    def dma(blk):
        p=[P_WQ,P_WK,P_WV,P_WO][blk]
        sr = SRD_A if blk%2==0 else SRD_B
        srd(e, sr, p, 0x800000)
        for i in range(16):
            e(f"s_add_u32 m0, s{S_T4}, {(blk%2)*16384+i*1024}")
            step = i*16*(8192 if blk<3 else 2048)
            e(f"s_mov_b32 s{S_T0}, {step}")
            e(f"buffer_load_dwordx4 v{vB1 if blk<3 else vB2}, s[{sr}:{sr+3}], s{S_T0} offen lds")
    def tr(blk):
        for tile in range(2):
            for t_ in range(4):
                base = (blk*2+tile)*32 + t_*8 if blk<3 else 192 + tile*32 + t_*8
                for p in range(4):
                    off=(blk%2)*16384 + (64*t_+32*(p>>1)+2*(p&1))*64 + tile*32
                    e(f"ds_read_b64_tr_b16 a[{base+2*p}:{base+2*p+1}], v{vq if blk<3 else vo} offset:{off}")
    dma(0); dma(1)
    e("s_waitcnt vmcnt(16)"); tr(0); e("s_waitcnt lgkmcnt(0)"); dma(2)
    e("s_waitcnt vmcnt(16)"); tr(1); e("s_waitcnt lgkmcnt(0)"); dma(3)
    e("s_waitcnt vmcnt(16)"); tr(2)
    e("s_waitcnt vmcnt(0)"); tr(3); e("s_waitcnt lgkmcnt(0)")

def chain_init(e, st):
    chain_pre(e, st); load_weights(e)
def chain_pre(e, st):
    lane_setup(e)
    e(f"""s_mul_i32 s{S_T1}, s{S_TEAM}, 163840
s_mul_i32 s{S_T2}, s{S_RANK}, 1280
s_add_u32 s{S_T2}, s{S_T2}, s{S_T1}
v_lshl_add_u32 v{vU+8}, v{vL}, 4, s{S_T2}
s_add_u32 s{S_T2}, s{S_T2}, 1024
v_lshl_add_u32 v{vU+9}, v{vL}, 2, s{S_T2}""")
    poison(e, S_W, st)
    l=e.lab("ci")
    e(f"s_cmp_lg_u32 s{S_W}, 0\ns_cbranch_scc1 {l}")
    srd(e, SRD_A, P_MEM0, 16384)
    e(f"""v_bfe_u32 v{vU}, v{vL}, 1, 3
v_lshlrev_b32 v{vU}, 11, v{vU}
v_lshl_add_u32 v{vU}, v{vT2}, 4, v{vU}
v_and_b32 v{vU+1}, 1, v{vL}
v_lshl_add_u32 v{vU}, v{vU+1}, 3, v{vU}
s_lshl_b32 s{S_T0}, s{S_RANK}, 6
buffer_load_dwordx2 v[{vU+2}:{vU+3}], v{vU}, s[{SRD_A}:{SRD_A+3}], s{S_T0} offen
s_waitcnt vmcnt(0)
buffer_store_dwordx2 v[{vU+2}:{vU+3}], v{vMw}, {WS}, 0 offen {st}
{l}:""")

def stamp(e, prof, i):
    if prof: e(f"s_memtime s[{S_PR+2*i}:{S_PR+2*i+1}]")

def gather(e, sreg, abort, pre=None):
    lp=e.lab("g"); ok=e.lab("gok")
    e(f"{lp}:")
    for t in range(4): e(f"buffer_load_dwordx4 v[{vA+4*t}:{vA+4*t+3}], v{vG}, {WS}, s{sreg} offen offset:{t*1024} sc1")
    if pre: pre()
    e(f"""s_waitcnt vmcnt(0)
v_max3_u32 v{vU}, v{vA}, v{vA+2}, v{vA+4}
v_max3_u32 v{vU+1}, v{vA+6}, v{vA+8}, v{vA+10}
v_max3_u32 v{vU}, v{vU}, v{vA+12}, v{vA+14}
v_max_u32 v{vU}, v{vU}, v{vU+1}
v_cmp_eq_u32 vcc, -1, v{vU}
s_cbranch_vccz {ok}
s_sub_u32 s{S_BUD}, s{S_BUD}, 1
s_cbranch_scc0 {lp}
s_branch {abort}
{ok}:""")
def smf(e, d, t, a): e(f"v_smfmac_f32_16x16x64_bf16 v[{d}:{d+3}], v[{vA+4*t}:{vA+4*t+3}], a[{a}:{a+7}], v{vIdx}")
def fold(e, d):
    for i in range(4): e(f"v_permlane32_swap_b32 v{d+i}, v{d+4+i}")
    e(f"v_pk_add_f32 v[{d}:{d+1}], v[{d}:{d+1}], v[{d+4}:{d+5}]\nv_pk_add_f32 v[{d+2}:{d+3}], v[{d+2}:{d+3}], v[{d+6}:{d+7}]")
def qk_phase(e):
    for t in range(3):
        for tile in range(4): smf(e, vD+4*tile, t, tile*32+t*8)
    for tile in range(4): smf(e, vD+4*tile, 3, tile*32+24)
    for p in range(2):
        fold(e, vD+8*p)
        for i in range(4): e(f"ds_write_b32 v{vXw}, v{vD+8*p+i} offset:{L_X+p*1152+i*144}")
    e("s_waitcnt lgkmcnt(0)\ns_barrier")
def v_phase(e):
    for t in range(4):
        for tile in range(2): smf(e, vD+16+4*tile, t, (4+tile)*32+t*8)
    fold(e, vD+16)
    e(f"ds_write_b128 v{vVw}, v[{vD+16}:{vD+19}] offset:{L_V}")
    e("s_waitcnt lgkmcnt(0)\ns_barrier")
def wo_phase(e):
    for t in range(4):
        for tile in range(2): smf(e, vD+4*tile, t, 192+tile*32+t*8)
    fold(e, vD)
    for i in range(4): e(f"ds_write_b32 v{vXw}, v{vD+i} offset:{L_WO+i*144}")
    e("s_waitcnt lgkmcnt(0)\ns_barrier")
def sum4(e, b, n, stride, waits=None):
    for k in range(0,n,2): e(f"v_pk_add_f32 v[{b+k}:{b+k+1}], v[{b+k}:{b+k+1}], v[{b+stride+k}:{b+stride+k+1}]")
    if waits: e(waits)
    for k in range(0,n,2): e(f"v_pk_add_f32 v[{b+2*stride+k}:{b+2*stride+k+1}], v[{b+2*stride+k}:{b+2*stride+k+1}], v[{b+3*stride+k}:{b+3*stride+k+1}]")
    for k in range(0,n,2): e(f"v_pk_add_f32 v[{b+k}:{b+k+1}], v[{b+k}:{b+k+1}], v[{b+2*stride+k}:{b+2*stride+k+1}]")
def zero_acc(e, lo, n):
    for i in range(n): e(f"v_mov_b32 v{vD+lo+i}, 0")
def slots(e):
    e(f"""s_and_b32 s{S_T0}, s{S_STEP}, 3
s_lshl_b32 s{S_MEM}, s{S_T0}, 14
s_add_u32 s{S_O}, s{S_MEM}, {CH_O}
s_mul_i32 s{S_SC}, s{S_T0}, 40960
s_add_u32 s{S_SC}, s{S_SC}, {CH_SC}
s_lshl_b32 s{S_PART}, s{S_T0}, 17
s_add_u32 s{S_PART}, s{S_PART}, {CH_PART}
s_add_u32 s{S_MEMN}, s{S_MEM}, 16384
s_and_b32 s{S_MEMN}, s{S_MEMN}, 0xffff""")
def read_x(e):
    for w in range(4): e(f"ds_read_b128 v[{vX+8*w}:{vX+8*w+3}], v{vXr} offset:{L_X+2304*w}\nds_read_b128 v[{vX+8*w+4}:{vX+8*w+7}], v{vXr} offset:{L_X+2304*w+32}")
def cvt_x(e):
    for i in range(4): e(f"v_cvt_pk_bf16_f32 v{vXb+i}, v{vX+2*i}, v{vX+2*i+1}")
def kv_prefetch(e, abort, check):
    if check:
        lp=e.lab("kf"); ok=e.lab("kok")
        e(f"""s_mul_i32 s{S_T0}, s{S_KV}, 1536
s_add_u32 s{S_T0}, s{S_T0}, {F_KV}
{lp}:
buffer_load_dword v{vU+12}, v{vU+11}, {WS}, s{S_T0} offen sc1
s_waitcnt vmcnt(0)
v_cmp_ne_u32 vcc, 1, v{vU+12}
s_cbranch_vccz {ok}
s_sub_u32 s{S_BUD}, s{S_BUD}, 1
s_cbranch_scc0 {lp}
s_branch {abort}
{ok}:""")
    e(f"""s_and_b32 s{S_T1}, s{S_KV}, 1
s_lshl_b32 s{S_T1}, s{S_T1}, 12
s_lshl_b32 s{S_T0}, s{S_KV}, 18
s_add_u32 m0, s{S_T1}, {L_KV}
s_add_u32 s{S_T2}, s{S_T0}, {KB}
buffer_load_dwordx4 v{vU+10}, {WS}, s{S_T2} offen sc1 lds
buffer_load_dwordx4 v{vU+10}, {WS}, s{S_T2} offen offset:1024 sc1 lds
s_add_u32 m0, s{S_T1}, {L_KV+2048}
s_add_u32 s{S_T2}, s{S_T0}, {VB}
buffer_load_dwordx4 v{vU+10}, {WS}, s{S_T2} offen sc1 lds
buffer_load_dwordx4 v{vU+10}, {WS}, s{S_T2} offen offset:1024 sc1 lds""")

def chain_main(e, st, abort, done, check_kv=True, prof=False, NSTEP=64):
    lead=e.lab("lead");
    e(f"s_mov_b32 s{S_STEP}, 0")
    slots(e); zero_acc(e,0,24)
    e(f"s_cmp_eq_u32 s{S_W}, 0\ns_cbranch_scc1 {lead}")
    e(f"""s_lshl_b32 s{S_T0}, s{S_TEAM}, 5
s_add_u32 s{S_T0}, s{S_T0}, s{S_RANK}
s_lshl_b32 s{S_T1}, s{S_T0}, 11
v_lshl_add_u32 v{vU+10}, v{vL}, 4, s{S_T1}
s_lshl_b32 s{S_T1}, s{S_T0}, 2
v_and_b32 v{vU+11}, 1, v{vL}
v_lshl_add_u32 v{vU+11}, v{vU+11}, 9, s{S_T1}
s_lshl_b32 s{S_T1}, s{S_T0}, 9
v_lshlrev_b32 v{vKMw}, 7, v{vT2}
v_lshl_add_u32 v{vKMw}, v{vT}, 4, v{vKMw}
v_subrev_u32 v{vKMw}, 128, v{vKMw}
v_add_u32 v{vKMw}, s{S_T1}, v{vKMw}
v_mov_b32 v{vU+3}, {hex(OOB)}
v_cmp_gt_u32 vcc, 8, v{vT}
v_cndmask_b32 v{vKMw}, v{vKMw}, v{vU+3}, vcc
v_lshl_add_u32 v{vU+13}, v{vL}, 3, s{S_T1}
v_and_b32 v{vVr}, 31, v{vL}
v_lshlrev_b32 v{vVr}, 5, v{vVr}
v_lshrrev_b32 v{vU+3}, 5, v{vL}
v_lshl_add_u32 v{vVr}, v{vU+3}, 4, v{vVr}
s_lshl_b32 s{S_T1}, s{S_T0}, 2
v_mov_b32 v{vU+14}, s{S_T1}
v_mov_b32 v{vU+15}, 1
v_lshlrev_b32 v{vU+7}, 4, v{vL}
s_mov_b32 s{S_KV}, 0""")
    h0=e.lab("h0")
    e(f"s_cmp_lg_u32 s{S_W}, 2\ns_cbranch_scc1 {h0}")
    kv_prefetch(e, abort, check_kv)
    e(f"{h0}:")
    hl=e.lab("hl"); e(f"{hl}:")
    gather(e, S_MEM, abort)
    qk_phase(e)
    a=e.lab("a")
    e(f"""s_cmp_lg_u32 s{S_W}, 1\ns_cbranch_scc1 {a}
s_cmp_eq_u32 s{S_STEP}, 0\ns_cbranch_scc1 {a}
s_lshl_b32 s{S_T0}, s{S_STEP}, 9
s_add_u32 s{S_T0}, s{S_T0}, {F_KM-512}
buffer_store_dword v{vU+15}, v{vU+14}, {WS}, s{S_T0} offen sc1
{a}:""")
    v_phase(e)
    zero_acc(e,0,8)
    b=e.lab("b"); c=e.lab("c")
    e(f"s_cmp_lg_u32 s{S_W}, 1\ns_cbranch_scc1 {b}")
    read_x(e)
    for w in range(4): e(f"ds_read_b128 v[{vVq+4*w}:{vVq+4*w+3}], v{vVr} offset:{L_V+1024*w}")
    e("s_waitcnt lgkmcnt(0)")
    sum4(e, vX, 8, 8); sum4(e, vVq, 4, 4)
    cvt_x(e)
    e(f"v_cvt_pk_bf16_f32 v{vVm+4}, v{vVq}, v{vVq+1}\nv_cvt_pk_bf16_f32 v{vVm+5}, v{vVq+2}, v{vVq+3}")
    def km_store():
        e(f"""s_lshl_b32 s{S_T0}, s{S_STEP}, 16
s_add_u32 s{S_T1}, s{S_T0}, {VM}
s_add_u32 s{S_T0}, s{S_T0}, {KM}
buffer_store_dwordx4 v[{vXb}:{vXb+3}], v{vKMw}, {WS}, s{S_T0} offen sc1
buffer_store_dwordx2 v[{vVm+4}:{vVm+5}], v{vU+13}, {WS}, s{S_T1} offen sc1""")
    e(f"s_cmp_lt_u32 s{S_STEP}, {NSTEP-1}\ns_cbranch_scc1 {c}")
    km_store()
    e(f"""s_waitcnt vmcnt(0)
s_lshl_b32 s{S_T0}, s{S_STEP}, 9
s_add_u32 s{S_T0}, s{S_T0}, {F_KM}
buffer_store_dword v{vU+15}, v{vU+14}, {WS}, s{S_T0} offen sc1
s_branch {done}
{b}:
s_cmp_lt_u32 s{S_STEP}, {NSTEP-1}
s_cbranch_scc0 {done}
s_cmp_lg_u32 s{S_W}, 3\ns_cbranch_scc1 {c}
s_add_u32 s{S_T4}, s{S_STEP}, 2
s_and_b32 s{S_T4}, s{S_T4}, 3""")
    poison(e, S_T4, st)
    e(f"s_waitcnt vmcnt(0) lgkmcnt(0)\n{c}:\ns_barrier")
    gather(e, S_O, abort)
    wo_phase(e)
    f=e.lab("f"); g=e.lab("g")
    e(f"s_cmp_lg_u32 s{S_W}, 1\ns_cbranch_scc1 {f}")
    km_store()
    e(f"s_branch {g}\n{f}:\ns_cmp_lg_u32 s{S_W}, 2\ns_cbranch_scc1 {g}\ns_add_u32 s{S_KV}, s{S_STEP}, 1")
    kv_prefetch(e, abort, check_kv)
    e(f"{g}:\ns_add_u32 s{S_STEP}, s{S_STEP}, 1")
    slots(e); zero_acc(e,0,24)
    e(f"s_barrier\ns_branch {hl}")
    e(f"{lead}:")
    if prof:
        for i in range(10): e(f"v_mov_b32 v{230+i}, 0")
    ll=e.lab("ll"); e(f"{ll}:")
    stamp(e,prof,0)
    gather(e, S_MEM, abort)
    stamp(e,prof,1)
    qk_phase(e)
    read_x(e)
    e(f"ds_read_b128 v[{vK}:{vK+3}], v{vKr}\nds_read_b128 v[{vK+4}:{vK+7}], v{vKr} offset:128\ns_waitcnt lgkmcnt(6)")
    sum4(e, vX, 8, 8, "s_waitcnt lgkmcnt(2)")
    cvt_x(e)
    X=f"v[{vXb}:{vXb+3}]"
    e(f"""v_mfma_f32_16x16x32_bf16 v[{vS}:{vS+3}], {X}, {X}, 0
s_waitcnt lgkmcnt(0)
v_mfma_f32_16x16x32_bf16 v[{vS+4}:{vS+7}], v[{vK}:{vK+3}], {X}, 0
v_mfma_f32_16x16x32_bf16 v[{vS+8}:{vS+11}], v[{vK+4}:{vK+7}], {X}, 0
ds_read_b128 v[{vVV}:{vVV+3}], v{vVk} offset:2048
ds_read_b128 v[{vVV+4}:{vVV+7}], v{vVk} offset:2304
v_xor_b32 v{vKr}, 4096, v{vKr}
v_xor_b32 v{vVk}, 4096, v{vVk}
buffer_store_dwordx4 v[{vS}:{vS+3}], v{vSCw0}, {WS}, s{S_SC} offen {st}
buffer_store_dwordx4 v[{vS+4}:{vS+7}], v{vSCw}, {WS}, s{S_SC} offen {st}
buffer_store_dwordx4 v[{vS+8}:{vS+11}], v{vSCw}, {WS}, s{S_SC} offen offset:512 {st}""")
    stamp(e,prof,2)
    v_phase(e)
    e(f"s_cmp_lt_u32 s{S_STEP}, {NSTEP-1}\ns_cbranch_scc0 LEADEND_{ll}")
    lp=e.lab("sc"); ok=e.lab("scok")
    for w in range(4): e(f"ds_read_b64 v[{vVq+4*w}:{vVq+4*w+1}], v{vVr} offset:{L_V+1024*w}\nds_read_b64 v[{vVq+4*w+2}:{vVq+4*w+3}], v{vVr} offset:{L_V+1024*w+512}")
    zero_acc(e,0,8)
    e("s_waitcnt lgkmcnt(0)")
    sum4(e, vVq, 4, 4)
    e(f"v_cvt_pk_bf16_f32 v{vVm+4}, v{vVq}, v{vVq+1}\nv_cvt_pk_bf16_f32 v{vVm+6}, v{vVq+2}, v{vVq+3}")
    e(f"{lp}:")
    for c_ in range(4):
        e(f"buffer_load_dwordx4 v[{vC+4*c_}:{vC+4*c_+3}], v{vSCr}, {WS}, s{S_SC} offen offset:{c_*1280} sc1")
        e(f"buffer_load_dword v{vC+16+c_}, v{vSCr0}, {WS}, s{S_SC} offen offset:{c_*1280} sc1")
    e(f"""s_waitcnt vmcnt(0)
v_pk_add_f32 v[{vC}:{vC+1}], v[{vC}:{vC+1}], v[{vC+4}:{vC+5}]
v_pk_add_f32 v[{vC+8}:{vC+9}], v[{vC+8}:{vC+9}], v[{vC+12}:{vC+13}]
v_pk_add_f32 v[{vC+16}:{vC+17}], v[{vC+16}:{vC+17}], v[{vC+18}:{vC+19}]
v_pk_add_f32 v[{vC+2}:{vC+3}], v[{vC+2}:{vC+3}], v[{vC+6}:{vC+7}]
v_pk_add_f32 v[{vC+10}:{vC+11}], v[{vC+10}:{vC+11}], v[{vC+14}:{vC+15}]
v_pk_add_f32 v[{vC}:{vC+1}], v[{vC}:{vC+1}], v[{vC+8}:{vC+9}]
v_add_f32 v{vC+4}, v{vC+16}, v{vC+17}
v_pk_add_f32 v[{vC+2}:{vC+3}], v[{vC+2}:{vC+3}], v[{vC+10}:{vC+11}]
v_cmp_u_f32 vcc, v{vC}, v{vC+4}
v_max3_f32 v{vU}, v{vC}, v{vC+1}, v{vC+4}
s_cbranch_vccz {ok}
s_sub_u32 s{S_BUD}, s{S_BUD}, 1
s_cbranch_scc0 {lp}
s_branch {abort}
{ok}:""")
    stamp(e,prof,3)
    m=vU; t=vU+1
    e(f"""v_max3_f32 v{m}, v{m}, v{vC+2}, v{vC+3}
v_max_f32_dpp v{m}, v{m}, v{m} row_ror:8 row_mask:0xf bank_mask:0xf
v_mov_b32 v{t}, v{m}
v_permlane16_swap_b32 v{t}, v{m}
v_max_f32 v{m}, v{m}, v{t}
v_mov_b32 v{t}, v{m}
v_permlane32_swap_b32 v{t}, v{m}
v_max_f32 v{m}, v{m}, v{t}
v_mul_f32 v{m}, s{S_FL}, v{m}""")
    for i in [4,0,1,2,3]: e(f"v_fma_f32 v{vC+i}, v{vC+i}, s{S_FL}, -v{m}")
    for i in [4,0,1,2,3]: e(f"v_exp_f32 v{vC+i}, v{vC+i}")
    e(f"""v_mov_b32_dpp v{t}, v{vC+4} row_ror:8 row_mask:0xf bank_mask:0xf
v_cvt_pk_bf16_f32 v{vPb}, v{vC}, v{vC+1}
v_cvt_pk_bf16_f32 v{vPb+1}, v{vC+2}, v{vC+3}
v_cvt_pk_bf16_f32 v{vPb+4}, v{vC+4}, v{t}
v_mov_b32_dpp v{vPb+2}, v{vPb} row_ror:8 row_mask:0xf bank_mask:0xf
v_mov_b32_dpp v{vPb+3}, v{vPb+1} row_ror:8 row_mask:0xf bank_mask:0xf
v_mfma_f32_16x16x16_bf16 v[{vO}:{vO+3}], v[{vVm+4}:{vVm+5}], v[{vPb+4}:{vPb+5}], 0
v_pk_add_f32 v[{vC}:{vC+1}], v[{vC}:{vC+1}], v[{vC+2}:{vC+3}]
v_add_f32 v{m}, v{vC}, v{vC+4}
v_mfma_f32_16x16x16_bf16 v[{vO+4}:{vO+7}], v[{vVm+6}:{vVm+7}], v[{vPb+4}:{vPb+5}], 0
v_add_f32 v{m}, v{m}, v{vC+1}
v_mfma_f32_16x16x32_bf16 v[{vO}:{vO+3}], v[{vVV}:{vVV+3}], v[{vPb}:{vPb+3}], v[{vO}:{vO+3}]
v_add_f32_dpp v{m}, v{m}, v{m} row_ror:8 row_mask:0xf bank_mask:0xf
v_mov_b32 v{t}, v{m}
v_mfma_f32_16x16x32_bf16 v[{vO+4}:{vO+7}], v[{vVV+4}:{vVV+7}], v[{vPb}:{vPb+3}], v[{vO+4}:{vO+7}]
v_permlane16_swap_b32 v{t}, v{m}
v_add_f32 v{m}, v{m}, v{t}
v_mov_b32 v{t}, v{m}
v_permlane32_swap_b32 v{t}, v{m}
v_add_f32 v{m}, v{m}, v{t}
v_rcp_f32 v{m}, v{m}""")
    for i in range(8): e(f"v_mul_f32 v{vO+i}, v{vO+i}, v{m}")
    for i in range(4): e(f"v_cvt_pk_bf16_f32 v{vO+i}, v{vO+2*i}, v{vO+2*i+1}")
    e(f"buffer_store_dwordx4 v[{vO}:{vO+3}], v{vOw}, {WS}, s{S_O} offen {st}\ns_barrier")
    stamp(e,prof,4)
    gather(e, S_O, abort)
    stamp(e,prof,5)
    wo_phase(e)
    lp=e.lab("pp"); ok=e.lab("ppok")
    for w in range(4): e(f"ds_read_b128 v[{vX+4*w}:{vX+4*w+3}], v{vWr} offset:{L_WO+2304*w}")
    e("s_waitcnt lgkmcnt(2)")
    sum4(e, vX, 4, 4, "s_waitcnt lgkmcnt(0)")
    e(f"""buffer_store_dwordx4 v[{vX}:{vX+3}], v{vPw}, {WS}, s{S_PART} offen sc1""")
    stamp(e,prof,6)
    zero_acc(e,0,24)
    e(f"{lp}:")
    for x in range(4): e(f"buffer_load_dwordx4 v[{vC+4*x}:{vC+4*x+3}], v{vPr}, {WS}, s{S_PART} offen offset:{x*1024} sc1")
    e(f"""s_waitcnt vmcnt(0)
v_pk_add_f32 v[{vC}:{vC+1}], v[{vC}:{vC+1}], v[{vC+4}:{vC+5}]
v_pk_add_f32 v[{vC+8}:{vC+9}], v[{vC+8}:{vC+9}], v[{vC+12}:{vC+13}]
v_pk_add_f32 v[{vC+2}:{vC+3}], v[{vC+2}:{vC+3}], v[{vC+6}:{vC+7}]
v_pk_add_f32 v[{vC+10}:{vC+11}], v[{vC+10}:{vC+11}], v[{vC+14}:{vC+15}]
v_pk_add_f32 v[{vC}:{vC+1}], v[{vC}:{vC+1}], v[{vC+8}:{vC+9}]
v_pk_add_f32 v[{vC+2}:{vC+3}], v[{vC+2}:{vC+3}], v[{vC+10}:{vC+11}]
v_cmp_u_f32 vcc, v{vC}, v{vC}
v_cvt_pk_bf16_f32 v{vC+4}, v{vC}, v{vC+1}
s_cbranch_vccz {ok}
s_sub_u32 s{S_BUD}, s{S_BUD}, 1
s_cbranch_scc0 {lp}
s_branch {abort}
{ok}:
v_cvt_pk_bf16_f32 v{vC+5}, v{vC+2}, v{vC+3}
buffer_store_dwordx2 v[{vC+4}:{vC+5}], v{vMw}, {WS}, s{S_MEMN} offen {st}
s_barrier""")
    stamp(e,prof,7)
    e(f"s_add_u32 s{S_STEP}, s{S_STEP}, 1")
    slots(e)
    if prof:
        e("s_waitcnt lgkmcnt(0)")
        for i in range(7): e(f"s_sub_u32 s{S_T0}, s{S_PR+2*i+2}, s{S_PR+2*i}\nv_add_u32 v{230+i}, s{S_T0}, v{230+i}")
    e(f"s_branch {ll}\nLEADEND_{ll}:")
    if prof:
        e(f"s_lshl_b32 s{S_T0}, s{S_TEAM}, 5\ns_add_u32 s{S_T0}, s{S_T0}, s{S_RANK}\ns_lshl_b32 s{S_T0}, s{S_T0}, 6\ns_add_u32 s{S_T0}, s{S_T0}, {PROF}")
        e(f"v_mov_b32 v237, s{S_BUD}")
        e(f"buffer_store_dwordx4 v[230:233], v{vZ}, {WS}, s{S_T0} offen\nbuffer_store_dwordx4 v[234:237], v{vZ}, {WS}, s{S_T0} offen offset:16")
    e(f"s_branch {done}")
```

```python
from layout import *
from chain import *
DBG=f"s[{SRD_DBG}:{SRD_DBG+3}]"
def header(e, name):
    e(f""".text
.globl {name}
.p2align 8
.type {name},@function
{name}:""")
def entry(e, exitl):
    e(f"""s_cmp_ge_u32 s2, 256
s_cbranch_scc1 {exitl}
s_load_dwordx16 s[{S_P}:{S_P+15}], s[0:1], 0
s_load_dwordx8 s[{S_P+16}:{S_P+23}], s[0:1], 64
s_load_dwordx4 s[{S_P+24}:{S_P+27}], s[0:1], 96
s_load_dwordx2 s[{S_P+28}:{S_P+29}], s[0:1], 112
s_getreg_b32 s{S_XCC}, hwreg(HW_REG_XCC_ID)
s_and_b32 s{S_XCC}, s{S_XCC}, {6 if OPT.get('fx') else 7}
v_lshrrev_b32 v1, 6, v0
v_readfirstlane_b32 s{S_W}, v1
v_and_b32 v0, 63, v0
s_mov_b32 s{S_BUD}, 100000
s_mov_b32 s{S_FL}, 0x3e0293ee
s_mov_b32 s{S_MODE}, 0
s_waitcnt lgkmcnt(0)""")
    for i in list(range(1,32))+list(range(152,168)): e(f"v_mov_b32 v{i}, {hex(OOB)}")
    srd(e, SRD_WS, P_WS, WS_SIZE); srd(e, SRD_DBG, P_DBG, 256)
def ticket_issue(e):
    l=e.lab("tk")
    e(f"""s_cmp_lg_u32 s{S_W}, 0
s_cbranch_scc1 {l}
v_mov_b32 v3, 1
v_mov_b32 v1, {hex(OOB)}
s_lshl_b32 s{S_T0}, s{S_XCC}, 2
v_mov_b32 v2, s{S_T0}
v_cmp_eq_u32 vcc, 0, v0
v_cndmask_b32 v2, v1, v2, vcc
buffer_atomic_add v3, v2, {DBG}, 0 offen sc0 sc1
v_mov_b32 v4, 0
v_mov_b32 v5, 0
v_mov_b32 v6, 0
v_mov_b32 v7, 0
s_lshl_b32 s{S_T0}, s2, 10
s_add_u32 s{S_T0}, s{S_T0}, {FLAGS}
v_lshlrev_b32 v1, 4, v0
buffer_store_dwordx4 v[4:7], v1, {WS}, s{S_T0} offen sc1
{l}:""")
def ticket_finish(e, ldsoff, vm=1):
    l=e.lab("tf")
    e(f"""v_mov_b32 v1, {ldsoff}
s_cmp_lg_u32 s{S_W}, 0
s_cbranch_scc1 {l}
s_waitcnt vmcnt({vm})
v_readfirstlane_b32 s{S_T0}, v3
v_mov_b32 v3, s{S_T0}
ds_write_b32 v1, v3
s_waitcnt lgkmcnt(0)
{l}:
s_barrier
ds_read_b32 v3, v1
s_waitcnt lgkmcnt(0)
v_readfirstlane_b32 s{S_RANK}, v3
s_mov_b32 s{S_TEAM}, s{S_XCC}
s_barrier""")
def arrive(e, word0, vt, vm=0):
    l=e.lab("ar")
    e(f"""s_waitcnt vmcnt({vm}) lgkmcnt(0)
s_barrier
s_cmp_lg_u32 s{S_W}, 0
s_cbranch_scc1 {l}
s_cmp_ge_u32 s{S_RANK}, 32
s_cselect_b32 s{S_T0}, 0x10001, 1
v_mov_b32 v{vt}, s{S_T0}
s_and_b32 s{S_T0}, s2, 7
s_lshl_b32 s{S_T0}, s{S_T0}, 2
s_add_u32 s{S_T0}, s{S_T0}, {word0*4}
v_mov_b32 v{vt+1}, s{S_T0}
v_mov_b32 v{vt+2}, {hex(OOB)}
v_cmp_eq_u32 vcc, 0, v0
v_cndmask_b32 v{vt+1}, v{vt+2}, v{vt+1}, vcc
buffer_atomic_add v{vt}, v{vt+1}, {DBG}, 0 offen sc1
{l}:""")
def wait_all(e, word0, vt, abort):
    lp=e.lab("wa"); ok=e.lab("waok")
    e(f"""v_and_b32 v{vt+1}, 7, v0
v_lshlrev_b32 v{vt+1}, 2, v{vt+1}
{lp}:
buffer_load_dword v{vt}, v{vt+1}, {DBG}, 0 offen offset:{word0*4} sc1
s_waitcnt vmcnt(0)
v_and_b32 v{vt+2}, 0xffff, v{vt}
v_cmp_ne_u32 vcc, 32, v{vt+2}
s_cbranch_vccz {ok}
s_sub_u32 s{S_BUD}, s{S_BUD}, 1
s_cbranch_scc0 {lp}
s_branch {abort}
{ok}:
v_cmp_ne_u32 vcc, 32, v{vt}""")
def abort_code(e, abort, exitl):
    e(f"""{abort}:
v_mov_b32 v1, 0xdead
v_mov_b32 v2, 252
buffer_store_dword v1, v2, {DBG}, 0 offen
{exitl}:
s_endpgm""")
```

```python
from layout import *
from chain import *
G_SEG=64; G_END=65; G_INB=66; G_FIB=67; G_OUTB=68; G_FOB=69; G_M0=70; G_PEND=73; G_IN=74; G_JOB=75; G_FP=76; G_COL=77; G_TYPE=78; G_X=79; G_NS=80; G_FN=81
gRd=1; gIn=2; gFl=3; gOut=4; gFo=5; gOne=6; gT=8; gF=16; gA0=32; gA1=48; gR=64; gP=96
SA=f"s[{SRD_A}:{SRD_A+3}]"
def wload(e, stride, perm, nrows):
    vB=gT; vq=gT+1; t=gT+2; t2=gT+3
    e(f"""v_lshrrev_b32 v{t}, 2, v0
s_mov_b32 s{S_T0}, {stride}
v_mul_lo_u32 v{vB}, v{t}, s{S_T0}
v_and_b32 v{t2}, 3, v0
v_lshl_add_u32 v{vB}, v{t2}, 4, v{vB}
s_lshl_b32 s{S_T0}, s{S_W}, 6
s_add_u32 s{S_T0}, s{S_T0}, s{G_COL}
v_add_u32 v{vB}, s{S_T0}, v{vB}
s_lshl_b32 s{S_T4}, s{S_W}, 15
v_and_b32 v{t}, 3, v{t}
v_lshrrev_b32 v{vq}, 5, v0
v_lshl_add_u32 v{vq}, v{vq}, {7 if perm=='P' else 2}, v{t}
v_lshlrev_b32 v{vq}, 6, v{vq}
v_lshl_add_u32 v{vq}, v{t2}, 3, v{vq}
v_bfe_u32 v{t}, v0, 4, 1
v_lshl_add_u32 v{vq}, v{t}, 5, v{vq}
v_add_u32 v{vq}, s{S_T4}, v{vq}""")
    nb=(nrows+255)//256
    cnt=[min(256,nrows-256*b)//16 for b in range(nb)]
    def dma(b):
        for i in range(cnt[b]):
            e(f"s_add_u32 m0, s{S_T4}, {(b%2)*16384+i*1024}\ns_mov_b32 s{S_T0}, {(256*b+16*i)*stride}\nbuffer_load_dwordx4 v{vB}, {SA}, s{S_T0} offen lds")
    def tr(b):
        for k in range(cnt[b]):
            ks=16*b+k
            for p in range(2):
                off=(b%2)*16384+((64*p+4*k) if perm=='P' else (16*k+8*p))*64
                e(f"ds_read_b64_tr_b16 a[{4*ks+2*p}:{4*ks+2*p+1}], v{vq} offset:{off}")
    dma(0); dma(1)
    for b in range(nb):
        e(f"s_waitcnt vmcnt({cnt[b+1] if b+1<nb else 0})"); tr(b); e("s_waitcnt lgkmcnt(0)")
        if b+2<nb: dma(b+2)
def poll4(e, vd, va, sreg, abort):
    lp=e.lab("pl"); ok=e.lab("pk")
    e(f"""{lp}:
buffer_load_dwordx4 v[{vd}:{vd+3}], v{va}, {WS}, s{sreg} offen sc1
s_waitcnt vmcnt(0)
v_and_b32 v{vd}, v{vd}, v{vd+1}
v_and_b32 v{vd+2}, v{vd+2}, v{vd+3}
v_and_b32 v{vd}, v{vd}, v{vd+2}
v_cmp_ne_u32 vcc, 1, v{vd}
s_cbranch_vccz {ok}
s_sub_u32 s{S_BUD}, s{S_BUD}, 1
s_cbranch_scc0 {lp}
s_branch {abort}
{ok}:""")
def lane0(e, v, t):
    e(f"v_mov_b32 v{v}, {hex(OOB)}\nv_cmp_eq_u32 vcc, 0, v0\nv_cndmask_b32 v{v}, v{v}, v{t}, vcc")
def gemm_main(e, swap, epi, KS, in_sh, fi_mul, out_sh, fo_mul, abort, done):
    Q=KS//4; NST=4 if epi=="P" else 2
    grp=[min(4,Q-4*g) for g in range(4)]
    e(f"""v_lshlrev_b32 v{gRd}, 4, v0
s_mul_i32 s{G_M0}, s{S_W}, {Q*1024}
v_add_u32 v{gIn}, s{G_M0}, v{gRd}
v_min_u32 v{gFl}, s{G_FN}, v0
v_lshlrev_b32 v{gFl}, 4, v{gFl}
v_mov_b32 v{gOne}, 0""")
    lane0(e, gFo, gOne)
    e(f"v_mov_b32 v{gOne}, 1")
    if epi=="P":
        e(f"""v_bfe_u32 v{gT}, v0, 2, 3
v_lshlrev_b32 v{gOut}, 16, v{gT}
v_and_b32 v{gT}, 3, v0
v_lshl_add_u32 v{gOut}, v{gT}, 4, v{gOut}
v_lshrrev_b32 v{gT}, 5, v0
v_lshl_add_u32 v{gOut}, v{gT}, 6, v{gOut}
s_lshl_b32 s{S_T0}, s{S_W}, 9
v_add_u32 v{gOut}, s{S_T0}, v{gOut}""")
    else:
        e(f"s_lshl_b32 s{S_T0}, s{S_W}, 11\nv_add_u32 v{gOut}, s{S_T0}, v{gRd}")
    def faddr(d, seg, add):
        e(f"s_mul_i32 s{d}, s{seg}, {fi_mul}\ns_add_u32 s{d}, s{d}, s{G_FIB}")
        if add: e(f"s_add_u32 s{d}, s{d}, {add*fi_mul}")
    def fload(s): e(f"buffer_load_dwordx4 v[{gF}:{gF+3}], v{gFl}, {WS}, s{s} offen sc1")
    def dgroup(g):
        e(f"s_add_u32 m0, s{G_M0}, {g*4096}\ns_add_u32 s{S_T0}, s{G_IN}, {g*4096}")
        for j in range(grp[g]): e(f"buffer_load_dwordx4 v{gIn}, {WS}, s{S_T0} offen offset:{j*1024} sc1 lds")
    loop=e.lab("gl"); fetch=e.lab("gf"); pb=e.lab("gb")
    e(f"s_mov_b32 s{G_NS}, s{G_SEG}\ns_barrier\n{fetch}:")
    faddr(S_T1, G_NS, 0); poll4(e, gF, gFl, S_T1, abort)
    e(f"s_lshl_b32 s{G_IN}, s{G_NS}, {in_sh}\ns_add_u32 s{G_IN}, s{G_IN}, s{G_INB}")
    for g in range(4): dgroup(g)
    e(f"s_add_u32 s{S_T1}, s{S_T1}, {fi_mul}"); fload(S_T1)
    e(f"s_mov_b32 s{G_PEND}, 0\ns_waitcnt vmcnt(0)\n{loop}:")
    e(f"""s_barrier
s_mov_b32 s{G_SEG}, s{G_NS}
s_add_u32 s{G_NS}, s{G_SEG}, 1
s_xor_b32 s{G_M0}, s{G_M0}, 65536""")
    D=6
    def rd(ks): e(f"ds_read_b128 v[{gR+4*(ks%8)}:{gR+4*(ks%8)+3}], v{gRd} offset:{ks*1024}")
    for ks in range(D): rd(ks)
    e(f"""v_and_b32 v{gF}, v{gF}, v{gF+1}
v_and_b32 v{gF+2}, v{gF+2}, v{gF+3}
v_and_b32 v{gF}, v{gF}, v{gF+2}
v_cmp_ne_u32 vcc, 1, v{gF}
s_lshl_b32 s{G_IN}, s{G_NS}, {in_sh}
s_add_u32 s{G_IN}, s{G_IN}, s{G_INB}
s_cmp_lt_u32 s{G_NS}, s{G_END}
s_cselect_b64 vcc, vcc, -1""")
    for ks in range(KS):
        if ks+D<KS: rd(ks+D)
        e(f"s_waitcnt lgkmcnt({min(D,KS-1-ks)})")
        acc=gA0 if ks%2==0 else gA1
        A=f"a[{4*ks}:{4*ks+3}]"; B=f"v[{gR+4*(ks%8)}:{gR+4*(ks%8)+3}]"
        if swap: A,B=B,A
        e(f"v_mfma_f32_32x32x16_bf16 v[{acc}:{acc+15}], {A}, {B}, {'0' if ks<2 else f'v[{acc}:{acc+15}]'}")
        if ks in (1,5,9,13):
            l=e.lab("sk"); e(f"s_cbranch_vccnz {l}"); dgroup((ks-1)//4); e(f"{l}:")
        if ks==30:
            l=e.lab("sp"); l2=e.lab("sq")
            e(f"""s_cmp_eq_u32 s{G_PEND}, 0
s_cbranch_scc1 {l}
s_waitcnt vmcnt({Q})
s_cbranch_vccz {l2}
s_waitcnt vmcnt(0)
{l2}:
buffer_store_dword v{gOne}, v{gFo}, {WS}, s{G_FP} offen sc1
{l}:""")
        if ks==KS-16:
            faddr(S_T1, G_NS, 1); fload(S_T1)
            e(f"""s_lshl_b32 s{S_T2}, s{G_SEG}, {out_sh}
s_add_u32 s{S_T2}, s{S_T2}, s{G_OUTB}
s_mul_i32 s{G_FP}, s{G_SEG}, {fo_mul}
s_add_u32 s{G_FP}, s{G_FP}, s{G_FOB}""")
    e(f"v_xor_b32 v{gRd}, 65536, v{gRd}")
    for i in range(0,16,2): e(f"v_pk_add_f32 v[{gA0+i}:{gA0+i+1}], v[{gA0+i}:{gA0+i+1}], v[{gA1+i}:{gA1+i+1}]")
    if epi=="P":
        for g in range(4): e(f"buffer_store_dwordx4 v[{gA0+4*g}:{gA0+4*g+3}], v{gOut}, {WS}, s{S_T2} offen offset:{g*128} sc1")
    else:
        if epi=="R":
            for i in range(16): e(f"v_max_f32 v{gA0+i}, 0, v{gA0+i}")
        for i in range(8): e(f"v_cvt_pk_bf16_f32 v{gP+i}, v{gA0+2*i}, v{gA0+2*i+1}")
        for ab in range(2): e(f"buffer_store_dwordx4 v[{gP+4*ab}:{gP+4*ab+3}], v{gOut}, {WS}, s{S_T2} offen offset:{ab*1024} sc1")
    e(f"""s_cbranch_vccnz {pb}
s_mov_b32 s{G_PEND}, 1
s_waitcnt vmcnt({NST})
s_branch {loop}
{pb}:
s_waitcnt vmcnt(0)
buffer_store_dword v{gOne}, v{gFo}, {WS}, s{G_FP} offen sc1
s_cmp_lt_u32 s{G_NS}, s{G_END}
s_cbranch_scc1 {fetch}
s_barrier
s_branch {done}""")
```

```python
KNAME = "adaLN_cond__memory_aug_recurrent_mem_tr__dense_activation_relu__prompt"
CH_MEM  = 0x000000
CH_O    = 0x040000
CH_SC   = 0x080000
CH_PART = 0x180000
FLAGS   = 0x200000
F_KV    = FLAGS + 0x00000
F_KM    = FLAGS + 0x18000
F_P1    = FLAGS + 0x20000
F_P2    = FLAGS + 0x28000
F_F     = FLAGS + 0x30000
F_O     = FLAGS + 0x38000
F_H2    = FLAGS + 0x3A000
F_H1    = FLAGS + 0x3C000
FLAGS_END = FLAGS + 0x40000
MOD     = 0x240000
PROF    = 0x300000
H1      = 0x400000
H2      = 0x800000
X1      = 0xC00000
KB      = 0x1000000
VB      = 0x2000000
KM      = 0x3000000
VM      = 0x3400000
OB      = 0x4000000
P1      = 0x5000000
FB      = 0x7000000
P2      = 0x8000000
QB      = 0xA000000
WS_SIZE = 0x10000000
OOB     = 0x7FF00000
```

```python
from layout import *
from chain import *
from gemm import *
L_MISC=131072
L_TK=L_MISC; L_MOD=L_MISC+64; L_ST=L_MISC+1024
LOG2E="0x3fb8aa3b"
def rnd(e, a, t):
    e(f"v_cvt_pk_bf16_f32 v{t}, v{a}, v{a+1}\nv_lshlrev_b32 v{a}, 16, v{t}\nv_and_b32 v{a+1}, 0xffff0000, v{t}")
def unpack(e, d, s, n):
    for i in range(n): e(f"v_lshlrev_b32 v{d+2*i}, 16, v{s+i}\nv_and_b32 v{d+2*i+1}, 0xffff0000, v{s+i}")
def pk(op, d, a, b): return f"v_pk_{op}_f32 v[{d}:{d+1}], v[{a}:{a+1}], v[{b}:{b+1}]"
def wred(e, regs, t):
    for r in regs: e(f"v_add_f32_dpp v{r}, v{r}, v{r} row_ror:4 row_mask:0xf bank_mask:0xf")
    for r in regs: e(f"v_add_f32_dpp v{r}, v{r}, v{r} row_ror:8 row_mask:0xf bank_mask:0xf")
    for sw in ("16","32"):
        for i,r in enumerate(regs): e(f"v_mov_b32 v{t+i}, v{r}")
        for i,r in enumerate(regs): e(f"v_permlane{sw}_swap_b32 v{t+i}, v{r}")
        for i,r in enumerate(regs): e(f"v_add_f32 v{r}, v{r}, v{t+i}")
def ln_norm(e, Xs, T, vW, vR, offs):
    n=len(Xs)
    for g,X in enumerate(Xs):
        t=T+28*g
        for i in range(0,8,2): e(pk("add",t+i,X+i,X+8+i))
        e(pk("add",t,t,t+4)); e(pk("add",t+2,t+2,t+6)); e(pk("add",t,t,t+2))
        e(f"v_add_f32 v{t+16}, v{t}, v{t+1}")
    for g in range(n): wred(e,[T+28*g+16],T+28*g+18)
    for g,X in enumerate(Xs):
        t=T+28*g
        e(f"v_mul_f32 v{t+16}, 0x3b800000, v{t+16}\nv_mov_b32 v{t+17}, v{t+16}")
        for i in range(0,16,2): e(f"v_pk_add_f32 v[{t+i}:{t+i+1}], v[{X+i}:{X+i+1}], v[{t+16}:{t+17}] neg_lo:[0,1] neg_hi:[0,1]")
        e(pk("mul",t,t,t))
        for i in range(2,16,2): e(f"v_pk_fma_f32 v[{t}:{t+1}], v[{t+i}:{t+i+1}], v[{t+i}:{t+i+1}], v[{t}:{t+1}]")
        e(f"v_add_f32 v{t+17}, v{t}, v{t+1}")
    for g in range(n): wred(e,[T+28*g+17],T+28*g+18)
    e("s_mov_b64 exec, 15")
    for g in range(n): e(f"ds_write_b64 v{vW}, v[{T+28*g+16}:{T+28*g+17}] offset:{offs[g]}")
    e("s_mov_b64 exec, -1\ns_waitcnt lgkmcnt(0)\ns_barrier")
    for g in range(n):
        t=T+28*g
        e(f"ds_read_b128 v[{t}:{t+3}], v{vR} offset:{offs[g]}\nds_read_b128 v[{t+4}:{t+7}], v{vR} offset:{offs[g]+16}")
    e("s_waitcnt lgkmcnt(0)")
    for g,X in enumerate(Xs):
        t=T+28*g
        e(pk("add",t+8,t,t+2)); e(pk("add",t+10,t+4,t+6)); e(pk("add",t+8,t+8,t+10))
        e(f"v_mul_f32 v{t+8}, 0x3e800000, v{t+8}")
        for k in range(4): e(f"v_sub_f32 v{t+2*k}, v{t+2*k}, v{t+8}")
        e(f"""v_mul_f32 v{t}, v{t}, v{t}
v_fmac_f32 v{t}, v{t+2}, v{t+2}
v_fmac_f32 v{t}, v{t+4}, v{t+4}
v_fmac_f32 v{t}, v{t+6}, v{t+6}
v_mul_f32 v{t+9}, 0x3a800000, v{t+9}
v_fmac_f32 v{t+9}, 0x3e800000, v{t}""")
        rnd(e,t+8,t+10)
        e(f"""v_add_f32 v{t+9}, 0x3727c5ac, v{t+9}
v_cvt_pk_bf16_f32 v{t+9}, v{t+9}, v{t+9}
v_and_b32 v{t+9}, 0xffff0000, v{t+9}
v_sqrt_f32 v{t+9}, v{t+9}
v_cvt_pk_bf16_f32 v{t+9}, v{t+9}, v{t+9}
v_and_b32 v{t+9}, 0xffff0000, v{t+9}
v_rcp_f32 v{t+10}, v{t+9}
v_mov_b32 v{t+9}, v{t+8}
v_mov_b32 v{t+11}, v{t+10}""")
        for i in range(0,16,2): e(f"v_pk_add_f32 v[{X+i}:{X+i+1}], v[{X+i}:{X+i+1}], v[{t+8}:{t+9}] neg_lo:[0,1] neg_hi:[0,1]")
        for i in range(0,16,2): rnd(e,X+i,t+12+(i//2)%4)
        for i in range(0,16,2): e(pk("mul",X+i,X+i,t+10))
def modulate(e, X, OPC, SH, P, t):
    for i in range(0,16,2): rnd(e,X+i,t+(i//2)%4)
    for i in range(0,16,2): e(pk("mul",X+i,X+i,OPC+i))
    for i in range(0,16,2): rnd(e,X+i,t+(i//2)%4)
    for i in range(0,16,2): e(pk("add",X+i,X+i,SH+i))
    for i in range(8): e(f"v_cvt_pk_bf16_f32 v{P+i}, v{X+2*i}, v{X+2*i+1}")
def modload(e, d, vM, chunk):
    e(f"s_mov_b32 s{S_T0}, {MOD+chunk*4096}")
    for i in range(4): e(f"buffer_load_dwordx4 v[{d+4*i}:{d+4*i+3}], v{vM}, {WS}, s{S_T0} offen offset:{i*256} sc1")
def oneplus(e, d, t):
    for i in range(16): e(f"v_add_f32 v{d+i}, 1.0, v{d+i}")
    for i in range(0,16,2): rnd(e,d+i,t+(i//2)%4)
def red_lanes(e, vM, vH, vX, vW, vR, t):
    e(f"""v_lshrrev_b32 v{t}, 2, v0
v_and_b32 v{t+1}, 3, v0
s_lshl_b32 s{S_T0}, s{S_W}, 10
v_lshl_add_u32 v{vM}, v{t}, 4, s{S_T0}
s_lshl_b32 s{S_T0}, s{S_W}, 14
v_lshl_add_u32 v{vH}, v{t}, 10, s{S_T0}
v_lshl_add_u32 v{vH}, v{t+1}, 4, v{vH}
s_lshl_b32 s{S_T0}, s{S_W}, 9
v_lshl_add_u32 v{vX}, v{t}, 3, s{S_T0}
v_lshl_add_u32 v{vX}, v{t+1}, 11, v{vX}
v_lshlrev_b32 v{vR}, 5, v{t+1}
v_add_u32 v{vR}, {L_ST}, v{vR}
s_lshl_b32 s{S_T0}, s{S_W}, 3
v_add_u32 v{vW}, s{S_T0}, v{vR}""")
SB=f"s[{SRD_B}:{SRD_B+3}]"
pW=176; pC=44; pAcc=60; pT=68; pX=96; pN=240; pM=228; pH=229
def pro_loads(e):
    srd(e, SRD_A, P_WMOD, 1024*12288); srd(e, SRD_B, P_C, 2048)
    e(f"""v_lshrrev_b32 v{pT}, 2, v0
v_and_b32 v{pT+1}, 3, v0
s_lshl_b32 s{S_T0}, s{S_W}, 9
v_lshl_add_u32 v{pT+2}, v{pT}, 1, s{S_T0}""")
    for i in range(16): e(f"buffer_load_ushort v{pC+i}, v{pT+2}, {SB}, 0 offen offset:{i*32}")
    e(f"""s_mul_i32 s{S_T0}, s{S_W}, {256*12288}
s_cmp_lt_u32 s2, 192
s_cselect_b32 s{S_T0}, s{S_T0}, {hex(OOB)}
v_mul_u32_u24 v{pT+3}, 12288, v{pT}
v_lshl_add_u32 v{pT+3}, v{pT+1}, 4, v{pT+3}
v_add_u32 v{pT+3}, s{S_T0}, v{pT+3}
s_lshl_b32 s{S_T0}, s2, 6""")
    for i in range(16):
        e(f"buffer_load_dwordx4 v[{pW+4*i}:{pW+4*i+3}], v{pT+3}, {SA}, s{S_T0} offen")
        if i<15: e(f"s_add_u32 s{S_T0}, s{S_T0}, {16*12288}")
    srd(e, SRD_B, P_X, 2048*2048)
    red_lanes(e, pT+4, pT+5, pT+6, pT+7, pT+8, pT)
    e(f"s_lshl_b32 s{S_T0}, s2, 14\ns_add_u32 s{S_T1}, s{S_T0}, 8192")
    for g in range(2):
        for i in range(4): e(f"buffer_load_dwordx2 v[{pN+8*g+2*i}:{pN+8*g+2*i+1}], v{pT+6}, {SB}, s{S_T0+g} offen offset:{i*128}")
def pro_mod(e):
    l=e.lab("nomod"); l2=e.lab("nm2")
    e(f"s_cmp_ge_u32 s2, 192\ns_cbranch_scc1 {l}\ns_waitcnt vmcnt(24)")
    t=pX
    for i in range(16): e(f"v_lshlrev_b32 v{pC+i}, 16, v{pC+i}\nv_mul_f32 v{t+i}, 0xbfb8aa3b, v{pC+i}")
    for i in range(16): e(f"v_exp_f32 v{t+i}, v{t+i}")
    for i in range(16): e(f"v_add_f32 v{t+i}, 1.0, v{t+i}")
    for i in range(16): e(f"v_rcp_f32 v{t+i}, v{t+i}")
    for i in range(16): e(f"v_mul_f32 v{pC+i}, v{pC+i}, v{t+i}")
    for i in range(0,16,2): rnd(e,pC+i,t+i)
    for i in range(16):
        e(f"s_waitcnt vmcnt({23-i})")
        unpack(e,t+8*(i%2),pW+4*i,4)
        for j in range(8):
            if i==0: e(f"v_mul_f32 v{pAcc+j}, v{t+j}, v{pC}")
            else: e(f"v_fmac_f32 v{pAcc+j}, v{t+8*(i%2)+j}, v{pC+i}")
    wred(e,[pAcc+j for j in range(8)],t)
    e(f"""v_lshlrev_b32 v{t}, 5, v0
s_lshl_b32 s{S_T0}, s{S_W}, 7
s_add_u32 s{S_T0}, s{S_T0}, {L_MOD}
v_add_u32 v{t}, s{S_T0}, v{t}
s_mov_b64 exec, 15
ds_write_b128 v{t}, v[{pAcc}:{pAcc+3}]
ds_write_b128 v{t}, v[{pAcc+4}:{pAcc+7}] offset:16
s_mov_b64 exec, -1
s_waitcnt lgkmcnt(0)
s_barrier
s_cmp_lg_u32 s{S_W}, 0
s_cbranch_scc1 {l}
v_and_b32 v{t+1}, 31, v0
v_lshlrev_b32 v{t+1}, 2, v{t+1}
v_add_u32 v{t}, {L_MOD}, v{t+1}""")
    for w in range(4): e(f"ds_read_b32 v{t+2+w}, v{t} offset:{w*128}")
    e(f"""s_lshl_b32 s{S_T0}, s2, 7
s_add_u32 s{S_T0}, s{S_T0}, {MOD}
s_waitcnt lgkmcnt(0)
v_add_f32 v{t+2}, v{t+2}, v{t+3}
v_add_f32 v{t+4}, v{t+4}, v{t+5}
v_add_f32 v{t+2}, v{t+2}, v{t+4}
v_cvt_pk_bf16_f32 v{t+2}, v{t+2}, v{t+2}
v_and_b32 v{t+2}, 0xffff0000, v{t+2}
buffer_store_dword v{t+2}, v{t+1}, {WS}, s{S_T0} offen sc1
{l}:""")
def pro_ln(e):
    e(f"s_waitcnt vmcnt(0)\nv_mov_b32 v{pM}, v{pT+4}\nv_mov_b32 v{pH}, v{pT+5}")
    unpack(e,pX,pN,16)
    ln_norm(e,[pX,pX+16],pW-8,pT+7,pT+8,[0,128])
    for i in range(16): e(f"v_cvt_pk_bf16_f32 v{pN+i}, v{pX+2*i}, v{pX+2*i+1}")
def pro_fin(e):
    O=172; Sh=188; X=204; t=220
    modload(e,O,pM,1); modload(e,Sh,pM,0)
    e(f"""s_lshr_b32 s{S_T1}, s2, 2
s_lshl_b32 s{S_T1}, s{S_T1}, 16
s_and_b32 s{S_T2}, s2, 3
s_lshl_b32 s{S_T2}, s{S_T2}, 7
s_add_u32 s{S_T1}, s{S_T1}, s{S_T2}
s_add_u32 s{S_T1}, s{S_T1}, {H1}
s_waitcnt vmcnt(4)""")
    oneplus(e,O,t)
    e("s_waitcnt vmcnt(0)")
    for g in range(2):
        unpack(e,X,pN+8*g,8)
        for i in range(0,16,2): e(pk("mul",X+i,X+i,O+i))
        for i in range(0,16,2): rnd(e,X+i,t+(i//2)%4)
        for i in range(0,16,2): e(pk("add",X+i,X+i,Sh+i))
        for i in range(8): e(f"v_cvt_pk_bf16_f32 v{pN+8*g+i}, v{X+2*i}, v{X+2*i+1}")
        for ab in range(2): e(f"buffer_store_dwordx4 v[{pN+8*g+4*ab}:{pN+8*g+4*ab+3}], v{pH}, {WS}, s{S_T1} offen offset:{ab*512+g*64} sc1")
    e(f"""s_lshl_b32 s{S_T1}, s2, 4
s_lshl_b32 s{S_T2}, s{S_W}, 2
s_add_u32 s{S_T1}, s{S_T1}, s{S_T2}
s_add_u32 s{S_T1}, s{S_T1}, {F_H1}
v_mov_b32 v{t+1}, 0""")
    lane0(e,t,t+1)
    e(f"v_mov_b32 v{t+1}, 1\ns_waitcnt vmcnt(0)\nbuffer_store_dword v{t+1}, v{t}, {WS}, s{S_T1} offen sc1")
R_TG=66; R_P=67; R_A=68; R_B=69
def red(e, first, abort, done):
    vM=1;vH=2;vX=3;vW=4;vR=5;vP=6;vFl=7;vFo=8;vOne=9;vQ=10;t=12;F=16
    G=20; O=36; Sh=52; P=68; XR=132; X=140; T=156
    red_lanes(e,vM,vH,vX,vW,vR,t)
    e(f"""s_lshl_b32 s{S_T0}, s{S_W}, 12
v_lshl_add_u32 v{vP}, v0, 4, s{S_T0}
s_lshl_b32 s{S_T0}, s{S_W}, 11
v_lshl_add_u32 v{vQ}, v0, 4, s{S_T0}
v_and_b32 v{vFl}, 31, v0
v_lshlrev_b32 v{vFl}, 4, v{vFl}
v_mov_b32 v{vOne}, 0""")
    lane0(e,vFo,vOne); e(f"v_mov_b32 v{vOne}, 1")
    if first:
        modload(e,G,vM,2); modload(e,O,vM,4); modload(e,Sh,vM,3)
        srd(e, SRD_B, P_X, 2048*2048)
        e("s_waitcnt vmcnt(0)"); oneplus(e,O,t)
    else:
        modload(e,G,vM,5); srd(e, SRD_B, P_OUT, 2048*2048)
    lp=e.lab("rl")
    e(f"""s_mov_b32 s{G_SEG}, 0
{lp}:
s_lshl_b32 s{R_A}, s{G_SEG}, 16
s_lshl_b32 s{S_T0}, s{R_TG}, 13
s_add_u32 s{R_A}, s{R_A}, s{S_T0}
s_add_u32 s{R_B}, s{R_A}, {X1}
s_lshl_b32 s{R_P}, s{R_A}, 3
s_add_u32 s{R_P}, s{R_P}, {P1 if first else P2}
s_lshl_b32 s{S_T1}, s{G_SEG}, 9
s_add_u32 s{S_T1}, s{S_T1}, {F_P1 if first else F_P2}""")
    if first:
        for i in range(4): e(f"buffer_load_dwordx2 v[{XR+2*i}:{XR+2*i+1}], v{vX}, {SB}, s{R_A} offen offset:{i*128}")
    poll4(e,F,vFl,S_T1,abort)
    for kc in range(4):
        for i in range(4): e(f"buffer_load_dwordx4 v[{P+16*kc+4*i}:{P+16*kc+4*i+3}], v{vP}, {WS}, s{R_P} offen offset:{i*1024} sc1")
        if kc<3: e(f"s_add_u32 s{R_P}, s{R_P}, 16384")
    nx=0
    if not first:
        nx=2
        for ab in range(2): e(f"buffer_load_dwordx4 v[{XR+4*ab}:{XR+4*ab+3}], v{vQ}, {WS}, s{R_B} offen offset:{ab*1024} sc1")
    else: unpack(e,X,XR,8)
    e(f"s_waitcnt vmcnt({8+nx})")
    for i in range(0,16,2): e(pk("add",P+i,P+i,P+16+i))
    e(f"s_waitcnt vmcnt({nx})")
    for i in range(0,16,2): e(pk("add",P+32+i,P+32+i,P+48+i))
    for i in range(0,16,2): e(pk("add",P+i,P+i,P+32+i))
    for i in range(0,16,2): rnd(e,P+i,t+(i//2)%4)
    for i in range(0,16,2): e(pk("mul",P+i,P+i,G+i))
    for i in range(0,16,2): rnd(e,P+i,t+(i//2)%4)
    if not first:
        e("s_waitcnt vmcnt(0)"); unpack(e,X,XR,8)
    for i in range(0,16,2): e(pk("add",X+i,X+i,P+i))
    for i in range(8): e(f"v_cvt_pk_bf16_f32 v{XR+i}, v{X+2*i}, v{X+2*i+1}")
    if first:
        for ab in range(2): e(f"buffer_store_dwordx4 v[{XR+4*ab}:{XR+4*ab+3}], v{vQ}, {WS}, s{R_B} offen offset:{ab*1024} sc1")
        unpack(e,X,XR,8)
        ln_norm(e,[X],T,vW,vR,[0])
        e(f"v_xor_b32 v{vW}, 128, v{vW}\nv_xor_b32 v{vR}, 128, v{vR}")
        modulate(e,X,O,Sh,P,t)
        e(f"""s_lshl_b32 s{S_T1}, s{G_SEG}, 16
s_lshl_b32 s{S_T0}, s{R_TG}, 6
s_add_u32 s{S_T1}, s{S_T1}, s{S_T0}
s_add_u32 s{S_T1}, s{S_T1}, {H2}""")
        for ab in range(2): e(f"buffer_store_dwordx4 v[{P+4*ab}:{P+4*ab+3}], v{vH}, {WS}, s{S_T1} offen offset:{ab*512} sc1")
        e(f"""s_lshl_b32 s{S_T1}, s{G_SEG}, 7
s_lshl_b32 s{S_T0}, s{R_TG}, 4
s_add_u32 s{S_T1}, s{S_T1}, s{S_T0}
s_lshl_b32 s{S_T0}, s{S_W}, 2
s_add_u32 s{S_T1}, s{S_T1}, s{S_T0}
s_add_u32 s{S_T1}, s{S_T1}, {F_H2}
s_waitcnt vmcnt(0)
buffer_store_dword v{vOne}, v{vFo}, {WS}, s{S_T1} offen sc1""")
    else:
        for i in range(4): e(f"buffer_store_dwordx2 v[{XR+2*i}:{XR+2*i+1}], v{vX}, {SB}, s{R_A} offen offset:{i*128}")
    e(f"s_add_u32 s{G_SEG}, s{G_SEG}, 1\ns_cmp_lt_u32 s{G_SEG}, 64\ns_cbranch_scc1 {lp}\ns_branch {done}")
A_H=65; A_SC=66; A_MK=68
def att(e, abort, done):
    vA=1;vKM=2;vVM=3;vF1=4;vF2=5;vFo=6;vOne=7;t=8;F=16;Pb=20;m=30
    Q=32;K=64;V=96;KMr=128;VMr=160;S=168;SM=184
    e(f"""s_lshl_b32 s{S_T0}, s{A_H}, 13
v_lshl_add_u32 v{vA}, v0, 4, s{S_T0}
v_lshrrev_b32 v{t}, 5, v0
v_and_b32 v{t+1}, 7, v0
s_lshl_b32 s{S_T0}, s{A_H}, 11
v_lshl_add_u32 v{vKM}, v{t}, 7, s{S_T0}
v_lshl_add_u32 v{vKM}, v{t+1}, 4, v{vKM}
v_lshl_add_u32 v{vVM}, v0, 3, s{S_T0}
s_lshl_b32 s{S_T0}, s{A_H}, 4
v_mov_b32 v{vF2}, s{S_T0}
v_min_u32 v{vF1}, 2, v0
v_lshl_add_u32 v{vF1}, v{vF1}, 9, s{S_T0}
v_and_b32 v{t+1}, 31, v0
v_lshlrev_b32 v{t}, 2, v{t}
v_sub_u32 v{t}, v{t+1}, v{t}
s_lshl_b32 s{S_T0}, s{A_H}, 2
v_mov_b32 v{vOne}, s{S_T0}""")
    lane0(e,vFo,vOne)
    e(f"v_mov_b32 v{vOne}, 1\ns_mov_b32 s{A_SC}, 0x3db504f3\ns_mov_b32 s{A_SC+1}, 0x3db504f3")
    for r in range(16): e(f"v_cmp_gt_i32 s[{A_MK+2*r}:{A_MK+2*r+1}], {8*(r//4)+r%4}, v{t}")
    lp=e.lab("al")
    e(f"""{lp}:
s_mul_i32 s{S_T1}, s{G_SEG}, 1536
s_add_u32 s{S_T1}, s{S_T1}, {F_KV}""")
    poll4(e,F,vF1,S_T1,abort)
    e(f"s_lshl_b32 s{S_T4}, s{G_SEG}, 18")
    for base,reg in ((QB,Q),(KB,K),(VB,V)):
        for hf in range(2):
            e(f"s_add_u32 s{S_T0}, s{S_T4}, {base+hf*4096}")
            for j in range(4): e(f"buffer_load_dwordx4 v[{reg+16*hf+4*j}:{reg+16*hf+4*j+3}], v{vA}, {WS}, s{S_T0} offen offset:{j*1024} sc1")
    e(f"s_lshl_b32 s{S_T1}, s{G_SEG}, 9\ns_add_u32 s{S_T1}, s{S_T1}, {F_KM}\ns_waitcnt vmcnt(8)")
    for k in range(8): e(f"v_mfma_f32_32x32x16_bf16 v[{S}:{S+15}], v[{K+4*k}:{K+4*k+3}], v[{Q+4*k}:{Q+4*k+3}], {'0' if k==0 else f'v[{S}:{S+15}]'}")
    def scale(b,n):
        for i in range(0,n,2): rnd(e,b+i,t+(i//2)%4)
        for i in range(0,n,2): e(f"v_pk_mul_f32 v[{b+i}:{b+i+1}], v[{b+i}:{b+i+1}], s[{A_SC}:{A_SC+1}]")
        for i in range(0,n,2): rnd(e,b+i,t+(i//2)%4)
    poll4(e,F,vF2,S_T1,abort)
    e(f"s_lshl_b32 s{S_T0}, s{G_SEG}, 16\ns_add_u32 s{S_T1}, s{S_T0}, {VM}\ns_add_u32 s{S_T0}, s{S_T0}, {KM}")
    for k in range(8): e(f"buffer_load_dwordx4 v[{KMr+4*k}:{KMr+4*k+3}], v{vKM}, {WS}, s{S_T0} offen offset:{k*256} sc1")
    for c in range(4): e(f"buffer_load_dwordx2 v[{VMr+2*c}:{VMr+2*c+1}], v{vVM}, {WS}, s{S_T1} offen offset:{c*512} sc1")
    scale(S,16)
    e(f"v_mov_b32 v{m+1}, 0xce6e6b28")
    for r in range(16): e(f"v_cndmask_b32 v{S+r}, v{S+r}, v{m+1}, s[{A_MK+2*r}:{A_MK+2*r+1}]")
    e(f"v_max3_f32 v{m}, v{S}, v{S+1}, v{S+2}")
    for r in range(3,15,2): e(f"v_max3_f32 v{m}, v{m}, v{S+r}, v{S+r+1}")
    e(f"v_max_f32 v{m}, v{m}, v{S+15}")
    for k in range(8):
        e(f"s_waitcnt vmcnt({11-k})\nv_mfma_f32_32x32x16_bf16 v[{SM}:{SM+15}], v[{KMr+4*k}:{KMr+4*k+3}], v[{Q+4*k}:{Q+4*k+3}], {'0' if k==0 else f'v[{SM}:{SM+15}]'}")
    scale(SM,4)
    e(f"""v_max3_f32 v{m}, v{m}, v{SM}, v{SM+1}
v_max3_f32 v{m}, v{m}, v{SM+2}, v{SM+3}
v_mov_b32 v{m+1}, v{m}
v_permlane32_swap_b32 v{m+1}, v{m}
v_max_f32 v{m}, v{m}, v{m+1}
v_mul_f32 v{m}, {LOG2E}, v{m}
s_mov_b32 s{S_T0}, {LOG2E}""")
    for r in range(20): e(f"v_fma_f32 v{S+r}, v{S+r}, s{S_T0}, -v{m}")
    for r in range(20): e(f"v_exp_f32 v{S+r}, v{S+r}")
    e(pk("add",t,S,S+2)); e(pk("add",t+2,S+4,S+6))
    for i in range(8,20,4): e(pk("add",t,t,S+i)); e(pk("add",t+2,t+2,S+i+2))
    e(pk("add",t,t,t+2))
    e(f"""v_add_f32 v{m}, v{t}, v{t+1}
v_mov_b32 v{m+1}, v{m}
v_permlane32_swap_b32 v{m+1}, v{m}
v_add_f32 v{m}, v{m}, v{m+1}
v_rcp_f32 v{m}, v{m}
v_mov_b32 v{m+1}, v{m}""")
    for i in range(0,20,2): e(pk("mul",S+i,S+i,m))
    for i in range(10): e(f"v_cvt_pk_bf16_f32 v{Pb+i}, v{S+2*i}, v{S+2*i+1}")
    e("s_waitcnt vmcnt(0)")
    O=32
    for c in range(4): e(f"v_mfma_f32_32x32x8_bf16 v[{O+16*c}:{O+16*c+15}], v[{VMr+2*c}:{VMr+2*c+1}], v[{Pb+8}:{Pb+9}], 0")
    for ab in range(2):
        for c in range(4): e(f"v_mfma_f32_32x32x16_bf16 v[{O+16*c}:{O+16*c+15}], v[{V+8*c+4*ab}:{V+8*c+4*ab+3}], v[{Pb+4*ab}:{Pb+4*ab+3}], v[{O+16*c}:{O+16*c+15}]")
    e(f"s_add_u32 s{S_T0}, s{S_T4}, {OB}\ns_add_u32 s{S_T1}, s{S_T0}, 4096")
    for c in range(4):
        for i in range(8): e(f"v_cvt_pk_bf16_f32 v{KMr+8*c+i}, v{O+16*c+2*i}, v{O+16*c+2*i+1}")
        for ab in range(2): e(f"buffer_store_dwordx4 v[{KMr+8*c+4*ab}:{KMr+8*c+4*ab+3}], v{vA}, {WS}, s{S_T0+c//2} offen offset:{(c%2)*2048+ab*1024} sc1")
    e(f"""s_lshl_b32 s{S_T1}, s{G_SEG}, 7
s_add_u32 s{S_T1}, s{S_T1}, {F_O}
s_waitcnt vmcnt(0)
buffer_store_dword v{vOne}, v{vFo}, {WS}, s{S_T1} offen sc1
s_add_u32 s{G_SEG}, s{G_SEG}, 2
s_cmp_lt_u32 s{G_SEG}, 64
s_cbranch_scc1 {lp}
s_branch {done}""")
```

```python
import sys
from asmlib import *
from common import *
from roles import *
import chain as CH
SPLIT=int(dict(a.split("=") for a in sys.argv[2:] if "=" in a).get("split",50))
prof = "prof" in sys.argv
out=sys.argv[1]
N=KNAME+"_kernel"
e=Asm()
header(e,N); entry(e,"EXIT"); ticket_issue(e); pro_loads(e); ticket_finish(e,L_TK,41)
pro_mod(e); pro_ln(e)
T_KQ,T_V,T_WO,T_F1,T_F2,T_CH,T_NONE=range(7)
e(f"""ROLE0:
s_mov_b32 s{G_JOB}, 0
s_mov_b32 s{G_TYPE}, {T_NONE}
s_cmp_ge_u32 s{S_RANK}, 32
s_cbranch_scc1 ARR
s_sub_u32 s{G_X}, s{S_TEAM}, 4
s_cbranch_scc0 ARR
s_mov_b32 s{G_TYPE}, {T_CH}""")
chain_pre(e,"sc1")
e(f"ARR:\ns_cmp_eq_u32 s{S_MODE}, 0\ns_cbranch_scc0 ARR2")
arrive(e,32,230)
e("s_branch ARR3\nARR2:")
arrive(e,40,230)
e(f"""ARR3:
s_cmp_ge_u32 s{S_RANK}, 32
s_cbranch_scc1 HOOK
s_cmp_eq_u32 s{G_TYPE}, {T_CH}
s_cbranch_scc0 JOB""")
load_weights(e)
e("s_branch HOOK")
e(f"""NEXT:
s_add_u32 s{G_JOB}, s{G_JOB}, 1
JOB:
s_lshr_b32 s{S_T0}, s{S_RANK}, 3
s_and_b32 s{S_T1}, s{S_RANK}, 7
s_mov_b32 s{G_SEG}, 0
s_mov_b32 s{G_END}, {SPLIT}
s_cmp_eq_u32 s{S_T0}, 3
s_cbranch_scc0 JNT
s_cmp_eq_u32 s{G_JOB}, 3
s_cbranch_scc1 JMISC
s_mov_b32 s{S_T0}, s{G_JOB}
s_mov_b32 s{G_SEG}, {SPLIT}
s_mov_b32 s{G_END}, 64
s_branch JQKV
JNT:
s_cmp_eq_u32 s{G_JOB}, 0
s_cbranch_scc0 JB
JQKV:
s_lshl_b32 s{S_T2}, s{G_X}, 3
s_add_u32 s{S_T1}, s{S_T1}, s{S_T2}
s_lshl_b32 s{G_COL}, s{S_T1}, 8
s_lshl_b32 s{G_OUTB}, s{S_T1}, 13
s_lshl_b32 s{G_FOB}, s{S_T1}, 4
s_lshl_b32 s{S_T2}, s{S_W}, 2
s_add_u32 s{G_FOB}, s{G_FOB}, s{S_T2}
s_lshl_b32 s{S_T2}, s{S_T0}, 9
s_add_u32 s{G_FOB}, s{G_FOB}, s{S_T2}
s_add_u32 s{G_FOB}, s{G_FOB}, {F_KV}
s_mov_b32 s{G_INB}, {H1}
s_mov_b32 s{G_FIB}, {F_H1}
s_mov_b32 s{G_FN}, 3
s_mov_b32 s{G_TYPE}, {T_KQ}
s_cmp_eq_u32 s{S_T0}, 1
s_cbranch_scc1 JV
s_cmp_eq_u32 s{S_T0}, 2
s_cbranch_scc1 JQ
s_add_u32 s{G_OUTB}, s{G_OUTB}, {KB}""")
srd(e,SRD_A,P_WK,0x800000)
e(f"s_branch WLQ\nJV:\ns_add_u32 s{G_OUTB}, s{G_OUTB}, {VB}\ns_mov_b32 s{G_TYPE}, {T_V}")
srd(e,SRD_A,P_WV,0x800000)
e(f"s_branch WLQ\nJQ:\ns_add_u32 s{G_OUTB}, s{G_OUTB}, {QB}")
srd(e,SRD_A,P_WQ,0x800000)
e("WLQ:")
wload(e,8192,'P',1024)
e(f"s_cmp_eq_u32 s{G_JOB}, 0\ns_cbranch_scc0 MAIN\nHOOK:\ns_cmp_eq_u32 s{S_MODE}, 0\ns_cbranch_scc0 HOOK2")
wait_all(e,32,230,"ABORT")
e(f"s_cmp_lg_u64 vcc, 0\ns_cselect_b32 s{S_MODE}, 1, 0")
pro_fin(e)
e(f"""s_cmp_eq_u32 s{S_MODE}, 0
s_cbranch_scc1 MAIN
s_lshr_b32 s{S_TEAM}, s2, 5
s_and_b32 s{S_RANK}, s2, 31
s_waitcnt vmcnt(0)
s_barrier
s_branch ROLE0
HOOK2:""")
wait_all(e,40,230,"ABORT")
e(f"""MAIN:
s_cmp_eq_u32 s{G_TYPE}, {T_KQ}
s_cbranch_scc1 M_KQ
s_cmp_eq_u32 s{G_TYPE}, {T_V}
s_cbranch_scc1 M_V
s_cmp_eq_u32 s{G_TYPE}, {T_CH}
s_cbranch_scc0 ABORT
s_cmp_eq_u32 s{S_MODE}, 0
s_cbranch_scc0 M_CS""")
chain_main(e,"","ABORT","DONE",check_kv=True,prof=prof)
e("M_CS:")
chain_main(e,"sc1","ABORT","DONE",check_kv=True)
e("M_KQ:"); gemm_main(e,False,"B",64,16,64,18,1536,"ABORT","NEXT")
e("M_V:");  gemm_main(e,True,"B",64,16,64,18,1536,"ABORT","NEXT")
e(f"""JB:
s_cmp_eq_u32 s{G_JOB}, 1
s_cbranch_scc0 DONE
s_mov_b32 s{G_END}, 64
s_lshl_b32 s{S_T2}, s{G_X}, 3
s_add_u32 s{S_T2}, s{S_T2}, s{S_T1}
s_lshl_b32 s{G_FOB}, s{S_T2}, 4
s_lshl_b32 s{S_T2}, s{S_W}, 2
s_add_u32 s{G_FOB}, s{G_FOB}, s{S_T2}
s_lshl_b32 s{G_INB}, s{G_X}, 16
s_lshl_b32 s{G_COL}, s{S_T1}, 8
s_lshl_b32 s{G_OUTB}, s{S_T1}, 11
s_lshl_b32 s{S_T2}, s{G_X}, 14
s_add_u32 s{G_OUTB}, s{G_OUTB}, s{S_T2}
s_cmp_eq_u32 s{S_T0}, 1
s_cbranch_scc1 JF1
s_cmp_eq_u32 s{S_T0}, 2
s_cbranch_scc1 JF2
s_add_u32 s{G_FOB}, s{G_FOB}, {F_P1}
s_add_u32 s{G_INB}, s{G_INB}, {OB}
s_add_u32 s{G_OUTB}, s{G_OUTB}, {P1}
s_lshl_b32 s{S_T2}, s{G_X}, 21
s_add_u32 s{G_COL}, s{G_COL}, s{S_T2}
s_lshl_b32 s{G_FIB}, s{G_X}, 5
s_add_u32 s{G_FIB}, s{G_FIB}, {F_O}
s_mov_b32 s{G_FN}, 1""")
srd(e,SRD_A,P_WO,0x800000); wload(e,2048,'Q',1024)
gemm_main(e,False,"P",64,18,128,19,512,"ABORT","DONE")
e(f"""JF2:
s_add_u32 s{G_FOB}, s{G_FOB}, {F_P2}
s_add_u32 s{G_INB}, s{G_INB}, {FB}
s_add_u32 s{G_OUTB}, s{G_OUTB}, {P2}
s_mul_i32 s{S_T2}, s{G_X}, {896*2048}
s_add_u32 s{G_COL}, s{G_COL}, s{S_T2}
s_lshl_b32 s{G_FIB}, s{G_X}, 7
s_add_u32 s{G_FIB}, s{G_FIB}, {F_F}
s_mov_b32 s{G_FN}, 6""")
srd(e,SRD_A,P_W2,3584*2048); wload(e,2048,'Q',896)
gemm_main(e,False,"P",56,18,512,19,512,"ABORT","DONE")
e(f"""JF1:
s_cmp_eq_u32 s{S_T1}, 7
s_cbranch_scc1 DONE
s_add_u32 s{G_FOB}, s{G_FOB}, {F_F}
s_lshl_b32 s{G_OUTB}, s{S_T1}, 13
s_add_u32 s{G_OUTB}, s{G_OUTB}, s{G_INB}
s_add_u32 s{G_OUTB}, s{G_OUTB}, {FB}
s_mov_b32 s{G_INB}, {H2}
s_mul_i32 s{S_T2}, s{G_X}, {7*256}
s_add_u32 s{G_COL}, s{G_COL}, s{S_T2}
s_mov_b32 s{G_FIB}, {F_H2}
s_mov_b32 s{G_FN}, 7""")
srd(e,SRD_A,P_W1,1024*7168); wload(e,7168,'P',1024)
gemm_main(e,False,"R",64,16,128,18,512,"ABORT","DONE")
e(f"""JMISC:
s_cmp_lt_u32 s{S_T1}, 4
s_cbranch_scc1 JATT
s_lshl_b32 s{R_TG}, s{G_X}, 1
s_and_b32 s{S_T2}, s{S_T1}, 1
s_add_u32 s{R_TG}, s{R_TG}, s{S_T2}
s_cmp_lt_u32 s{S_T1}, 6
s_cbranch_scc0 JR2""")
red(e,True,"ABORT","DONE")
e("JR2:"); red(e,False,"ABORT","DONE")
e(f"""JATT:
s_lshl_b32 s{S_T1}, s{S_T1}, 2
s_add_u32 s{S_T1}, s{S_T1}, s{S_W}
s_lshr_b32 s{G_SEG}, s{S_T1}, 3
s_and_b32 s{S_T1}, s{S_T1}, 7
s_lshl_b32 s{A_H}, s{G_X}, 3
s_add_u32 s{A_H}, s{A_H}, s{S_T1}""")
att(e,"ABORT","DONE")
e("DONE:\ns_waitcnt vmcnt(0)\ns_endpgm")
abort_code(e,"ABORT","EXIT")
ref=open("cdna_kernels/"+KNAME+".s.ref").read()
head=ref[:ref.index("; @launch")]
txt=head+"; @launch grid=(256,1,1) block=(256,1,1) lds=147456\n.amdgcn_target \"amdgcn-amd-amdhsa--gfx950\"\n"+e.finish()+kdesc(N)
open(out,"w").write(txt); print("nops",e.nops,"lines",txt.count("\n"),"bytes",len(txt))
```

```python
from layout import *
S_WG=2; S_XCC=3
SRD_WS=8
SRD_A=12
SRD_B=16
SRD_DBG=20
S_P=24
P_X,P_MEM0,P_WQ,P_WK,P_WV,P_WO,P_SEG,P_BX,P_W1,P_W2,P_C,P_WMOD,P_OUT,P_DBG,P_WS = [24+2*i for i in range(15)]
S_W=54; S_TEAM=55; S_RANK=56; S_BUD=57; S_STEP=58
S_T0=59; S_T1=60; S_T2=61; S_T3=62; S_T4=63
S_MEM=64; S_MEMN=65; S_SC=66; S_O=67; S_PART=68; S_KV=69; S_KM=70; S_FL=71; S_MODE=72
S_PR=76
L_X=0
L_WO=9216
L_V=18432
L_KV=24576
L_STAGE=0
def srd(e, d, p, size):
    e(f"s_mov_b32 s{d}, s{p}\ns_mov_b32 s{d+1}, s{p+1}\ns_mov_b32 s{d+2}, {hex(size)}\ns_mov_b32 s{d+3}, 0x00020000")
WS=f"s[{SRD_WS}:{SRD_WS+3}]"
vL=0; vT=1; vT2=2; vT3=3; vG=4; vIdx=5; vXw=6; vVw=7; vXr=8; vVr=9; vWr=10; vKr=11; vVk=12
vSCw=13; vSCw0=14; vSCr=15; vSCr0=16; vOw=17; vPw=18; vPr=19; vMw=20; vPois=21
vZ=22; vKMw=23
vP4=24
vA=28
vD=44
vX=172
vXb=76
vK=80
vVV=88
vS=96
vC=108
vVm=128
vVq=204
vPb=136
vO=144
vU=152
vZ4=168
def lane_setup(e):
    e(f"""v_and_b32 v{vT}, 15, v{vL}
v_lshrrev_b32 v{vT2}, 4, v{vL}
s_lshl_b32 s{S_T0}, s{S_TEAM}, 16
s_lshl_b32 s{S_T1}, s{S_W}, 12
s_add_u32 s{S_T1}, s{S_T1}, s{S_T0}
v_lshlrev_b32 v{vG}, 4, v{vL}
v_add_u32 v{vG}, s{S_T1}, v{vG}
v_mov_b32 v{vIdx}, 0x4444
v_mov_b32 v{vT3}, 0xeeee
v_cmp_le_u32 vcc, 8, v{vT}
v_cndmask_b32 v{vIdx}, v{vIdx}, v{vT3}, vcc
v_and_b32 v{vT3}, 1, v{vT2}
v_mul_u32_u24 v{vXw}, 576, v{vT3}
v_lshl_add_u32 v{vXw}, v{vT}, 2, v{vXw}
v_lshrrev_b32 v{vU}, 1, v{vT2}
v_lshl_add_u32 v{vXw}, v{vU}, 6, v{vXw}
s_mul_i32 s{S_T1}, s{S_W}, 2304
v_add_u32 v{vXw}, s{S_T1}, v{vXw}
v_lshlrev_b32 v{vVw}, 4, v{vT3}
v_lshl_add_u32 v{vVw}, v{vT}, 5, v{vVw}
v_lshl_add_u32 v{vVw}, v{vU}, 9, v{vVw}
s_lshl_b32 s{S_T1}, s{S_W}, 10
v_add_u32 v{vVw}, s{S_T1}, v{vVw}
v_mul_u32_u24 v{vXr}, 144, v{vT}
v_lshl_add_u32 v{vXr}, v{vT3}, 4, v{vXr}
v_lshl_add_u32 v{vXr}, v{vU}, 6, v{vXr}
v_lshlrev_b32 v{vVr}, 5, v{vT}
v_lshl_add_u32 v{vVr}, v{vT2}, 3, v{vVr}
v_bfe_u32 v{vU+1}, v{vL}, 1, 3
v_mul_u32_u24 v{vWr}, 144, v{vU+1}
v_lshl_add_u32 v{vWr}, v{vT2}, 5, v{vWr}
v_and_b32 v{vU+1}, 1, v{vL}
v_lshl_add_u32 v{vWr}, v{vU+1}, 4, v{vWr}
v_lshlrev_b32 v{vVk}, 10, v{vU}
v_lshl_add_u32 v{vVk}, v{vT3}, 9, v{vVk}
v_add_u32 v{vVk}, {L_KV}, v{vVk}
v_lshrrev_b32 v{vU+1}, 3, v{vT}
v_lshl_add_u32 v{vKr}, v{vU+1}, 8, v{vVk}
v_and_b32 v{vU+2}, 7, v{vL}
v_lshl_add_u32 v{vKr}, v{vU+2}, 4, v{vKr}
v_lshl_add_u32 v{vVk}, v{vT}, 4, v{vVk}
s_mul_i32 s{S_T1}, s{S_TEAM}, 163840
s_mul_i32 s{S_T2}, s{S_RANK}, 1280
s_add_u32 s{S_T2}, s{S_T2}, s{S_T1}
v_lshlrev_b32 v{vSCw}, 7, v{vT2}
v_lshl_add_u32 v{vSCw}, v{vT}, 4, v{vSCw}
s_lshl_b32 s{S_T3}, s{S_RANK}, 9
s_add_u32 s{S_T3}, s{S_T3}, s{S_T0}
v_add_u32 v{vOw}, s{S_T3}, v{vSCw}
v_add_u32 v{vSCw}, s{S_T2}, v{vSCw}
v_add_u32 v{vSCw0}, 768, v{vSCw}
v_mov_b32 v{vU+3}, {hex(OOB)}
v_cmp_le_u32 vcc, 8, v{vT}
v_cndmask_b32 v{vSCw}, v{vSCw}, v{vU+3}, vcc
v_cndmask_b32 v{vOw}, v{vOw}, v{vU+3}, vcc
v_cndmask_b32 v{vSCw0}, v{vSCw0}, v{vU+3}, vcc
v_cmp_gt_u32 vcc, 2, v{vT2}
v_cndmask_b32 v{vSCw0}, v{vSCw0}, v{vU+3}, vcc
s_and_b32 s{S_T2}, s{S_RANK}, 28
s_mul_i32 s{S_T2}, s{S_T2}, 1280
s_add_u32 s{S_T2}, s{S_T2}, s{S_T1}
v_lshlrev_b32 v{vSCr}, 9, v{vU+1}
v_lshl_add_u32 v{vSCr}, v{vT2}, 7, v{vSCr}
v_lshl_add_u32 v{vSCr}, v{vU+2}, 4, v{vSCr}
v_add_u32 v{vSCr}, s{S_T2}, v{vSCr}
v_lshrrev_b32 v{vSCr0}, 5, v{vL}
v_lshlrev_b32 v{vSCr0}, 7, v{vSCr0}
v_lshl_add_u32 v{vSCr0}, v{vU+2}, 4, v{vSCr0}
v_bfe_u32 v{vU+4}, v{vL}, 3, 2
v_lshl_add_u32 v{vSCr0}, v{vU+4}, 2, v{vSCr0}
s_add_u32 s{S_T2}, s{S_T2}, 1024
v_add_u32 v{vSCr0}, s{S_T2}, v{vSCr0}
s_lshl_b32 s{S_T2}, s{S_RANK}, 12
v_lshlrev_b32 v{vPr}, 4, v{vL}
v_add_u32 v{vPr}, s{S_T2}, v{vPr}
s_lshl_b32 s{S_T2}, s{S_TEAM}, 10
v_add_u32 v{vPw}, s{S_T2}, v{vPr}
v_lshlrev_b32 v{vMw}, 3, v{vL}
v_add_u32 v{vMw}, s{S_T3}, v{vMw}
v_mov_b32 v{vZ}, 0""")
    for i in range(4): e(f"v_mov_b32 v{vP4+i}, -1\nv_mov_b32 v{vZ4+i}, 0")
    e(f"v_mov_b32 v{vPb+5}, 0\nv_mov_b32 v{vVm+5}, 0\nv_mov_b32 v{vVm+7}, 0")

def poison(e, slotreg, st):
    e(f"""s_lshl_b32 s{S_T0}, s{slotreg}, 14
s_add_u32 s{S_T1}, s{S_T0}, {CH_O}
buffer_store_dwordx2 v[{vP4}:{vP4+1}], v{vMw}, {WS}, s{S_T0} offen {st}
buffer_store_dwordx2 v[{vP4}:{vP4+1}], v{vMw}, {WS}, s{S_T1} offen {st}
s_mul_i32 s{S_T0}, s{slotreg}, 40960
s_add_u32 s{S_T0}, s{S_T0}, {CH_SC}
s_lshl_b32 s{S_T1}, s{slotreg}, 17
s_add_u32 s{S_T1}, s{S_T1}, {CH_PART}
buffer_store_dwordx4 v[{vP4}:{vP4+3}], v{vU+8}, {WS}, s{S_T0} offen {st}
buffer_store_dword v{vP4}, v{vU+9}, {WS}, s{S_T0} offen {st}
buffer_store_dwordx4 v[{vP4}:{vP4+3}], v{vPw}, {WS}, s{S_T1} offen sc1""")

def load_weights(e):
    vR=vU; vB1=vU+1; vB2=vU+2; vAd=vU+3
    e(f"""v_lshrrev_b32 v{vR}, 2, v{vL}
v_and_b32 v{vT3}, 3, v{vL}
v_lshlrev_b32 v{vT3}, 4, v{vT3}
s_lshl_b32 s{S_T0}, s{S_W}, 8
v_add_u32 v{vR}, s{S_T0}, v{vR}
s_lshl_b32 s{S_T1}, s{S_TEAM}, 11
s_lshl_b32 s{S_T2}, s{S_RANK}, 6
s_add_u32 s{S_T1}, s{S_T1}, s{S_T2}
v_lshl_add_u32 v{vB1}, v{vR}, 13, v{vT3}
v_add_u32 v{vB1}, s{S_T1}, v{vB1}
s_lshl_b32 s{S_T1}, s{S_TEAM}, 21
s_add_u32 s{S_T1}, s{S_T1}, s{S_T2}
v_lshl_add_u32 v{vB2}, v{vR}, 11, v{vT3}
v_add_u32 v{vB2}, s{S_T1}, v{vB2}
s_lshl_b32 s{S_T4}, s{S_W}, 15
s_add_u32 s{S_T4}, s{S_T4}, {L_STAGE}""")
    vq=vU+4; vo=vU+5; t=vU+6; t2=vU+7
    e(f"""v_lshrrev_b32 v{t}, 1, v{vT2}
v_and_b32 v{t2}, 1, v{vT2}
v_lshlrev_b32 v{vq}, 4, v{t}
v_lshl_add_u32 v{vq}, v{t2}, 2, v{vq}
v_lshlrev_b32 v{vo}, 3, v{t}
v_lshl_add_u32 v{vo}, v{t2}, 4, v{vo}
v_bfe_u32 v{t}, v{vL}, 3, 1
v_lshl_add_u32 v{vq}, v{t}, 3, v{vq}
v_lshl_add_u32 v{vo}, v{t}, 2, v{vo}
v_bfe_u32 v{t}, v{vL}, 2, 1
v_add_u32 v{vq}, v{vq}, v{t}
v_add_u32 v{vo}, v{vo}, v{t}
v_and_b32 v{t}, 3, v{vL}
v_lshlrev_b32 v{t}, 3, v{t}
v_add_u32 v{t}, s{S_T4}, v{t}
v_lshl_add_u32 v{vq}, v{vq}, 6, v{t}
v_lshl_add_u32 v{vo}, v{vo}, 6, v{t}""")
    def dma(blk):
        p=[P_WQ,P_WK,P_WV,P_WO][blk]
        sr = SRD_A if blk%2==0 else SRD_B
        srd(e, sr, p, 0x800000)
        for i in range(16):
            e(f"s_add_u32 m0, s{S_T4}, {(blk%2)*16384+i*1024}")
            step = i*16*(8192 if blk<3 else 2048)
            e(f"s_mov_b32 s{S_T0}, {step}")
            e(f"buffer_load_dwordx4 v{vB1 if blk<3 else vB2}, s[{sr}:{sr+3}], s{S_T0} offen lds")
    def tr(blk):
        for tile in range(2):
            for t_ in range(4):
                base = (blk*2+tile)*32 + t_*8 if blk<3 else 192 + tile*32 + t_*8
                for p in range(4):
                    off=(blk%2)*16384 + (64*t_+32*(p>>1)+2*(p&1))*64 + tile*32
                    e(f"ds_read_b64_tr_b16 a[{base+2*p}:{base+2*p+1}], v{vq if blk<3 else vo} offset:{off}")
    dma(0); dma(1)
    e("s_waitcnt vmcnt(16)"); tr(0); e("s_waitcnt lgkmcnt(0)"); dma(2)
    e("s_waitcnt vmcnt(16)"); tr(1); e("s_waitcnt lgkmcnt(0)"); dma(3)
    e("s_waitcnt vmcnt(16)"); tr(2)
    e("s_waitcnt vmcnt(0)"); tr(3); e("s_waitcnt lgkmcnt(0)")

def chain_init(e, st):
    chain_pre(e, st); load_weights(e)
def chain_pre(e, st):
    lane_setup(e)
    e(f"""s_mul_i32 s{S_T1}, s{S_TEAM}, 163840
s_mul_i32 s{S_T2}, s{S_RANK}, 1280
s_add_u32 s{S_T2}, s{S_T2}, s{S_T1}
v_lshl_add_u32 v{vU+8}, v{vL}, 4, s{S_T2}
s_add_u32 s{S_T2}, s{S_T2}, 1024
v_lshl_add_u32 v{vU+9}, v{vL}, 2, s{S_T2}""")
    poison(e, S_W, st)
    l=e.lab("ci")
    e(f"s_cmp_lg_u32 s{S_W}, 0\ns_cbranch_scc1 {l}")
    srd(e, SRD_A, P_MEM0, 16384)
    e(f"""v_bfe_u32 v{vU}, v{vL}, 1, 3
v_lshlrev_b32 v{vU}, 11, v{vU}
v_lshl_add_u32 v{vU}, v{vT2}, 4, v{vU}
v_and_b32 v{vU+1}, 1, v{vL}
v_lshl_add_u32 v{vU}, v{vU+1}, 3, v{vU}
s_lshl_b32 s{S_T0}, s{S_RANK}, 6
buffer_load_dwordx2 v[{vU+2}:{vU+3}], v{vU}, s[{SRD_A}:{SRD_A+3}], s{S_T0} offen
s_waitcnt vmcnt(0)
buffer_store_dwordx2 v[{vU+2}:{vU+3}], v{vMw}, {WS}, 0 offen {st}
{l}:""")

TL=[False]
def tl_init(e):
    if TL[0]: e(f"s_lshl_b32 s6, s2, 10\ns_add_u32 s6, s6, {PROF+0x10000}\ns_cmp_eq_u32 s{S_W}, 0\ns_cselect_b32 s7, 0, {hex(OOB)}")
def tl_get(e):
    if TL[0]: e("s_memrealtime s[4:5]")
def tl_put(e, wait=True, v=14):
    if TL[0]:
        if wait: e("s_waitcnt lgkmcnt(0)")
        e(f"v_mov_b32 v{v}, s4\nv_mov_b32 v{v+1}, s7\nbuffer_store_dword v{v}, v{v+1}, {WS}, s6 offen\ns_add_u32 s6, s6, 4")
def tl(e,v=14):
    tl_get(e); tl_put(e,True,v)
def stamp(e, prof, i):
    if prof: e(f"s_memtime s[{S_PR+2*i}:{S_PR+2*i+1}]")

def gather(e, sreg, abort, pre=None):
    lp=e.lab("g"); ok=e.lab("gok")
    e(f"{lp}:")
    for t in range(4): e(f"buffer_load_dwordx4 v[{vA+4*t}:{vA+4*t+3}], v{vG}, {WS}, s{sreg} offen offset:{t*1024} sc1")
    if pre: pre()
    e(f"""s_waitcnt vmcnt(0)
v_max3_u32 v{vU}, v{vA}, v{vA+2}, v{vA+4}
v_max3_u32 v{vU+1}, v{vA+6}, v{vA+8}, v{vA+10}
v_max3_u32 v{vU}, v{vU}, v{vA+12}, v{vA+14}
v_max_u32 v{vU}, v{vU}, v{vU+1}
v_cmp_eq_u32 vcc, -1, v{vU}
s_cbranch_vccz {ok}
s_sub_u32 s{S_BUD}, s{S_BUD}, 1
s_cbranch_scc0 {lp}
s_branch {abort}
{ok}:""")
def smf(e, d, t, a): e(f"v_smfmac_f32_16x16x64_bf16 v[{d}:{d+3}], v[{vA+4*t}:{vA+4*t+3}], a[{a}:{a+7}], v{vIdx}")
def fold(e, d):
    for i in range(4): e(f"v_permlane32_swap_b32 v{d+i}, v{d+4+i}")
    e(f"v_pk_add_f32 v[{d}:{d+1}], v[{d}:{d+1}], v[{d+4}:{d+5}]\nv_pk_add_f32 v[{d+2}:{d+3}], v[{d+2}:{d+3}], v[{d+6}:{d+7}]")
def qk_phase(e):
    for t in range(3):
        for tile in range(4): smf(e, vD+4*tile, t, tile*32+t*8)
    for tile in range(4): smf(e, vD+4*tile, 3, tile*32+24)
    for p in range(2):
        fold(e, vD+8*p)
        for i in range(4): e(f"ds_write_b32 v{vXw}, v{vD+8*p+i} offset:{L_X+p*1152+i*144}")
    e("s_waitcnt lgkmcnt(0)\ns_barrier")
def v_phase(e):
    for t in range(4):
        for tile in range(2): smf(e, vD+16+4*tile, t, (4+tile)*32+t*8)
    fold(e, vD+16)
    e(f"ds_write_b128 v{vVw}, v[{vD+16}:{vD+19}] offset:{L_V}")
    e("s_waitcnt lgkmcnt(0)\ns_barrier")
def wo_phase(e):
    for t in range(4):
        for tile in range(2): smf(e, vD+4*tile, t, 192+tile*32+t*8)
    fold(e, vD)
    for i in range(4): e(f"ds_write_b32 v{vXw}, v{vD+i} offset:{L_WO+i*144}")
    e("s_waitcnt lgkmcnt(0)\ns_barrier")
def sum4(e, b, n, stride, waits=None):
    for k in range(0,n,2): e(f"v_pk_add_f32 v[{b+k}:{b+k+1}], v[{b+k}:{b+k+1}], v[{b+stride+k}:{b+stride+k+1}]")
    if waits: e(waits)
    for k in range(0,n,2): e(f"v_pk_add_f32 v[{b+2*stride+k}:{b+2*stride+k+1}], v[{b+2*stride+k}:{b+2*stride+k+1}], v[{b+3*stride+k}:{b+3*stride+k+1}]")
    for k in range(0,n,2): e(f"v_pk_add_f32 v[{b+k}:{b+k+1}], v[{b+k}:{b+k+1}], v[{b+2*stride+k}:{b+2*stride+k+1}]")
def zero_acc(e, lo, n):
    for i in range(n): e(f"v_mov_b32 v{vD+lo+i}, 0")
def slots(e):
    e(f"""s_and_b32 s{S_T0}, s{S_STEP}, 3
s_lshl_b32 s{S_MEM}, s{S_T0}, 14
s_add_u32 s{S_O}, s{S_MEM}, {CH_O}
s_mul_i32 s{S_SC}, s{S_T0}, 40960
s_add_u32 s{S_SC}, s{S_SC}, {CH_SC}
s_lshl_b32 s{S_PART}, s{S_T0}, 17
s_add_u32 s{S_PART}, s{S_PART}, {CH_PART}
s_add_u32 s{S_MEMN}, s{S_MEM}, 16384
s_and_b32 s{S_MEMN}, s{S_MEMN}, 0xffff""")
def read_x(e):
    for w in range(4): e(f"ds_read_b128 v[{vX+8*w}:{vX+8*w+3}], v{vXr} offset:{L_X+2304*w}\nds_read_b128 v[{vX+8*w+4}:{vX+8*w+7}], v{vXr} offset:{L_X+2304*w+32}")
def cvt_x(e):
    for i in range(4): e(f"v_cvt_pk_bf16_f32 v{vXb+i}, v{vX+2*i}, v{vX+2*i+1}")
def kv_prefetch(e, abort, check):
    if check:
        lp=e.lab("kf"); ok=e.lab("kok")
        e(f"""s_mul_i32 s{S_T0}, s{S_KV}, 1536
s_add_u32 s{S_T0}, s{S_T0}, {F_KV}
{lp}:
buffer_load_dword v{vU+12}, v{vU+11}, {WS}, s{S_T0} offen sc1
s_waitcnt vmcnt(0)
v_cmp_ne_u32 vcc, 1, v{vU+12}
s_cbranch_vccz {ok}
s_sub_u32 s{S_BUD}, s{S_BUD}, 1
s_cbranch_scc0 {lp}
s_branch {abort}
{ok}:""")
    e(f"""s_and_b32 s{S_T1}, s{S_KV}, 1
s_lshl_b32 s{S_T1}, s{S_T1}, 12
s_lshl_b32 s{S_T0}, s{S_KV}, 18
s_add_u32 m0, s{S_T1}, {L_KV}
s_add_u32 s{S_T2}, s{S_T0}, {KB}
buffer_load_dwordx4 v{vU+10}, {WS}, s{S_T2} offen sc1 lds
buffer_load_dwordx4 v{vU+10}, {WS}, s{S_T2} offen offset:1024 sc1 lds
s_add_u32 m0, s{S_T1}, {L_KV+2048}
s_add_u32 s{S_T2}, s{S_T0}, {VB}
buffer_load_dwordx4 v{vU+10}, {WS}, s{S_T2} offen sc1 lds
buffer_load_dwordx4 v{vU+10}, {WS}, s{S_T2} offen offset:1024 sc1 lds""")

def chain_main(e, st, abort, done, check_kv=True, prof=False, NSTEP=64):
    lead=e.lab("lead");
    e(f"s_mov_b32 s{S_STEP}, 0")
    slots(e); zero_acc(e,0,24)
    e(f"s_cmp_eq_u32 s{S_W}, 0\ns_cbranch_scc1 {lead}")
    e(f"""s_lshl_b32 s{S_T0}, s{S_TEAM}, 5
s_add_u32 s{S_T0}, s{S_T0}, s{S_RANK}
s_lshl_b32 s{S_T1}, s{S_T0}, 11
v_lshl_add_u32 v{vU+10}, v{vL}, 4, s{S_T1}
s_lshl_b32 s{S_T1}, s{S_T0}, 2
v_and_b32 v{vU+11}, 1, v{vL}
v_lshl_add_u32 v{vU+11}, v{vU+11}, 9, s{S_T1}
s_lshl_b32 s{S_T1}, s{S_T0}, 9
v_lshlrev_b32 v{vKMw}, 7, v{vT2}
v_lshl_add_u32 v{vKMw}, v{vT}, 4, v{vKMw}
v_subrev_u32 v{vKMw}, 128, v{vKMw}
v_add_u32 v{vKMw}, s{S_T1}, v{vKMw}
v_mov_b32 v{vU+3}, {hex(OOB)}
v_cmp_gt_u32 vcc, 8, v{vT}
v_cndmask_b32 v{vKMw}, v{vKMw}, v{vU+3}, vcc
v_lshl_add_u32 v{vU+13}, v{vL}, 3, s{S_T1}
v_and_b32 v{vVr}, 31, v{vL}
v_lshlrev_b32 v{vVr}, 5, v{vVr}
v_lshrrev_b32 v{vU+3}, 5, v{vL}
v_lshl_add_u32 v{vVr}, v{vU+3}, 4, v{vVr}
s_lshl_b32 s{S_T1}, s{S_T0}, 2
v_mov_b32 v{vU+14}, s{S_T1}
v_mov_b32 v{vU+15}, 1
v_lshlrev_b32 v{vU+7}, 4, v{vL}
s_mov_b32 s{S_KV}, 0""")
    h0=e.lab("h0")
    e(f"s_cmp_lg_u32 s{S_W}, 2\ns_cbranch_scc1 {h0}")
    kv_prefetch(e, abort, check_kv)
    e(f"{h0}:")
    hl=e.lab("hl"); e(f"{hl}:")
    gather(e, S_MEM, abort)
    qk_phase(e)
    a=e.lab("a")
    e(f"""s_cmp_lg_u32 s{S_W}, 1\ns_cbranch_scc1 {a}
s_cmp_eq_u32 s{S_STEP}, 0\ns_cbranch_scc1 {a}
s_lshl_b32 s{S_T0}, s{S_STEP}, 9
s_add_u32 s{S_T0}, s{S_T0}, {F_KM-512}
buffer_store_dword v{vU+15}, v{vU+14}, {WS}, s{S_T0} offen sc1
{a}:""")
    v_phase(e)
    zero_acc(e,0,8)
    b=e.lab("b"); c=e.lab("c")
    e(f"s_cmp_lg_u32 s{S_W}, 1\ns_cbranch_scc1 {b}")
    read_x(e)
    for w in range(4): e(f"ds_read_b128 v[{vVq+4*w}:{vVq+4*w+3}], v{vVr} offset:{L_V+1024*w}")
    e("s_waitcnt lgkmcnt(0)")
    sum4(e, vX, 8, 8); sum4(e, vVq, 4, 4)
    cvt_x(e)
    e(f"v_cvt_pk_bf16_f32 v{vVm+4}, v{vVq}, v{vVq+1}\nv_cvt_pk_bf16_f32 v{vVm+5}, v{vVq+2}, v{vVq+3}")
    def km_store():
        e(f"""s_lshl_b32 s{S_T0}, s{S_STEP}, 16
s_add_u32 s{S_T1}, s{S_T0}, {VM}
s_add_u32 s{S_T0}, s{S_T0}, {KM}
buffer_store_dwordx4 v[{vXb}:{vXb+3}], v{vKMw}, {WS}, s{S_T0} offen sc1
buffer_store_dwordx2 v[{vVm+4}:{vVm+5}], v{vU+13}, {WS}, s{S_T1} offen sc1""")
    e(f"s_cmp_lt_u32 s{S_STEP}, {NSTEP-1}\ns_cbranch_scc1 {c}")
    km_store()
    e(f"""s_waitcnt vmcnt(0)
s_lshl_b32 s{S_T0}, s{S_STEP}, 9
s_add_u32 s{S_T0}, s{S_T0}, {F_KM}
buffer_store_dword v{vU+15}, v{vU+14}, {WS}, s{S_T0} offen sc1
s_branch {done}
{b}:
s_cmp_lt_u32 s{S_STEP}, {NSTEP-1}
s_cbranch_scc0 {done}
s_cmp_lg_u32 s{S_W}, 3\ns_cbranch_scc1 {c}
s_add_u32 s{S_T4}, s{S_STEP}, 2
s_and_b32 s{S_T4}, s{S_T4}, 3""")
    poison(e, S_T4, st)
    e(f"s_waitcnt vmcnt(0) lgkmcnt(0)\n{c}:\ns_barrier")
    gather(e, S_O, abort)
    wo_phase(e)
    f=e.lab("f"); g=e.lab("g")
    e(f"s_cmp_lg_u32 s{S_W}, 1\ns_cbranch_scc1 {f}")
    km_store()
    e(f"s_branch {g}\n{f}:\ns_cmp_lg_u32 s{S_W}, 2\ns_cbranch_scc1 {g}\ns_add_u32 s{S_KV}, s{S_STEP}, 1")
    kv_prefetch(e, abort, check_kv)
    e(f"{g}:\ns_add_u32 s{S_STEP}, s{S_STEP}, 1")
    slots(e); zero_acc(e,0,24)
    e(f"s_barrier\ns_branch {hl}")
    e(f"{lead}:")
    if prof:
        for i in range(10): e(f"v_mov_b32 v{230+i}, 0")
    ll=e.lab("ll"); e(f"{ll}:")
    tl_get(e); tl_put(e,True,226)
    stamp(e,prof,0)
    gather(e, S_MEM, abort)
    stamp(e,prof,1)
    qk_phase(e)
    read_x(e)
    e(f"ds_read_b128 v[{vK}:{vK+3}], v{vKr}\nds_read_b128 v[{vK+4}:{vK+7}], v{vKr} offset:128\ns_waitcnt lgkmcnt(6)")
    sum4(e, vX, 8, 8, "s_waitcnt lgkmcnt(2)")
    cvt_x(e)
    X=f"v[{vXb}:{vXb+3}]"
    e(f"""v_mfma_f32_16x16x32_bf16 v[{vS}:{vS+3}], {X}, {X}, 0
s_waitcnt lgkmcnt(0)
v_mfma_f32_16x16x32_bf16 v[{vS+4}:{vS+7}], v[{vK}:{vK+3}], {X}, 0
v_mfma_f32_16x16x32_bf16 v[{vS+8}:{vS+11}], v[{vK+4}:{vK+7}], {X}, 0
ds_read_b128 v[{vVV}:{vVV+3}], v{vVk} offset:2048
ds_read_b128 v[{vVV+4}:{vVV+7}], v{vVk} offset:2304
v_xor_b32 v{vKr}, 4096, v{vKr}
v_xor_b32 v{vVk}, 4096, v{vVk}
buffer_store_dwordx4 v[{vS}:{vS+3}], v{vSCw0}, {WS}, s{S_SC} offen {st}
buffer_store_dwordx4 v[{vS+4}:{vS+7}], v{vSCw}, {WS}, s{S_SC} offen {st}
buffer_store_dwordx4 v[{vS+8}:{vS+11}], v{vSCw}, {WS}, s{S_SC} offen offset:512 {st}""")
    stamp(e,prof,2)
    v_phase(e)
    e(f"s_cmp_lt_u32 s{S_STEP}, {NSTEP-1}\ns_cbranch_scc0 LEADEND_{ll}")
    lp=e.lab("sc"); ok=e.lab("scok")
    for w in range(4): e(f"ds_read_b64 v[{vVq+4*w}:{vVq+4*w+1}], v{vVr} offset:{L_V+1024*w}\nds_read_b64 v[{vVq+4*w+2}:{vVq+4*w+3}], v{vVr} offset:{L_V+1024*w+512}")
    zero_acc(e,0,8)
    e("s_waitcnt lgkmcnt(0)")
    sum4(e, vVq, 4, 4)
    e(f"v_cvt_pk_bf16_f32 v{vVm+4}, v{vVq}, v{vVq+1}\nv_cvt_pk_bf16_f32 v{vVm+6}, v{vVq+2}, v{vVq+3}")
    e(f"{lp}:")
    for c_ in range(4):
        e(f"buffer_load_dwordx4 v[{vC+4*c_}:{vC+4*c_+3}], v{vSCr}, {WS}, s{S_SC} offen offset:{c_*1280} sc1")
        e(f"buffer_load_dword v{vC+16+c_}, v{vSCr0}, {WS}, s{S_SC} offen offset:{c_*1280} sc1")
    e(f"""s_waitcnt vmcnt(0)
v_pk_add_f32 v[{vC}:{vC+1}], v[{vC}:{vC+1}], v[{vC+4}:{vC+5}]
v_pk_add_f32 v[{vC+8}:{vC+9}], v[{vC+8}:{vC+9}], v[{vC+12}:{vC+13}]
v_pk_add_f32 v[{vC+16}:{vC+17}], v[{vC+16}:{vC+17}], v[{vC+18}:{vC+19}]
v_pk_add_f32 v[{vC+2}:{vC+3}], v[{vC+2}:{vC+3}], v[{vC+6}:{vC+7}]
v_pk_add_f32 v[{vC+10}:{vC+11}], v[{vC+10}:{vC+11}], v[{vC+14}:{vC+15}]
v_pk_add_f32 v[{vC}:{vC+1}], v[{vC}:{vC+1}], v[{vC+8}:{vC+9}]
v_add_f32 v{vC+4}, v{vC+16}, v{vC+17}
v_pk_add_f32 v[{vC+2}:{vC+3}], v[{vC+2}:{vC+3}], v[{vC+10}:{vC+11}]
v_cmp_u_f32 vcc, v{vC}, v{vC+4}
v_max3_f32 v{vU}, v{vC}, v{vC+1}, v{vC+4}
s_cbranch_vccz {ok}
s_sub_u32 s{S_BUD}, s{S_BUD}, 1
s_cbranch_scc0 {lp}
s_branch {abort}
{ok}:""")
    stamp(e,prof,3)
    m=vU; t=vU+1
    e(f"""v_max3_f32 v{m}, v{m}, v{vC+2}, v{vC+3}
v_max_f32_dpp v{m}, v{m}, v{m} row_ror:8 row_mask:0xf bank_mask:0xf
v_mov_b32 v{t}, v{m}
v_permlane16_swap_b32 v{t}, v{m}
v_max_f32 v{m}, v{m}, v{t}
v_mov_b32 v{t}, v{m}
v_permlane32_swap_b32 v{t}, v{m}
v_max_f32 v{m}, v{m}, v{t}
v_mul_f32 v{m}, s{S_FL}, v{m}""")
    for i in [4,0,1,2,3]: e(f"v_fma_f32 v{vC+i}, v{vC+i}, s{S_FL}, -v{m}")
    for i in [4,0,1,2,3]: e(f"v_exp_f32 v{vC+i}, v{vC+i}")
    e(f"""v_mov_b32_dpp v{t}, v{vC+4} row_ror:8 row_mask:0xf bank_mask:0xf
v_cvt_pk_bf16_f32 v{vPb}, v{vC}, v{vC+1}
v_cvt_pk_bf16_f32 v{vPb+1}, v{vC+2}, v{vC+3}
v_cvt_pk_bf16_f32 v{vPb+4}, v{vC+4}, v{t}
v_mov_b32_dpp v{vPb+2}, v{vPb} row_ror:8 row_mask:0xf bank_mask:0xf
v_mov_b32_dpp v{vPb+3}, v{vPb+1} row_ror:8 row_mask:0xf bank_mask:0xf
v_mfma_f32_16x16x16_bf16 v[{vO}:{vO+3}], v[{vVm+4}:{vVm+5}], v[{vPb+4}:{vPb+5}], 0
v_pk_add_f32 v[{vC}:{vC+1}], v[{vC}:{vC+1}], v[{vC+2}:{vC+3}]
v_add_f32 v{m}, v{vC}, v{vC+4}
v_mfma_f32_16x16x16_bf16 v[{vO+4}:{vO+7}], v[{vVm+6}:{vVm+7}], v[{vPb+4}:{vPb+5}], 0
v_add_f32 v{m}, v{m}, v{vC+1}
v_mfma_f32_16x16x32_bf16 v[{vO}:{vO+3}], v[{vVV}:{vVV+3}], v[{vPb}:{vPb+3}], v[{vO}:{vO+3}]
v_add_f32_dpp v{m}, v{m}, v{m} row_ror:8 row_mask:0xf bank_mask:0xf
v_mov_b32 v{t}, v{m}
v_mfma_f32_16x16x32_bf16 v[{vO+4}:{vO+7}], v[{vVV+4}:{vVV+7}], v[{vPb}:{vPb+3}], v[{vO+4}:{vO+7}]
v_permlane16_swap_b32 v{t}, v{m}
v_add_f32 v{m}, v{m}, v{t}
v_mov_b32 v{t}, v{m}
v_permlane32_swap_b32 v{t}, v{m}
v_add_f32 v{m}, v{m}, v{t}
v_rcp_f32 v{m}, v{m}""")
    for i in range(8): e(f"v_mul_f32 v{vO+i}, v{vO+i}, v{m}")
    for i in range(4): e(f"v_cvt_pk_bf16_f32 v{vO+i}, v{vO+2*i}, v{vO+2*i+1}")
    e(f"buffer_store_dwordx4 v[{vO}:{vO+3}], v{vOw}, {WS}, s{S_O} offen {st}\ns_barrier")
    stamp(e,prof,4)
    gather(e, S_O, abort)
    stamp(e,prof,5)
    wo_phase(e)
    lp=e.lab("pp"); ok=e.lab("ppok")
    for w in range(4): e(f"ds_read_b128 v[{vX+4*w}:{vX+4*w+3}], v{vWr} offset:{L_WO+2304*w}")
    e("s_waitcnt lgkmcnt(2)")
    sum4(e, vX, 4, 4, "s_waitcnt lgkmcnt(0)")
    e(f"""buffer_store_dwordx4 v[{vX}:{vX+3}], v{vPw}, {WS}, s{S_PART} offen sc1""")
    stamp(e,prof,6)
    zero_acc(e,0,24)
    e(f"{lp}:")
    for x in range(4): e(f"buffer_load_dwordx4 v[{vC+4*x}:{vC+4*x+3}], v{vPr}, {WS}, s{S_PART} offen offset:{x*1024} sc1")
    e(f"""s_waitcnt vmcnt(0)
v_pk_add_f32 v[{vC}:{vC+1}], v[{vC}:{vC+1}], v[{vC+4}:{vC+5}]
v_pk_add_f32 v[{vC+8}:{vC+9}], v[{vC+8}:{vC+9}], v[{vC+12}:{vC+13}]
v_pk_add_f32 v[{vC+2}:{vC+3}], v[{vC+2}:{vC+3}], v[{vC+6}:{vC+7}]
v_pk_add_f32 v[{vC+10}:{vC+11}], v[{vC+10}:{vC+11}], v[{vC+14}:{vC+15}]
v_pk_add_f32 v[{vC}:{vC+1}], v[{vC}:{vC+1}], v[{vC+8}:{vC+9}]
v_pk_add_f32 v[{vC+2}:{vC+3}], v[{vC+2}:{vC+3}], v[{vC+10}:{vC+11}]
v_cmp_u_f32 vcc, v{vC}, v{vC}
v_cvt_pk_bf16_f32 v{vC+4}, v{vC}, v{vC+1}
s_cbranch_vccz {ok}
s_sub_u32 s{S_BUD}, s{S_BUD}, 1
s_cbranch_scc0 {lp}
s_branch {abort}
{ok}:
v_cvt_pk_bf16_f32 v{vC+5}, v{vC+2}, v{vC+3}
buffer_store_dwordx2 v[{vC+4}:{vC+5}], v{vMw}, {WS}, s{S_MEMN} offen {st}
s_barrier""")
    stamp(e,prof,7)
    e(f"s_add_u32 s{S_STEP}, s{S_STEP}, 1")
    slots(e)
    if prof:
        e("s_waitcnt lgkmcnt(0)")
        for i in range(7): e(f"s_sub_u32 s{S_T0}, s{S_PR+2*i+2}, s{S_PR+2*i}\nv_add_u32 v{230+i}, s{S_T0}, v{230+i}")
    e(f"s_branch {ll}\nLEADEND_{ll}:")
    if prof:
        e(f"s_lshl_b32 s{S_T0}, s{S_TEAM}, 5\ns_add_u32 s{S_T0}, s{S_T0}, s{S_RANK}\ns_lshl_b32 s{S_T0}, s{S_T0}, 6\ns_add_u32 s{S_T0}, s{S_T0}, {PROF}")
        e(f"v_mov_b32 v237, s{S_BUD}")
        e(f"buffer_store_dwordx4 v[230:233], v{vZ}, {WS}, s{S_T0} offen\nbuffer_store_dwordx4 v[234:237], v{vZ}, {WS}, s{S_T0} offen offset:16")
    e(f"s_branch {done}")
```

```python
from layout import *
from chain import *
G_SEG=64; G_END=65; G_INB=66; G_FIB=67; G_OUTB=68; G_FOB=69; G_M0=70; G_PEND=73; G_IN=74; G_JOB=75; G_FP=76; G_COL=77; G_TYPE=78; G_X=79; G_NS=80; G_FN=81
gRd=1; gIn=2; gFl=3; gOut=4; gFo=5; gOne=6; gIx=7; gT=8; gF=16; gA0=32; gA1=48; gR=64; gP=96
SA=f"s[{SRD_A}:{SRD_A+3}]"
def wload(e, stride, perm, nrows):
    vB=gT; vq=gT+1; t=gT+2; t2=gT+3
    e(f"""v_lshrrev_b32 v{t}, 2, v0
s_mov_b32 s{S_T0}, {stride}
v_mul_lo_u32 v{vB}, v{t}, s{S_T0}
v_and_b32 v{t2}, 3, v0
v_lshl_add_u32 v{vB}, v{t2}, 4, v{vB}
s_lshl_b32 s{S_T0}, s{S_W}, 6
s_add_u32 s{S_T0}, s{S_T0}, s{G_COL}
v_add_u32 v{vB}, s{S_T0}, v{vB}
s_lshl_b32 s{S_T4}, s{S_W}, 15
v_and_b32 v{t}, 3, v{t}
v_lshrrev_b32 v{vq}, 5, v0
v_lshl_add_u32 v{vq}, v{vq}, {7 if perm=='P' else 2}, v{t}
v_lshlrev_b32 v{vq}, 6, v{vq}
v_lshl_add_u32 v{vq}, v{t2}, 3, v{vq}
v_bfe_u32 v{t}, v0, 4, 1
v_lshl_add_u32 v{vq}, v{t}, 5, v{vq}
v_add_u32 v{vq}, s{S_T4}, v{vq}""")
    nb=(nrows+255)//256
    cnt=[min(256,nrows-256*b)//16 for b in range(nb)]
    def dma(b):
        for i in range(cnt[b]):
            e(f"s_add_u32 m0, s{S_T4}, {(b%2)*16384+i*1024}\ns_mov_b32 s{S_T0}, {(256*b+16*i)*stride}\nbuffer_load_dwordx4 v{vB}, {SA}, s{S_T0} offen lds")
    def tr(b):
        for k in range(cnt[b]):
            ks=16*b+k
            for p in range(2):
                off=(b%2)*16384+((64*p+4*k) if perm=='P' else (16*k+8*p))*64
                e(f"ds_read_b64_tr_b16 a[{4*ks+2*p}:{4*ks+2*p+1}], v{vq} offset:{off}")
    dma(0); dma(1)
    for b in range(nb):
        e(f"s_waitcnt vmcnt({cnt[b+1] if b+1<nb else 0})"); tr(b); e("s_waitcnt lgkmcnt(0)")
        if b+2<nb: dma(b+2)
def poll4(e, vd, va, sreg, abort):
    lp=e.lab("pl"); ok=e.lab("pk")
    e(f"""{lp}:
buffer_load_dwordx4 v[{vd}:{vd+3}], v{va}, {WS}, s{sreg} offen sc1
s_waitcnt vmcnt(0)
v_and_b32 v{vd}, v{vd}, v{vd+1}
v_and_b32 v{vd+2}, v{vd+2}, v{vd+3}
v_and_b32 v{vd}, v{vd}, v{vd+2}
v_cmp_ne_u32 vcc, 1, v{vd}
s_cbranch_vccz {ok}
s_sub_u32 s{S_BUD}, s{S_BUD}, 1
s_cbranch_scc0 {lp}
s_branch {abort}
{ok}:""")
def lane0(e, v, t):
    e(f"v_mov_b32 v{v}, {hex(OOB)}\nv_cmp_eq_u32 vcc, 0, v0\nv_cndmask_b32 v{v}, v{v}, v{t}, vcc")
GP=[False]; OPT=dict(sp=2,pf=30)
def gst(e,i):
    if GP[0]: e(f's_memtime s[{82+2*i}:{83+2*i}]')
def gemm_main(e, swap, epi, KS, in_sh, fi_mul, out_sh, fo_mul, abort, done):
    Q=KS//4; NST=4 if epi=="P" else 2
    grp=[min(4,Q-4*g) for g in range(4)]
    e(f"""v_lshlrev_b32 v{gRd}, 4, v0
s_mul_i32 s{G_M0}, s{S_W}, {Q*1024}
v_add_u32 v{gIn}, s{G_M0}, v{gRd}
v_min_u32 v{gFl}, s{G_FN}, v0
v_lshlrev_b32 v{gFl}, 4, v{gFl}
v_mov_b32 v{gOne}, 0""")
    lane0(e, gFo, gOne)
    e(f"v_mov_b32 v{gOne}, 1")
    if epi=="P":
        e(f"""v_bfe_u32 v{gT}, v0, 2, 3
v_lshlrev_b32 v{gOut}, 16, v{gT}
v_and_b32 v{gT}, 3, v0
v_lshl_add_u32 v{gOut}, v{gT}, 4, v{gOut}
v_lshrrev_b32 v{gT}, 5, v0
v_lshl_add_u32 v{gOut}, v{gT}, 6, v{gOut}
s_lshl_b32 s{S_T0}, s{S_W}, 9
v_add_u32 v{gOut}, s{S_T0}, v{gOut}""")
    else:
        e(f"s_lshl_b32 s{S_T0}, s{S_W}, 11\nv_add_u32 v{gOut}, s{S_T0}, v{gRd}")
    def faddr(d, seg, add):
        e(f"s_mul_i32 s{d}, s{seg}, {fi_mul}\ns_add_u32 s{d}, s{d}, s{G_FIB}")
        if add: e(f"s_add_u32 s{d}, s{d}, {add*fi_mul}")
    def fload(s): e(f"buffer_load_dwordx4 v[{gF}:{gF+3}], v{gFl}, {WS}, s{s} offen sc1")
    def dgroup(g):
        e(f"s_add_u32 m0, s{G_M0}, {g*4096}\ns_add_u32 s{S_T0}, s{G_IN}, {g*4096}")
        for j in range(grp[g]): e(f"buffer_load_dwordx4 v{gIn}, {WS}, s{S_T0} offen offset:{j*1024} sc1 lds")
    if GP[0]:
        for i in range(93,100): e(f"s_mov_b32 s{i}, 0")
    loop=e.lab("gl"); fetch=e.lab("gf"); pb=e.lab("gb")
    e(f"s_mov_b32 s{G_NS}, s{G_SEG}\ns_barrier\n{fetch}:")
    faddr(S_T1, G_NS, 0); poll4(e, gF, gFl, S_T1, abort)
    e(f"s_lshl_b32 s{G_IN}, s{G_NS}, {in_sh}\ns_add_u32 s{G_IN}, s{G_IN}, s{G_INB}")
    for g in range(4): dgroup(g)
    e(f"s_add_u32 s{S_T1}, s{S_T1}, {fi_mul}"); fload(S_T1)
    e(f"s_mov_b32 s{G_PEND}, 0\ns_waitcnt vmcnt(0)\n{loop}:")
    e(f"""s_barrier
s_mov_b32 s{G_SEG}, s{G_NS}
s_add_u32 s{G_NS}, s{G_SEG}, 1
s_xor_b32 s{G_M0}, s{G_M0}, 65536""")
    tl_get(e); gst(e,0)
    D=6; SP=OPT['sp']; PF=OPT['pf']
    def rd(ks): e(f"ds_read_b128 v[{gR+4*(ks%8)}:{gR+4*(ks%8)+3}], v{gRd} offset:{ks*1024}")
    for ks in range(D): rd(ks)
    e(f"""v_and_b32 v{gF}, v{gF}, v{gF+1}
v_and_b32 v{gF+2}, v{gF+2}, v{gF+3}
v_and_b32 v{gF}, v{gF}, v{gF+2}
v_cmp_ne_u32 vcc, 1, v{gF}
s_lshl_b32 s{G_IN}, s{G_NS}, {in_sh}
s_add_u32 s{G_IN}, s{G_IN}, s{G_INB}
s_cmp_lt_u32 s{G_NS}, s{G_END}
s_cselect_b64 vcc, vcc, -1
s_cmp_eq_u64 vcc, 0
s_cselect_b32 s{S_T0}, 0, {hex(OOB)}
v_add_u32 v{gIx}, s{S_T0}, v{gIn}""")
    for ks in range(KS):
        if ks+D<KS: rd(ks+D)
        e(f"s_waitcnt lgkmcnt({min(D,KS-1-ks)})")
        acc=gA0 if ks%2==0 else gA1
        A=f"a[{4*ks}:{4*ks+3}]"; B=f"v[{gR+4*(ks%8)}:{gR+4*(ks%8)+3}]"
        if swap: A,B=B,A
        e(f"v_mfma_f32_32x32x16_bf16 v[{acc}:{acc+15}], {A}, {B}, {'0' if ks<2 else f'v[{acc}:{acc+15}]'}")
        if ks==16: gst(e,1)
        if ks==34: gst(e,2)
        if ks==KS-1: gst(e,3)
        if ks%SP==SP-1 and ks//SP<Q:
            i=ks//SP
            if i%4==0: e(f"s_add_u32 m0, s{G_M0}, {i*1024}\ns_add_u32 s{S_T3}, s{G_IN}, {i*1024}")
            e(f"buffer_load_dwordx4 v{gIx}, {WS}, s{S_T3} offen offset:{(i%4)*1024} sc1 lds")
        if ks==PF:
            l=e.lab("sp"); l2=e.lab("sq")
            e(f"""s_cmp_eq_u32 s{G_PEND}, 0
s_cbranch_scc1 {l}
s_waitcnt vmcnt({min(Q,(PF+1)//SP)})
buffer_store_dword v{gOne}, v{gFo}, {WS}, s{G_FP} offen sc1
{l}:""")
        if ks==KS-16:
            faddr(S_T1, G_NS, 1); fload(S_T1)
            e(f"""s_lshl_b32 s{S_T2}, s{G_SEG}, {out_sh}
s_add_u32 s{S_T2}, s{S_T2}, s{G_OUTB}
s_mul_i32 s{G_FP}, s{G_SEG}, {fo_mul}
s_add_u32 s{G_FP}, s{G_FP}, s{G_FOB}""")
    e(f"v_xor_b32 v{gRd}, 65536, v{gRd}")
    tl_put(e)
    for i in range(0,16,2): e(f"v_pk_add_f32 v[{gA0+i}:{gA0+i+1}], v[{gA0+i}:{gA0+i+1}], v[{gA1+i}:{gA1+i+1}]")
    if epi=="P":
        for g in range(4): e(f"buffer_store_dwordx4 v[{gA0+4*g}:{gA0+4*g+3}], v{gOut}, {WS}, s{S_T2} offen offset:{g*128} sc1")
    else:
        if epi=="R":
            for i in range(16): e(f"v_max_f32 v{gA0+i}, 0, v{gA0+i}")
        for i in range(8): e(f"v_cvt_pk_bf16_f32 v{gP+i}, v{gA0+2*i}, v{gA0+2*i+1}")
        for ab in range(2): e(f"buffer_store_dwordx4 v[{gP+4*ab}:{gP+4*ab+3}], v{gOut}, {WS}, s{S_T2} offen offset:{ab*1024} sc1")
    e(f"""s_cbranch_vccnz {pb}
s_mov_b32 s{G_PEND}, 1
s_waitcnt vmcnt({NST})""")
    if GP[0]:
        gst(e,4); e("s_waitcnt lgkmcnt(0)")
        for i in range(4): e(f"s_sub_u32 s{S_T0}, s{84+2*i}, s{82+2*i}\ns_add_u32 s{94+i}, s{94+i}, s{S_T0}")
        e(f"s_add_u32 s98, s98, 1\ns_sub_u32 s{S_T0}, s82, s99\ns_mov_b32 s99, s90\ns_cmp_lt_u32 s{S_T0}, 20000\ns_cselect_b32 s{S_T0}, s{S_T0}, 0\ns_add_u32 s93, s93, s{S_T0}")
    e(f"""s_branch {loop}
{pb}:
s_waitcnt vmcnt(0)
buffer_store_dword v{gOne}, v{gFo}, {WS}, s{G_FP} offen sc1
s_cmp_lt_u32 s{G_NS}, s{G_END}
s_cbranch_scc1 {fetch}""")
    if GP[0]:
        for i in range(93,99): e(f"s_mov_b32 s4, s{i}"); tl_put(e,False)
    e(f"""s_barrier
s_branch {done}""")
```

```python
from layout import *
from chain import *
from gemm import *
L_MISC=131072
L_TK=L_MISC; L_MOD=L_MISC+64; L_ST=L_MISC+1024
LOG2E="0x3fb8aa3b"
def rnd(e, a, t):
    e(f"v_cvt_pk_bf16_f32 v{t}, v{a}, v{a+1}\nv_lshlrev_b32 v{a}, 16, v{t}\nv_and_b32 v{a+1}, 0xffff0000, v{t}")
def unpack(e, d, s, n):
    for i in range(n): e(f"v_lshlrev_b32 v{d+2*i}, 16, v{s+i}\nv_and_b32 v{d+2*i+1}, 0xffff0000, v{s+i}")
def pk(op, d, a, b): return f"v_pk_{op}_f32 v[{d}:{d+1}], v[{a}:{a+1}], v[{b}:{b+1}]"
def wred(e, regs, t):
    for r in regs: e(f"v_add_f32_dpp v{r}, v{r}, v{r} row_ror:4 row_mask:0xf bank_mask:0xf")
    for r in regs: e(f"v_add_f32_dpp v{r}, v{r}, v{r} row_ror:8 row_mask:0xf bank_mask:0xf")
    for sw in ("16","32"):
        for i,r in enumerate(regs): e(f"v_mov_b32 v{t+i}, v{r}")
        for i,r in enumerate(regs): e(f"v_permlane{sw}_swap_b32 v{t+i}, v{r}")
        for i,r in enumerate(regs): e(f"v_add_f32 v{r}, v{r}, v{t+i}")
def ln_norm(e, Xs, T, vW, vR, offs):
    n=len(Xs)
    for g,X in enumerate(Xs):
        t=T+28*g
        for i in range(0,8,2): e(pk("add",t+i,X+i,X+8+i))
        e(pk("add",t,t,t+4)); e(pk("add",t+2,t+2,t+6)); e(pk("add",t,t,t+2))
        e(f"v_add_f32 v{t+16}, v{t}, v{t+1}")
    for g in range(n): wred(e,[T+28*g+16],T+28*g+18)
    for g,X in enumerate(Xs):
        t=T+28*g
        e(f"v_mul_f32 v{t+16}, 0x3b800000, v{t+16}\nv_mov_b32 v{t+17}, v{t+16}")
        for i in range(0,16,2): e(f"v_pk_add_f32 v[{t+i}:{t+i+1}], v[{X+i}:{X+i+1}], v[{t+16}:{t+17}] neg_lo:[0,1] neg_hi:[0,1]")
        e(pk("mul",t,t,t))
        for i in range(2,16,2): e(f"v_pk_fma_f32 v[{t}:{t+1}], v[{t+i}:{t+i+1}], v[{t+i}:{t+i+1}], v[{t}:{t+1}]")
        e(f"v_add_f32 v{t+17}, v{t}, v{t+1}")
    for g in range(n): wred(e,[T+28*g+17],T+28*g+18)
    e("s_mov_b64 exec, 15")
    for g in range(n): e(f"ds_write_b64 v{vW}, v[{T+28*g+16}:{T+28*g+17}] offset:{offs[g]}")
    e("s_mov_b64 exec, -1\ns_waitcnt lgkmcnt(0)\ns_barrier")
    for g in range(n):
        t=T+28*g
        e(f"ds_read_b128 v[{t}:{t+3}], v{vR} offset:{offs[g]}\nds_read_b128 v[{t+4}:{t+7}], v{vR} offset:{offs[g]+16}")
    e("s_waitcnt lgkmcnt(0)")
    for g,X in enumerate(Xs):
        t=T+28*g
        e(pk("add",t+8,t,t+2)); e(pk("add",t+10,t+4,t+6)); e(pk("add",t+8,t+8,t+10))
        e(f"v_mul_f32 v{t+8}, 0x3e800000, v{t+8}")
        for k in range(4): e(f"v_sub_f32 v{t+2*k}, v{t+2*k}, v{t+8}")
        e(f"""v_mul_f32 v{t}, v{t}, v{t}
v_fmac_f32 v{t}, v{t+2}, v{t+2}
v_fmac_f32 v{t}, v{t+4}, v{t+4}
v_fmac_f32 v{t}, v{t+6}, v{t+6}
v_mul_f32 v{t+9}, 0x3a800000, v{t+9}
v_fmac_f32 v{t+9}, 0x3e800000, v{t}""")
        rnd(e,t+8,t+10)
        e(f"""v_add_f32 v{t+9}, 0x3727c5ac, v{t+9}
v_cvt_pk_bf16_f32 v{t+9}, v{t+9}, v{t+9}
v_and_b32 v{t+9}, 0xffff0000, v{t+9}
v_sqrt_f32 v{t+9}, v{t+9}
v_cvt_pk_bf16_f32 v{t+9}, v{t+9}, v{t+9}
v_and_b32 v{t+9}, 0xffff0000, v{t+9}
v_rcp_f32 v{t+10}, v{t+9}
v_mov_b32 v{t+9}, v{t+8}
v_mov_b32 v{t+11}, v{t+10}""")
        for i in range(0,16,2): e(f"v_pk_add_f32 v[{X+i}:{X+i+1}], v[{X+i}:{X+i+1}], v[{t+8}:{t+9}] neg_lo:[0,1] neg_hi:[0,1]")
        for i in range(0,16,2): rnd(e,X+i,t+12+(i//2)%4)
        for i in range(0,16,2): e(pk("mul",X+i,X+i,t+10))
def modulate(e, X, OPC, SH, P, t):
    for i in range(0,16,2): rnd(e,X+i,t+(i//2)%4)
    for i in range(0,16,2): e(pk("mul",X+i,X+i,OPC+i))
    for i in range(0,16,2): rnd(e,X+i,t+(i//2)%4)
    for i in range(0,16,2): e(pk("add",X+i,X+i,SH+i))
    for i in range(8): e(f"v_cvt_pk_bf16_f32 v{P+i}, v{X+2*i}, v{X+2*i+1}")
def modload(e, d, vM, chunk):
    e(f"s_mov_b32 s{S_T0}, {MOD+chunk*4096}")
    for i in range(4): e(f"buffer_load_dwordx4 v[{d+4*i}:{d+4*i+3}], v{vM}, {WS}, s{S_T0} offen offset:{i*256} sc1")
def oneplus(e, d, t):
    for i in range(16): e(f"v_add_f32 v{d+i}, 1.0, v{d+i}")
    for i in range(0,16,2): rnd(e,d+i,t+(i//2)%4)
def red_lanes(e, vM, vH, vX, vW, vR, t):
    e(f"""v_lshrrev_b32 v{t}, 2, v0
v_and_b32 v{t+1}, 3, v0
s_lshl_b32 s{S_T0}, s{S_W}, 10
v_lshl_add_u32 v{vM}, v{t}, 4, s{S_T0}
s_lshl_b32 s{S_T0}, s{S_W}, 14
v_lshl_add_u32 v{vH}, v{t}, 10, s{S_T0}
v_lshl_add_u32 v{vH}, v{t+1}, 4, v{vH}
s_lshl_b32 s{S_T0}, s{S_W}, 9
v_lshl_add_u32 v{vX}, v{t}, 3, s{S_T0}
v_lshl_add_u32 v{vX}, v{t+1}, 11, v{vX}
v_lshlrev_b32 v{vR}, 5, v{t+1}
v_add_u32 v{vR}, {L_ST}, v{vR}
s_lshl_b32 s{S_T0}, s{S_W}, 3
v_add_u32 v{vW}, s{S_T0}, v{vR}""")
SB=f"s[{SRD_B}:{SRD_B+3}]"
pW=176; pC=44; pAcc=60; pT=68; pX=96; pN=240; pM=228; pH=229
def pro_loads(e):
    srd(e, SRD_A, P_WMOD, 1024*12288); srd(e, SRD_B, P_C, 2048)
    e(f"""v_lshrrev_b32 v{pT}, 2, v0
v_and_b32 v{pT+1}, 3, v0
s_lshl_b32 s{S_T0}, s{S_W}, 9
v_lshl_add_u32 v{pT+2}, v{pT}, 1, s{S_T0}""")
    for i in range(16): e(f"buffer_load_ushort v{pC+i}, v{pT+2}, {SB}, 0 offen offset:{i*32}")
    e(f"""s_mul_i32 s{S_T0}, s{S_W}, {256*12288}
s_cmp_lt_u32 s2, 192
s_cselect_b32 s{S_T0}, s{S_T0}, {hex(OOB)}
v_mul_u32_u24 v{pT+3}, 12288, v{pT}
v_lshl_add_u32 v{pT+3}, v{pT+1}, 4, v{pT+3}
v_add_u32 v{pT+3}, s{S_T0}, v{pT+3}
s_lshl_b32 s{S_T0}, s2, 6""")
    for i in range(16):
        e(f"buffer_load_dwordx4 v[{pW+4*i}:{pW+4*i+3}], v{pT+3}, {SA}, s{S_T0} offen")
        if i<15: e(f"s_add_u32 s{S_T0}, s{S_T0}, {16*12288}")
    srd(e, SRD_B, P_X, 2048*2048)
    red_lanes(e, pT+4, pT+5, pT+6, pT+7, pT+8, pT)
    e(f"s_lshl_b32 s{S_T0}, s2, 14\ns_add_u32 s{S_T1}, s{S_T0}, 8192")
    for g in range(2):
        for i in range(4): e(f"buffer_load_dwordx2 v[{pN+8*g+2*i}:{pN+8*g+2*i+1}], v{pT+6}, {SB}, s{S_T0+g} offen offset:{i*128}")
def pro_mod(e):
    l=e.lab("nomod"); l2=e.lab("nm2")
    e(f"s_cmp_ge_u32 s2, 192\ns_cbranch_scc1 {l}\ns_waitcnt vmcnt(24)")
    t=pX
    for i in range(16): e(f"v_lshlrev_b32 v{pC+i}, 16, v{pC+i}\nv_mul_f32 v{t+i}, 0xbfb8aa3b, v{pC+i}")
    for i in range(16): e(f"v_exp_f32 v{t+i}, v{t+i}")
    for i in range(16): e(f"v_add_f32 v{t+i}, 1.0, v{t+i}")
    for i in range(16): e(f"v_rcp_f32 v{t+i}, v{t+i}")
    for i in range(16): e(f"v_mul_f32 v{pC+i}, v{pC+i}, v{t+i}")
    for i in range(0,16,2): rnd(e,pC+i,t+i)
    for i in range(16):
        e(f"s_waitcnt vmcnt({23-i})")
        unpack(e,t+8*(i%2),pW+4*i,4)
        for j in range(8):
            if i==0: e(f"v_mul_f32 v{pAcc+j}, v{t+j}, v{pC}")
            else: e(f"v_fmac_f32 v{pAcc+j}, v{t+8*(i%2)+j}, v{pC+i}")
    wred(e,[pAcc+j for j in range(8)],t)
    e(f"""v_lshlrev_b32 v{t}, 5, v0
s_lshl_b32 s{S_T0}, s{S_W}, 7
s_add_u32 s{S_T0}, s{S_T0}, {L_MOD}
v_add_u32 v{t}, s{S_T0}, v{t}
s_mov_b64 exec, 15
ds_write_b128 v{t}, v[{pAcc}:{pAcc+3}]
ds_write_b128 v{t}, v[{pAcc+4}:{pAcc+7}] offset:16
s_mov_b64 exec, -1
s_waitcnt lgkmcnt(0)
s_barrier
s_cmp_lg_u32 s{S_W}, 0
s_cbranch_scc1 {l}
v_and_b32 v{t+1}, 31, v0
v_lshlrev_b32 v{t+1}, 2, v{t+1}
v_add_u32 v{t}, {L_MOD}, v{t+1}""")
    for w in range(4): e(f"ds_read_b32 v{t+2+w}, v{t} offset:{w*128}")
    e(f"""s_lshl_b32 s{S_T0}, s2, 7
s_add_u32 s{S_T0}, s{S_T0}, {MOD}
s_waitcnt lgkmcnt(0)
v_add_f32 v{t+2}, v{t+2}, v{t+3}
v_add_f32 v{t+4}, v{t+4}, v{t+5}
v_add_f32 v{t+2}, v{t+2}, v{t+4}
v_cvt_pk_bf16_f32 v{t+2}, v{t+2}, v{t+2}
v_and_b32 v{t+2}, 0xffff0000, v{t+2}
buffer_store_dword v{t+2}, v{t+1}, {WS}, s{S_T0} offen sc1
{l}:""")
def pro_ln(e):
    e(f"s_waitcnt vmcnt(0)\nv_mov_b32 v{pM}, v{pT+4}\nv_mov_b32 v{pH}, v{pT+5}")
    unpack(e,pX,pN,16)
    ln_norm(e,[pX,pX+16],pW-8,pT+7,pT+8,[0,128])
    for i in range(16): e(f"v_cvt_pk_bf16_f32 v{pN+i}, v{pX+2*i}, v{pX+2*i+1}")
def pro_fin(e):
    O=172; Sh=188; X=204; t=220
    modload(e,O,pM,1); modload(e,Sh,pM,0)
    e(f"""s_lshr_b32 s{S_T1}, s2, 2
s_lshl_b32 s{S_T1}, s{S_T1}, 16
s_and_b32 s{S_T2}, s2, 3
s_lshl_b32 s{S_T2}, s{S_T2}, 7
s_add_u32 s{S_T1}, s{S_T1}, s{S_T2}
s_add_u32 s{S_T1}, s{S_T1}, {H1}
s_waitcnt vmcnt(4)""")
    oneplus(e,O,t)
    e("s_waitcnt vmcnt(0)")
    for g in range(2):
        unpack(e,X,pN+8*g,8)
        for i in range(0,16,2): e(pk("mul",X+i,X+i,O+i))
        for i in range(0,16,2): rnd(e,X+i,t+(i//2)%4)
        for i in range(0,16,2): e(pk("add",X+i,X+i,Sh+i))
        for i in range(8): e(f"v_cvt_pk_bf16_f32 v{pN+8*g+i}, v{X+2*i}, v{X+2*i+1}")
        for ab in range(2): e(f"buffer_store_dwordx4 v[{pN+8*g+4*ab}:{pN+8*g+4*ab+3}], v{pH}, {WS}, s{S_T1} offen offset:{ab*512+g*64} sc1")
    e(f"""s_lshl_b32 s{S_T1}, s2, 4
s_lshl_b32 s{S_T2}, s{S_W}, 2
s_add_u32 s{S_T1}, s{S_T1}, s{S_T2}
s_add_u32 s{S_T1}, s{S_T1}, {F_H1}
v_mov_b32 v{t+1}, 0""")
    lane0(e,t,t+1)
    e(f"v_mov_b32 v{t+1}, 1\ns_waitcnt vmcnt(0)\nbuffer_store_dword v{t+1}, v{t}, {WS}, s{S_T1} offen sc1")
R_TG=66; R_P=67; R_A=68; R_B=69; R_FP=74
def feval(e,F):
    e(f"v_and_b32 v{F}, v{F}, v{F+1}\nv_and_b32 v{F+2}, v{F+2}, v{F+3}\nv_and_b32 v{F}, v{F}, v{F+2}\nv_cmp_ne_u32 vcc, 1, v{F}")
def red(e, first, abort, done):
    vM=1;vH=2;vX=3;vW=4;vR=5;vP=6;vFl=7;vFo=8;vOne=9;vQ=10;t=12;F=16
    G=20; O=36; Sh=52; PS=[68,132]; XS=[196,204]; X=212; T=228; PK=248
    FP=F_P1 if first else F_P2; NX=4 if first else 2
    red_lanes(e,vM,vH,vX,vW,vR,t)
    e(f"""s_lshl_b32 s{S_T0}, s{S_W}, 12
v_lshl_add_u32 v{vP}, v0, 4, s{S_T0}
s_lshl_b32 s{S_T0}, s{S_W}, 11
v_lshl_add_u32 v{vQ}, v0, 4, s{S_T0}
v_and_b32 v{vFl}, 31, v0
v_lshlrev_b32 v{vFl}, 4, v{vFl}
v_mov_b32 v{vOne}, 0""")
    lane0(e,vFo,vOne); e(f"v_mov_b32 v{vOne}, 1")
    if first:
        modload(e,G,vM,2); modload(e,O,vM,4); modload(e,Sh,vM,3)
        srd(e, SRD_B, P_X, 2048*2048)
        e("s_waitcnt vmcnt(0)"); oneplus(e,O,t)
    else:
        modload(e,G,vM,5); srd(e, SRD_B, P_OUT, 2048*2048)
    e(f"s_lshl_b32 s{R_TG}, s{R_TG}, 13\ns_mov_b32 s{G_NS}, 0")
    def loads(k):
        P=PS[k]; XR=XS[k]
        e(f"""s_lshl_b32 s{S_T2}, s{G_NS}, 16
s_add_u32 s{S_T2}, s{S_T2}, s{R_TG}
s_lshl_b32 s{R_P}, s{S_T2}, 3
s_add_u32 s{R_P}, s{R_P}, {P1 if first else P2}""")
        for kc in range(4):
            for i in range(4): e(f"buffer_load_dwordx4 v[{P+16*kc+4*i}:{P+16*kc+4*i+3}], v{vP}, {WS}, s{R_P} offen offset:{i*1024} sc1")
            if kc<3: e(f"s_add_u32 s{R_P}, s{R_P}, 16384")
        if first:
            for i in range(4): e(f"buffer_load_dwordx2 v[{XR+2*i}:{XR+2*i+1}], v{vX}, {SB}, s{S_T2} offen offset:{i*128}")
        else:
            e(f"s_add_u32 s{S_T2}, s{S_T2}, {X1}")
            for ab in range(2): e(f"buffer_load_dwordx4 v[{XR+4*ab}:{XR+4*ab+3}], v{vQ}, {WS}, s{S_T2} offen offset:{ab*1024} sc1")
        e(f"s_lshl_b32 s{S_T1}, s{G_NS}, 9\ns_add_u32 s{S_T1}, s{S_T1}, {FP+512}\nbuffer_load_dwordx4 v[{F}:{F+3}], v{vFl}, {WS}, s{S_T1} offen sc1")
    top=[e.lab("rt"),e.lab("rt")]; fet=[e.lab("rf"),e.lab("rf")]
    for k in range(2):
        P=PS[k]; XR=XS[k]
        e(f"{fet[k]}:\ns_lshl_b32 s{S_T1}, s{G_NS}, 9\ns_add_u32 s{S_T1}, s{S_T1}, {FP}")
        poll4(e,F,vFl,S_T1,abort); loads(k)
        e(f"s_mov_b32 s{G_PEND}, 0\ns_waitcnt vmcnt(0)\n{top[k]}:\ns_mov_b32 s{G_SEG}, s{G_NS}\ns_add_u32 s{G_NS}, s{G_NS}, 1")
        feval(e,F)
        sk=e.lab("rs")
        e(f"""s_lshl_b32 s{R_A}, s{G_SEG}, 16
s_add_u32 s{R_A}, s{R_A}, s{R_TG}
s_cmp_lt_u32 s{G_NS}, 64
s_cselect_b64 vcc, vcc, -1
s_cbranch_vccnz {sk}""")
        loads(1-k); e(f"{sk}:")
        unpack(e,X,XR,8)
        for i in range(0,16,2): e(pk("add",P+i,P+i,P+16+i))
        for i in range(0,16,2): e(pk("add",P+32+i,P+32+i,P+48+i))
        for i in range(0,16,2): e(pk("add",P+i,P+i,P+32+i))
        for i in range(0,16,2): rnd(e,P+i,t+(i//2)%4)
        for i in range(0,16,2): e(pk("mul",P+i,P+i,G+i))
        for i in range(0,16,2): rnd(e,P+i,t+(i//2)%4)
        for i in range(0,16,2): e(pk("add",X+i,X+i,P+i))
        for i in range(8): e(f"v_cvt_pk_bf16_f32 v{XR+i}, v{X+2*i}, v{X+2*i+1}")
        if first:
            unpack(e,X,XR,8)
            ln_norm(e,[X],T,vW,vR,[0])
            l=e.lab("rp"); l2=e.lab("rq")
            e(f"""s_cmp_eq_u32 s{G_PEND}, 0
s_cbranch_scc1 {l}
s_waitcnt vmcnt({17+NX})
s_cbranch_vccz {l2}
s_waitcnt vmcnt(0)
{l2}:
buffer_store_dword v{vOne}, v{vFo}, {WS}, s{R_FP} offen sc1
{l}:
s_add_u32 s{R_B}, s{R_A}, {X1}""")
            for ab in range(2): e(f"buffer_store_dwordx4 v[{XR+4*ab}:{XR+4*ab+3}], v{vQ}, {WS}, s{R_B} offen offset:{ab*1024} sc1")
            e(f"v_xor_b32 v{vW}, 128, v{vW}\nv_xor_b32 v{vR}, 128, v{vR}")
            modulate(e,X,O,Sh,PK,t)
            e(f"""s_lshl_b32 s{S_T1}, s{G_SEG}, 16
s_lshr_b32 s{S_T0}, s{R_TG}, 7
s_add_u32 s{S_T1}, s{S_T1}, s{S_T0}
s_add_u32 s{S_T1}, s{S_T1}, {H2}""")
            for ab in range(2): e(f"buffer_store_dwordx4 v[{PK+4*ab}:{PK+4*ab+3}], v{vH}, {WS}, s{S_T1} offen offset:{ab*512} sc1")
            e(f"""s_lshl_b32 s{R_FP}, s{G_SEG}, 7
s_lshr_b32 s{S_T0}, s{R_TG}, 9
s_add_u32 s{R_FP}, s{R_FP}, s{S_T0}
s_lshl_b32 s{S_T0}, s{S_W}, 2
s_add_u32 s{R_FP}, s{R_FP}, s{S_T0}
s_add_u32 s{R_FP}, s{R_FP}, {F_H2}""")
        else:
            for i in range(4): e(f"buffer_store_dwordx2 v[{XR+2*i}:{XR+2*i+1}], v{vX}, {SB}, s{R_A} offen offset:{i*128}")
        tl(e)
        pb=e.lab("rb")
        e(f"s_cbranch_vccnz {pb}\ns_mov_b32 s{G_PEND}, 1\ns_waitcnt vmcnt({4+(1 if TL[0] else 0)})\ns_branch {top[1-k]}\n{pb}:")
        if first: e(f"s_waitcnt vmcnt(0)\nbuffer_store_dword v{vOne}, v{vFo}, {WS}, s{R_FP} offen sc1")
        e(f"s_cmp_lt_u32 s{G_NS}, 64\ns_cbranch_scc0 {done}")
        if k==1: e(f"s_branch {fet[0]}")
A_H=65; A_SC=66; A_MK=68
def att(e, abort, done):
    vA=1;vKM=2;vVM=3;vF1=4;vF2=5;vFo=6;vOne=7;t=8;F=16;Pb=20;m=30;F2=96
    KMr=128;VMr=160;S=168;SM=184;O=32
    e(f"""s_lshl_b32 s{S_T0}, s{A_H}, 13
v_lshl_add_u32 v{vA}, v0, 4, s{S_T0}
v_lshrrev_b32 v{t}, 5, v0
v_and_b32 v{t+1}, 7, v0
s_lshl_b32 s{S_T0}, s{A_H}, 11
v_lshl_add_u32 v{vKM}, v{t}, 7, s{S_T0}
v_lshl_add_u32 v{vKM}, v{t+1}, 4, v{vKM}
v_lshl_add_u32 v{vVM}, v0, 3, s{S_T0}
s_lshl_b32 s{S_T0}, s{A_H}, 4
v_mov_b32 v{vF2}, s{S_T0}
v_min_u32 v{vF1}, 2, v0
v_lshl_add_u32 v{vF1}, v{vF1}, 9, s{S_T0}
v_and_b32 v{t+1}, 31, v0
v_lshlrev_b32 v{t}, 2, v{t}
v_sub_u32 v{t}, v{t+1}, v{t}
s_lshl_b32 s{S_T0}, s{A_H}, 2
v_mov_b32 v{vOne}, s{S_T0}""")
    lane0(e,vFo,vOne)
    e(f"v_mov_b32 v{vOne}, 1\ns_mov_b32 s{A_SC}, 0x3db504f3\ns_mov_b32 s{A_SC+1}, 0x3db504f3")
    for r in range(16): e(f"v_cmp_gt_i32 s[{A_MK+2*r}:{A_MK+2*r+1}], {8*(r//4)+r%4}, v{t}")
    def qkv(k,add):
        e(f"s_lshl_b32 s{S_T3}, s{G_SEG}, 18")
        for n,base in enumerate((QB,KB,VB)):
            reg=96*k+32*n
            for hf in range(2):
                e(f"s_add_u32 s{S_T0}, s{S_T3}, {base+hf*4096+(add<<18)}")
                for j in range(4): e(f"buffer_load_dwordx4 a[{reg+16*hf+4*j}:{reg+16*hf+4*j+3}], v{vA}, {WS}, s{S_T0} offen offset:{j*1024} sc1")
        e(f"""s_mul_i32 s{S_T0}, s{G_SEG}, 1536
s_add_u32 s{S_T0}, s{S_T0}, {F_KV+1536*(add+2)}
buffer_load_dwordx4 v[{F}:{F+3}], v{vF1}, {WS}, s{S_T0} offen sc1
s_lshl_b32 s{S_T0}, s{G_SEG}, 9
s_add_u32 s{S_T0}, s{S_T0}, {F_KM+512*add}
buffer_load_dwordx4 v[{F2}:{F2+3}], v{vF2}, {WS}, s{S_T0} offen sc1""")
    e(f"s_mul_i32 s{S_T1}, s{G_SEG}, 1536\ns_add_u32 s{S_T1}, s{S_T1}, {F_KV}")
    poll4(e,F,vF1,S_T1,abort); qkv(0,0); e("s_waitcnt vmcnt(0)")
    def scale(b,n):
        for i in range(0,n,2): rnd(e,b+i,t+(i//2)%4)
        for i in range(0,n,2): e(f"v_pk_mul_f32 v[{b+i}:{b+i+1}], v[{b+i}:{b+i+1}], s[{A_SC}:{A_SC+1}]")
        for i in range(0,n,2): rnd(e,b+i,t+(i//2)%4)
    lp=e.lab("al"); e(f"{lp}:")
    for st in range(2):
        Q=96*st; K=Q+32; V=Q+64
        for k in range(8): e(f"v_mfma_f32_32x32x16_bf16 v[{S}:{S+15}], a[{K+4*k}:{K+4*k+3}], a[{Q+4*k}:{Q+4*k+3}], {'0' if k==0 else f'v[{S}:{S+15}]'}")
        l1=e.lab("a1"); l2=e.lab("a2")
        feval(e,F2)
        e(f"s_lshl_b32 s{S_T1}, s{G_SEG}, 9\ns_add_u32 s{S_T1}, s{S_T1}, {F_KM}\ns_cbranch_vccz {l1}")
        poll4(e,F2,vF2,S_T1,abort)
        e(f"{l1}:\ns_lshl_b32 s{S_T0}, s{G_SEG}, 16\ns_add_u32 s{S_T1}, s{S_T0}, {VM}\ns_add_u32 s{S_T0}, s{S_T0}, {KM}")
        for k in range(8): e(f"buffer_load_dwordx4 v[{KMr+4*k}:{KMr+4*k+3}], v{vKM}, {WS}, s{S_T0} offen offset:{k*256} sc1")
        for c in range(4): e(f"buffer_load_dwordx2 v[{VMr+2*c}:{VMr+2*c+1}], v{vVM}, {WS}, s{S_T1} offen offset:{c*512} sc1")
        feval(e,F)
        e(f"""s_cbranch_vccz {l2}
s_cmp_ge_u32 s{G_SEG}, 62
s_cbranch_scc1 {l2}
s_mul_i32 s{S_T1}, s{G_SEG}, 1536
s_add_u32 s{S_T1}, s{S_T1}, {F_KV+2*1536}""")
        poll4(e,F,vF1,S_T1,abort)
        e(f"{l2}:"); qkv(1-st,2)
        scale(S,16)
        e(f"v_mov_b32 v{m+1}, 0xce6e6b28")
        for r in range(16): e(f"v_cndmask_b32 v{S+r}, v{S+r}, v{m+1}, s[{A_MK+2*r}:{A_MK+2*r+1}]")
        e(f"v_max3_f32 v{m}, v{S}, v{S+1}, v{S+2}")
        for r in range(3,15,2): e(f"v_max3_f32 v{m}, v{m}, v{S+r}, v{S+r+1}")
        e(f"v_max_f32 v{m}, v{m}, v{S+15}")
        for k in range(8):
            e(f"s_waitcnt vmcnt({26+11-k})\nv_mfma_f32_32x32x16_bf16 v[{SM}:{SM+15}], v[{KMr+4*k}:{KMr+4*k+3}], a[{Q+4*k}:{Q+4*k+3}], {'0' if k==0 else f'v[{SM}:{SM+15}]'}")
        scale(SM,4)
        e(f"""v_max3_f32 v{m}, v{m}, v{SM}, v{SM+1}
v_max3_f32 v{m}, v{m}, v{SM+2}, v{SM+3}
v_mov_b32 v{m+1}, v{m}
v_permlane32_swap_b32 v{m+1}, v{m}
v_max_f32 v{m}, v{m}, v{m+1}
v_mul_f32 v{m}, {LOG2E}, v{m}
s_mov_b32 s{S_T0}, {LOG2E}""")
        for r in range(20): e(f"v_fma_f32 v{S+r}, v{S+r}, s{S_T0}, -v{m}")
        for r in range(20): e(f"v_exp_f32 v{S+r}, v{S+r}")
        e(pk("add",t,S,S+2)); e(pk("add",t+2,S+4,S+6))
        for i in range(8,20,4): e(pk("add",t,t,S+i)); e(pk("add",t+2,t+2,S+i+2))
        e(pk("add",t,t,t+2))
        e(f"""v_add_f32 v{m}, v{t}, v{t+1}
v_mov_b32 v{m+1}, v{m}
v_permlane32_swap_b32 v{m+1}, v{m}
v_add_f32 v{m}, v{m}, v{m+1}
v_rcp_f32 v{m}, v{m}
v_mov_b32 v{m+1}, v{m}""")
        for i in range(0,20,2): e(pk("mul",S+i,S+i,m))
        for i in range(10): e(f"v_cvt_pk_bf16_f32 v{Pb+i}, v{S+2*i}, v{S+2*i+1}")
        e("s_waitcnt vmcnt(26)")
        for c in range(4): e(f"v_mfma_f32_32x32x8_bf16 v[{O+16*c}:{O+16*c+15}], v[{VMr+2*c}:{VMr+2*c+1}], v[{Pb+8}:{Pb+9}], 0")
        for ab in range(2):
            for c in range(4): e(f"v_mfma_f32_32x32x16_bf16 v[{O+16*c}:{O+16*c+15}], a[{V+8*c+4*ab}:{V+8*c+4*ab+3}], v[{Pb+4*ab}:{Pb+4*ab+3}], v[{O+16*c}:{O+16*c+15}]")
        e(f"s_lshl_b32 s{S_T0}, s{G_SEG}, 18\ns_add_u32 s{S_T0}, s{S_T0}, {OB}\ns_add_u32 s{S_T1}, s{S_T0}, 4096")
        for c in range(4):
            for i in range(8): e(f"v_cvt_pk_bf16_f32 v{KMr+8*c+i}, v{O+16*c+2*i}, v{O+16*c+2*i+1}")
            for ab in range(2): e(f"buffer_store_dwordx4 v[{KMr+8*c+4*ab}:{KMr+8*c+4*ab+3}], v{vA}, {WS}, s{S_T0+c//2} offen offset:{(c%2)*2048+ab*1024} sc1")
        e(f"""s_lshl_b32 s{S_T1}, s{G_SEG}, 7
s_add_u32 s{S_T1}, s{S_T1}, {F_O}
s_waitcnt vmcnt(0)
buffer_store_dword v{vOne}, v{vFo}, {WS}, s{S_T1} offen sc1""")
        tl(e)
        e(f"s_add_u32 s{G_SEG}, s{G_SEG}, 2")
    e(f"s_cmp_lt_u32 s{G_SEG}, 64\ns_cbranch_scc1 {lp}\ns_branch {done}")
```

```python
import sys
from asmlib import *
from common import *
from roles import *
import chain as CH
KW={a.split("=")[0]:int(a.split("=")[1]) for a in sys.argv[2:] if "=" in a}
SPLIT=KW.get("split",50); OPT.update(KW)
prof = "prof" in sys.argv
out=sys.argv[1]
N=KNAME+"_kernel"
e=Asm()
CH.TL[0]="tl" in sys.argv
import gemm as GM; GM.GP[0]="gp" in sys.argv
header(e,N); entry(e,"EXIT"); tl_init(e); tl(e); ticket_issue(e); pro_loads(e); ticket_finish(e,L_TK,41)
pro_mod(e); tl(e); pro_ln(e)
if CH.TL[0]: e(f"s_lshl_b32 s4, s{S_TEAM}, 8\ns_add_u32 s4, s4, s{S_RANK}"); tl_put(e,False)
T_KQ,T_V,T_WO,T_F1,T_F2,T_CH,T_NONE=range(7)
e(f"""ROLE0:
s_mov_b32 s{G_JOB}, 0
s_mov_b32 s{G_TYPE}, {T_NONE}
s_cmp_ge_u32 s{S_RANK}, 32
s_cbranch_scc1 ARR
s_sub_u32 s{G_X}, s{S_TEAM}, 4
s_cbranch_scc0 ARR
s_mov_b32 s{G_TYPE}, {T_CH}""")
chain_pre(e,"sc1")
e(f"ARR:\ns_cmp_eq_u32 s{S_MODE}, 0\ns_cbranch_scc0 ARR2")
arrive(e,32,230)
e("s_branch ARR3\nARR2:")
arrive(e,40,230)
e(f"""ARR3:
s_cmp_ge_u32 s{S_RANK}, 32
s_cbranch_scc1 HOOK
s_cmp_eq_u32 s{G_TYPE}, {T_CH}
s_cbranch_scc0 JOB""")
load_weights(e)
e("s_branch HOOK")
e(f"""NEXT:
s_add_u32 s{G_JOB}, s{G_JOB}, 1
JOB:
s_lshr_b32 s{S_T0}, s{S_RANK}, 3
s_and_b32 s{S_T1}, s{S_RANK}, 7
s_mov_b32 s{G_SEG}, 0
s_mov_b32 s{G_END}, {SPLIT}
s_cmp_eq_u32 s{S_T0}, 3
s_cbranch_scc0 JNT
s_cmp_eq_u32 s{G_JOB}, 3
s_cbranch_scc1 JMISC
s_mov_b32 s{S_T0}, s{G_JOB}
s_mov_b32 s{G_SEG}, {SPLIT}
s_mov_b32 s{G_END}, 64
s_branch JQKV
JNT:
s_cmp_eq_u32 s{G_JOB}, 0
s_cbranch_scc0 JB
JQKV:
s_lshl_b32 s{S_T2}, s{G_X}, 3
s_add_u32 s{S_T1}, s{S_T1}, s{S_T2}
s_lshl_b32 s{G_COL}, s{S_T1}, 8
s_lshl_b32 s{G_OUTB}, s{S_T1}, 13
s_lshl_b32 s{G_FOB}, s{S_T1}, 4
s_lshl_b32 s{S_T2}, s{S_W}, 2
s_add_u32 s{G_FOB}, s{G_FOB}, s{S_T2}
s_lshl_b32 s{S_T2}, s{S_T0}, 9
s_add_u32 s{G_FOB}, s{G_FOB}, s{S_T2}
s_add_u32 s{G_FOB}, s{G_FOB}, {F_KV}
s_mov_b32 s{G_INB}, {H1}
s_mov_b32 s{G_FIB}, {F_H1}
s_mov_b32 s{G_FN}, 3
s_mov_b32 s{G_TYPE}, {T_KQ}
s_cmp_eq_u32 s{S_T0}, 1
s_cbranch_scc1 JV
s_cmp_eq_u32 s{S_T0}, 2
s_cbranch_scc1 JQ
s_add_u32 s{G_OUTB}, s{G_OUTB}, {KB}""")
srd(e,SRD_A,P_WK,0x800000)
e(f"s_branch WLQ\nJV:\ns_add_u32 s{G_OUTB}, s{G_OUTB}, {VB}\ns_mov_b32 s{G_TYPE}, {T_V}")
srd(e,SRD_A,P_WV,0x800000)
e(f"s_branch WLQ\nJQ:\ns_add_u32 s{G_OUTB}, s{G_OUTB}, {QB}")
srd(e,SRD_A,P_WQ,0x800000)
e("WLQ:")
wload(e,8192,'P',1024)
e(f"s_cmp_eq_u32 s{G_JOB}, 0\ns_cbranch_scc0 MAIN\nHOOK:\ns_cmp_eq_u32 s{S_MODE}, 0\ns_cbranch_scc0 HOOK2")
tl(e,226)
wait_all(e,32,230,"ABORT")
e(f"s_cmp_lg_u64 vcc, 0\ns_cselect_b32 s{S_MODE}, 1, 0")
pro_fin(e)
tl(e,226)
e(f"""s_cmp_eq_u32 s{S_MODE}, 0
s_cbranch_scc1 MAIN
s_lshr_b32 s{S_TEAM}, s2, 5
s_and_b32 s{S_RANK}, s2, 31
s_waitcnt vmcnt(0)
s_barrier
s_branch ROLE0
HOOK2:""")
wait_all(e,40,230,"ABORT")
e(f"""MAIN:
s_cmp_eq_u32 s{G_TYPE}, {T_KQ}
s_cbranch_scc1 M_KQ
s_cmp_eq_u32 s{G_TYPE}, {T_V}
s_cbranch_scc1 M_V
s_cmp_eq_u32 s{G_TYPE}, {T_CH}
s_cbranch_scc0 ABORT
s_cmp_eq_u32 s{S_MODE}, 0
s_cbranch_scc0 M_CS""")
chain_main(e,"","ABORT","DONE",check_kv=True,prof=prof)
e("M_CS:")
chain_main(e,"sc1","ABORT","DONE",check_kv=True)
e("M_KQ:"); gemm_main(e,False,"B",64,16,64,18,1536,"ABORT","NEXT")
e("M_V:");  gemm_main(e,True,"B",64,16,64,18,1536,"ABORT","NEXT")
e(f"""JB:
s_cmp_eq_u32 s{G_JOB}, 1
s_cbranch_scc0 DONE
s_mov_b32 s{G_END}, 64
s_lshl_b32 s{S_T2}, s{G_X}, 3
s_add_u32 s{S_T2}, s{S_T2}, s{S_T1}
s_lshl_b32 s{G_FOB}, s{S_T2}, 4
s_lshl_b32 s{S_T2}, s{S_W}, 2
s_add_u32 s{G_FOB}, s{G_FOB}, s{S_T2}
s_lshl_b32 s{G_INB}, s{G_X}, 16
s_lshl_b32 s{G_COL}, s{S_T1}, 8
s_lshl_b32 s{G_OUTB}, s{S_T1}, 11
s_lshl_b32 s{S_T2}, s{G_X}, 14
s_add_u32 s{G_OUTB}, s{G_OUTB}, s{S_T2}
s_cmp_eq_u32 s{S_T0}, 1
s_cbranch_scc1 JF1
s_cmp_eq_u32 s{S_T0}, 2
s_cbranch_scc1 JF2
s_add_u32 s{G_FOB}, s{G_FOB}, {F_P1}
s_add_u32 s{G_INB}, s{G_INB}, {OB}
s_add_u32 s{G_OUTB}, s{G_OUTB}, {P1}
s_lshl_b32 s{S_T2}, s{G_X}, 21
s_add_u32 s{G_COL}, s{G_COL}, s{S_T2}
s_lshl_b32 s{G_FIB}, s{G_X}, 5
s_add_u32 s{G_FIB}, s{G_FIB}, {F_O}
s_mov_b32 s{G_FN}, 1""")
srd(e,SRD_A,P_WO,0x800000); wload(e,2048,'Q',1024)
gemm_main(e,False,"P",64,18,128,19,512,"ABORT","DONE")
e(f"""JF2:
s_add_u32 s{G_FOB}, s{G_FOB}, {F_P2}
s_add_u32 s{G_INB}, s{G_INB}, {FB}
s_add_u32 s{G_OUTB}, s{G_OUTB}, {P2}
s_mul_i32 s{S_T2}, s{G_X}, {896*2048}
s_add_u32 s{G_COL}, s{G_COL}, s{S_T2}
s_lshl_b32 s{G_FIB}, s{G_X}, 7
s_add_u32 s{G_FIB}, s{G_FIB}, {F_F}
s_mov_b32 s{G_FN}, 6""")
srd(e,SRD_A,P_W2,3584*2048); wload(e,2048,'Q',896)
gemm_main(e,False,"P",56,18,512,19,512,"ABORT","DONE")
e(f"""JF1:
s_cmp_eq_u32 s{S_T1}, 7
s_cbranch_scc1 DONE
s_add_u32 s{G_FOB}, s{G_FOB}, {F_F}
s_lshl_b32 s{G_OUTB}, s{S_T1}, 13
s_add_u32 s{G_OUTB}, s{G_OUTB}, s{G_INB}
s_add_u32 s{G_OUTB}, s{G_OUTB}, {FB}
s_mov_b32 s{G_INB}, {H2}
s_mul_i32 s{S_T2}, s{G_X}, {7*256}
s_add_u32 s{G_COL}, s{G_COL}, s{S_T2}
s_mov_b32 s{G_FIB}, {F_H2}
s_mov_b32 s{G_FN}, 7""")
srd(e,SRD_A,P_W1,1024*7168); wload(e,7168,'P',1024)
gemm_main(e,False,"R",64,16,128,18,512,"ABORT","DONE")
e(f"""JMISC:
s_cmp_lt_u32 s{S_T1}, 4
s_cbranch_scc1 JATT
s_lshl_b32 s{R_TG}, s{G_X}, 1
s_and_b32 s{S_T2}, s{S_T1}, 1
s_add_u32 s{R_TG}, s{R_TG}, s{S_T2}
s_cmp_lt_u32 s{S_T1}, 6
s_cbranch_scc0 JR2""")
red(e,True,"ABORT","DONE")
e("JR2:"); red(e,False,"ABORT","DONE")
e(f"""JATT:
s_lshl_b32 s{S_T1}, s{S_T1}, 2
s_add_u32 s{S_T1}, s{S_T1}, s{S_W}
s_lshr_b32 s{G_SEG}, s{S_T1}, 3
s_and_b32 s{S_T1}, s{S_T1}, 7
s_lshl_b32 s{A_H}, s{G_X}, 3
s_add_u32 s{A_H}, s{A_H}, s{S_T1}""")
att(e,"ABORT","DONE")
e("DONE:"); tl(e); e("s_waitcnt vmcnt(0)\ns_endpgm")
abort_code(e,"ABORT","EXIT")
ref=open("cdna_kernels/"+KNAME+".s.ref").read()
head=ref[:ref.index("; @launch")]
txt=head+"; @launch grid=(256,1,1) block=(256,1,1) lds=147456\n.amdgcn_target \"amdgcn-amd-amdhsa--gfx950\"\n"+e.finish()+kdesc(N)
open(out,"w").write(txt); print("nops",e.nops,"lines",txt.count("\n"),"bytes",len(txt))
```

```python
from layout import *
OPT=dict(sp=2,pf=30)
S_WG=2; S_XCC=3
SRD_WS=8
SRD_A=12
SRD_B=16
SRD_DBG=20
S_P=24
P_X,P_MEM0,P_WQ,P_WK,P_WV,P_WO,P_SEG,P_BX,P_W1,P_W2,P_C,P_WMOD,P_OUT,P_DBG,P_WS = [24+2*i for i in range(15)]
S_W=54; S_TEAM=55; S_RANK=56; S_BUD=57; S_STEP=58
S_T0=59; S_T1=60; S_T2=61; S_T3=62; S_T4=63
S_MEM=64; S_MEMN=65; S_SC=66; S_O=67; S_PART=68; S_KV=69; S_KM=70; S_FL=71; S_MODE=72
S_PR=74
L_X=0
L_WO=9216
L_V=18432
L_KV=24576
L_STAGE=0
def srd(e, d, p, size):
    e(f"s_mov_b32 s{d}, s{p}\ns_mov_b32 s{d+1}, s{p+1}\ns_mov_b32 s{d+2}, {hex(size)}\ns_mov_b32 s{d+3}, 0x00020000")
WS=f"s[{SRD_WS}:{SRD_WS+3}]"
vL=0; vT=1; vT2=2; vT3=3; vG=4; vIdx=5; vXw=6; vVw=7; vXr=8; vVr=9; vWr=10; vKr=11; vVk=12
vSCw=13; vSCw0=14; vSCr=15; vSCr0=16; vOw=17; vPw=18; vPr=19; vMw=20; vPois=21
vZ=22; vKMw=23
vP4=24
vA=28
vD=44
vX=172
vXb=76
vK=80
vVV=88
vS=96
vC=108
vVm=128
vVq=204
vPb=136
vO=144
vU=152
vZ4=168
def lane_setup(e):
    e(f"""v_and_b32 v{vT}, 15, v{vL}
v_lshrrev_b32 v{vT2}, 4, v{vL}
s_lshl_b32 s{S_T0}, s{S_TEAM}, 16
s_lshl_b32 s{S_T1}, s{S_W}, 12
s_add_u32 s{S_T1}, s{S_T1}, s{S_T0}
v_lshlrev_b32 v{vG}, 4, v{vL}
v_add_u32 v{vG}, s{S_T1}, v{vG}
v_mov_b32 v{vIdx}, 0x4444
v_mov_b32 v{vT3}, 0xeeee
v_cmp_le_u32 vcc, 8, v{vT}
v_cndmask_b32 v{vIdx}, v{vIdx}, v{vT3}, vcc
v_and_b32 v{vT3}, 1, v{vT2}
v_mul_u32_u24 v{vXw}, 576, v{vT3}
v_lshl_add_u32 v{vXw}, v{vT}, 2, v{vXw}
v_lshrrev_b32 v{vU}, 1, v{vT2}
v_lshl_add_u32 v{vXw}, v{vU}, 6, v{vXw}
s_mul_i32 s{S_T1}, s{S_W}, 2304
v_add_u32 v{vXw}, s{S_T1}, v{vXw}
v_lshlrev_b32 v{vVw}, 4, v{vT3}
v_lshl_add_u32 v{vVw}, v{vT}, 5, v{vVw}
v_lshl_add_u32 v{vVw}, v{vU}, 9, v{vVw}
s_lshl_b32 s{S_T1}, s{S_W}, 10
v_add_u32 v{vVw}, s{S_T1}, v{vVw}
v_mul_u32_u24 v{vXr}, 144, v{vT}
v_lshl_add_u32 v{vXr}, v{vT3}, 4, v{vXr}
v_lshl_add_u32 v{vXr}, v{vU}, 6, v{vXr}
v_lshlrev_b32 v{vVr}, 5, v{vT}
v_lshl_add_u32 v{vVr}, v{vT2}, 3, v{vVr}
v_bfe_u32 v{vU+1}, v{vL}, 1, 3
v_mul_u32_u24 v{vWr}, 144, v{vU+1}
v_lshl_add_u32 v{vWr}, v{vT2}, 5, v{vWr}
v_and_b32 v{vU+1}, 1, v{vL}
v_lshl_add_u32 v{vWr}, v{vU+1}, 4, v{vWr}
v_lshlrev_b32 v{vVk}, 10, v{vU}
v_lshl_add_u32 v{vVk}, v{vT3}, 9, v{vVk}
v_add_u32 v{vVk}, {L_KV}, v{vVk}
v_lshrrev_b32 v{vU+1}, 3, v{vT}
v_lshl_add_u32 v{vKr}, v{vU+1}, 8, v{vVk}
v_and_b32 v{vU+2}, 7, v{vL}
v_lshl_add_u32 v{vKr}, v{vU+2}, 4, v{vKr}
v_lshl_add_u32 v{vVk}, v{vT}, 4, v{vVk}
s_mul_i32 s{S_T1}, s{S_TEAM}, 163840
s_mul_i32 s{S_T2}, s{S_RANK}, 1280
s_add_u32 s{S_T2}, s{S_T2}, s{S_T1}
v_lshlrev_b32 v{vSCw}, 7, v{vT2}
v_lshl_add_u32 v{vSCw}, v{vT}, 4, v{vSCw}
s_lshl_b32 s{S_T3}, s{S_RANK}, 9
s_add_u32 s{S_T3}, s{S_T3}, s{S_T0}
v_add_u32 v{vOw}, s{S_T3}, v{vSCw}
v_add_u32 v{vSCw}, s{S_T2}, v{vSCw}
v_add_u32 v{vSCw0}, 768, v{vSCw}
v_mov_b32 v{vU+3}, {hex(OOB)}
v_cmp_le_u32 vcc, 8, v{vT}
v_cndmask_b32 v{vSCw}, v{vSCw}, v{vU+3}, vcc
v_cndmask_b32 v{vOw}, v{vOw}, v{vU+3}, vcc
v_cndmask_b32 v{vSCw0}, v{vSCw0}, v{vU+3}, vcc
v_cmp_gt_u32 vcc, 2, v{vT2}
v_cndmask_b32 v{vSCw0}, v{vSCw0}, v{vU+3}, vcc
s_and_b32 s{S_T2}, s{S_RANK}, 28
s_mul_i32 s{S_T2}, s{S_T2}, 1280
s_add_u32 s{S_T2}, s{S_T2}, s{S_T1}
v_lshlrev_b32 v{vSCr}, 9, v{vU+1}
v_lshl_add_u32 v{vSCr}, v{vT2}, 7, v{vSCr}
v_lshl_add_u32 v{vSCr}, v{vU+2}, 4, v{vSCr}
v_add_u32 v{vSCr}, s{S_T2}, v{vSCr}
v_lshrrev_b32 v{vSCr0}, 5, v{vL}
v_lshlrev_b32 v{vSCr0}, 7, v{vSCr0}
v_lshl_add_u32 v{vSCr0}, v{vU+2}, 4, v{vSCr0}
v_bfe_u32 v{vU+4}, v{vL}, 3, 2
v_lshl_add_u32 v{vSCr0}, v{vU+4}, 2, v{vSCr0}
s_add_u32 s{S_T2}, s{S_T2}, 1024
v_add_u32 v{vSCr0}, s{S_T2}, v{vSCr0}
s_lshl_b32 s{S_T2}, s{S_RANK}, 12
v_lshlrev_b32 v{vPr}, 4, v{vL}
v_add_u32 v{vPr}, s{S_T2}, v{vPr}
s_lshl_b32 s{S_T2}, s{S_TEAM}, 10
v_add_u32 v{vPw}, s{S_T2}, v{vPr}
v_lshlrev_b32 v{vMw}, 3, v{vL}
v_add_u32 v{vMw}, s{S_T3}, v{vMw}
v_mov_b32 v{vZ}, 0""")
    for i in range(4): e(f"v_mov_b32 v{vP4+i}, -1\nv_mov_b32 v{vZ4+i}, 0")
    e(f"v_mov_b32 v{vPb+5}, 0\nv_mov_b32 v{vVm+5}, 0\nv_mov_b32 v{vVm+7}, 0")

def poison(e, slotreg, st):
    e(f"""s_lshl_b32 s{S_T0}, s{slotreg}, 14
s_add_u32 s{S_T1}, s{S_T0}, {CH_O}
buffer_store_dwordx2 v[{vP4}:{vP4+1}], v{vMw}, {WS}, s{S_T0} offen {st}
buffer_store_dwordx2 v[{vP4}:{vP4+1}], v{vMw}, {WS}, s{S_T1} offen {st}
s_mul_i32 s{S_T0}, s{slotreg}, 40960
s_add_u32 s{S_T0}, s{S_T0}, {CH_SC}
s_lshl_b32 s{S_T1}, s{slotreg}, 17
s_add_u32 s{S_T1}, s{S_T1}, {CH_PART}
buffer_store_dwordx4 v[{vP4}:{vP4+3}], v{vU+8}, {WS}, s{S_T0} offen {st}
buffer_store_dword v{vP4}, v{vU+9}, {WS}, s{S_T0} offen {st}
buffer_store_dwordx4 v[{vP4}:{vP4+3}], v{vPw}, {WS}, s{S_T1} offen sc1""")

def load_weights(e):
    vR=vU; vB1=vU+1; vB2=vU+2; vAd=vU+3
    e(f"""v_lshrrev_b32 v{vR}, 2, v{vL}
v_and_b32 v{vT3}, 3, v{vL}
v_lshlrev_b32 v{vT3}, 4, v{vT3}
s_lshl_b32 s{S_T0}, s{S_W}, 8
v_add_u32 v{vR}, s{S_T0}, v{vR}
s_lshl_b32 s{S_T1}, s{S_TEAM}, 11
s_lshl_b32 s{S_T2}, s{S_RANK}, 6
s_add_u32 s{S_T1}, s{S_T1}, s{S_T2}
v_lshl_add_u32 v{vB1}, v{vR}, 13, v{vT3}
v_add_u32 v{vB1}, s{S_T1}, v{vB1}
s_lshl_b32 s{S_T1}, s{S_TEAM}, 21
s_add_u32 s{S_T1}, s{S_T1}, s{S_T2}
v_lshl_add_u32 v{vB2}, v{vR}, 11, v{vT3}
v_add_u32 v{vB2}, s{S_T1}, v{vB2}
s_lshl_b32 s{S_T4}, s{S_W}, 15
s_add_u32 s{S_T4}, s{S_T4}, {L_STAGE}""")
    vq=vU+4; vo=vU+5; t=vU+6; t2=vU+7
    e(f"""v_lshrrev_b32 v{t}, 1, v{vT2}
v_and_b32 v{t2}, 1, v{vT2}
v_lshlrev_b32 v{vq}, 4, v{t}
v_lshl_add_u32 v{vq}, v{t2}, 2, v{vq}
v_lshlrev_b32 v{vo}, 3, v{t}
v_lshl_add_u32 v{vo}, v{t2}, 4, v{vo}
v_bfe_u32 v{t}, v{vL}, 3, 1
v_lshl_add_u32 v{vq}, v{t}, 3, v{vq}
v_lshl_add_u32 v{vo}, v{t}, 2, v{vo}
v_bfe_u32 v{t}, v{vL}, 2, 1
v_add_u32 v{vq}, v{vq}, v{t}
v_add_u32 v{vo}, v{vo}, v{t}
v_and_b32 v{t}, 3, v{vL}
v_lshlrev_b32 v{t}, 3, v{t}
v_add_u32 v{t}, s{S_T4}, v{t}
v_lshl_add_u32 v{vq}, v{vq}, 6, v{t}
v_lshl_add_u32 v{vo}, v{vo}, 6, v{t}""")
    def dma(blk):
        p=[P_WQ,P_WK,P_WV,P_WO][blk]
        sr = SRD_A if blk%2==0 else SRD_B
        srd(e, sr, p, 0x800000)
        for i in range(16):
            e(f"s_add_u32 m0, s{S_T4}, {(blk%2)*16384+i*1024}")
            step = i*16*(8192 if blk<3 else 2048)
            e(f"s_mov_b32 s{S_T0}, {step}")
            e(f"buffer_load_dwordx4 v{vB1 if blk<3 else vB2}, s[{sr}:{sr+3}], s{S_T0} offen lds")
    def tr(blk):
        for tile in range(2):
            for t_ in range(4):
                base = (blk*2+tile)*32 + t_*8 if blk<3 else 192 + tile*32 + t_*8
                for p in range(4):
                    off=(blk%2)*16384 + (64*t_+32*(p>>1)+2*(p&1))*64 + tile*32
                    e(f"ds_read_b64_tr_b16 a[{base+2*p}:{base+2*p+1}], v{vq if blk<3 else vo} offset:{off}")
    dma(0); dma(1)
    e("s_waitcnt vmcnt(16)"); tr(0); e("s_waitcnt lgkmcnt(0)"); dma(2)
    e("s_waitcnt vmcnt(16)"); tr(1); e("s_waitcnt lgkmcnt(0)"); dma(3)
    e("s_waitcnt vmcnt(16)"); tr(2)
    e("s_waitcnt vmcnt(0)"); tr(3); e("s_waitcnt lgkmcnt(0)")

def chain_init(e, st):
    chain_pre(e, st); load_weights(e)
def chain_pre(e, st):
    lane_setup(e)
    e(f"""s_mul_i32 s{S_T1}, s{S_TEAM}, 163840
s_mul_i32 s{S_T2}, s{S_RANK}, 1280
s_add_u32 s{S_T2}, s{S_T2}, s{S_T1}
v_lshl_add_u32 v{vU+8}, v{vL}, 4, s{S_T2}
s_add_u32 s{S_T2}, s{S_T2}, 1024
v_lshl_add_u32 v{vU+9}, v{vL}, 2, s{S_T2}""")
    poison(e, S_W, st)
    l=e.lab("ci")
    e(f"s_cmp_lg_u32 s{S_W}, 0\ns_cbranch_scc1 {l}")
    srd(e, SRD_A, P_MEM0, 16384)
    e(f"""v_bfe_u32 v{vU}, v{vL}, 1, 3
v_lshlrev_b32 v{vU}, 11, v{vU}
v_lshl_add_u32 v{vU}, v{vT2}, 4, v{vU}
v_and_b32 v{vU+1}, 1, v{vL}
v_lshl_add_u32 v{vU}, v{vU+1}, 3, v{vU}
s_lshl_b32 s{S_T0}, s{S_RANK}, 6
buffer_load_dwordx2 v[{vU+2}:{vU+3}], v{vU}, s[{SRD_A}:{SRD_A+3}], s{S_T0} offen
s_waitcnt vmcnt(0)
buffer_store_dwordx2 v[{vU+2}:{vU+3}], v{vMw}, {WS}, 0 offen {st}
{l}:""")

TL=[False]
def tl_init(e):
    if TL[0]: e(f"s_lshl_b32 s6, s2, 10\ns_add_u32 s6, s6, {PROF+0x10000}\ns_cmp_eq_u32 s{S_W}, 0\ns_cselect_b32 s7, 0, {hex(OOB)}")
def tl_get(e):
    if TL[0]: e("s_memrealtime s[4:5]")
def tl_put(e, wait=True, v=14):
    if TL[0]:
        if wait: e("s_waitcnt lgkmcnt(0)")
        e(f"v_mov_b32 v{v}, s4\nv_mov_b32 v{v+1}, s7\nbuffer_store_dword v{v}, v{v+1}, {WS}, s6 offen\ns_add_u32 s6, s6, 4")
def tl(e,v=14):
    tl_get(e); tl_put(e,True,v)
def stamp(e, prof, i):
    if prof: e(f"s_memtime s[{S_PR+2*i}:{S_PR+2*i+1}]")

PF=[None]
def failc(e,i):
    if PF[0]: e(f'v_add_u32 v{246+i}, 1, v{246+i}')
def gather(e, sreg, abort, pre=None, fc=None):
    lp=e.lab("g"); ok=e.lab("gok")
    e(f"{lp}:")
    for t in range(4): e(f"buffer_load_dwordx4 v[{vA+4*t}:{vA+4*t+3}], v{vG}, {WS}, s{sreg} offen offset:{t*1024} sc1")
    if pre: pre()
    e(f"""s_waitcnt vmcnt(0)
v_max3_u32 v{vU}, v{vA}, v{vA+2}, v{vA+4}
v_max3_u32 v{vU+1}, v{vA+6}, v{vA+8}, v{vA+10}
v_max3_u32 v{vU}, v{vU}, v{vA+12}, v{vA+14}
v_max_u32 v{vU}, v{vU}, v{vU+1}
v_cmp_eq_u32 vcc, -1, v{vU}
s_cbranch_vccz {ok}""")
    if fc is not None: failc(e,fc)
    e(f"""s_sub_u32 s{S_BUD}, s{S_BUD}, 1
s_cbranch_scc0 {lp}
s_branch {abort}
{ok}:""")
def gather2(e, sreg, abort, work, fc=None, st=None):
    C=[e.lab("gc") for _ in range(4)]; R=[e.lab("gr") for _ in range(4)]
    ld=lambda t: e(f"buffer_load_dwordx4 v[{vA+4*t}:{vA+4*t+3}], v{vG}, {WS}, s{sreg} offen offset:{t*1024} sc1")
    for t in range(4): ld(t)
    for t in range(4):
        e(f"""{C[t]}:
s_waitcnt vmcnt({3-t})
v_max_u32 v{vU}, v{vA+4*t}, v{vA+4*t+2}
v_cmp_eq_u32 vcc, -1, v{vU}
s_cbranch_vccnz {R[t]}""")
        if t==3 and st: st()
        work(t)
    def tail():
        for t in range(4):
            e(f"{R[t]}:")
            for u in range(t,4): ld(u)
            if fc is not None: failc(e,fc)
            e(f"s_sub_u32 s{S_BUD}, s{S_BUD}, 1\ns_cbranch_scc0 {C[t]}\ns_branch {abort}")
    return tail
def smf(e, d, t, a): e(f"v_smfmac_f32_16x16x64_bf16 v[{d}:{d+3}], v[{vA+4*t}:{vA+4*t+3}], a[{a}:{a+7}], v{vIdx}")
def fold(e, d):
    for i in range(4): e(f"v_permlane32_swap_b32 v{d+i}, v{d+4+i}")
    e(f"v_pk_add_f32 v[{d}:{d+1}], v[{d}:{d+1}], v[{d+4}:{d+5}]\nv_pk_add_f32 v[{d+2}:{d+3}], v[{d+2}:{d+3}], v[{d+6}:{d+7}]")
def qk_phase(e,st=None):
    for p in range(2):
        fold(e, vD+8*p)
        for i in range(4): e(f"ds_write_b32 v{vXw}, v{vD+8*p+i} offset:{L_X+p*1152+i*144}")
    if st: st()
    e("s_waitcnt lgkmcnt(0)\ns_barrier")
def v_phase(e,pre=None):
    for t in range(4):
        for tile in range(2): smf(e, vD+16+4*tile, t, (4+tile)*32+t*8)
    fold(e, vD+16)
    e(f"ds_write_b128 v{vVw}, v[{vD+16}:{vD+19}] offset:{L_V}")
    if pre: pre()
    e("s_waitcnt lgkmcnt(0)\ns_barrier")
def qk_work(e): return lambda t: [smf(e, vD+4*tile, t, tile*32+t*8) for tile in range(4)]
def wo_work(e): return lambda t: [smf(e, vD+4*tile, t, 192+tile*32+t*8) for tile in range(2)]
def wo_phase(e):
    fold(e, vD)
    for i in range(4): e(f"ds_write_b32 v{vXw}, v{vD+i} offset:{L_WO+i*144}")
    e("s_waitcnt lgkmcnt(0)\ns_barrier")
def sum4(e, b, n, stride, waits=None):
    for k in range(0,n,2): e(f"v_pk_add_f32 v[{b+k}:{b+k+1}], v[{b+k}:{b+k+1}], v[{b+stride+k}:{b+stride+k+1}]")
    if waits: e(waits)
    for k in range(0,n,2): e(f"v_pk_add_f32 v[{b+2*stride+k}:{b+2*stride+k+1}], v[{b+2*stride+k}:{b+2*stride+k+1}], v[{b+3*stride+k}:{b+3*stride+k+1}]")
    for k in range(0,n,2): e(f"v_pk_add_f32 v[{b+k}:{b+k+1}], v[{b+k}:{b+k+1}], v[{b+2*stride+k}:{b+2*stride+k+1}]")
def zero_acc(e, lo, n):
    for i in range(n): e(f"v_mov_b32 v{vD+lo+i}, 0")
def slots(e):
    e(f"""s_and_b32 s{S_T0}, s{S_STEP}, 3
s_lshl_b32 s{S_MEM}, s{S_T0}, 14
s_add_u32 s{S_O}, s{S_MEM}, {CH_O}
s_mul_i32 s{S_SC}, s{S_T0}, 40960
s_add_u32 s{S_SC}, s{S_SC}, {CH_SC}
s_lshl_b32 s{S_PART}, s{S_T0}, 17
s_add_u32 s{S_PART}, s{S_PART}, {CH_PART}
s_add_u32 s{S_MEMN}, s{S_MEM}, 16384
s_and_b32 s{S_MEMN}, s{S_MEMN}, 0xffff""")
def read_x(e):
    for w in range(4): e(f"ds_read_b128 v[{vX+8*w}:{vX+8*w+3}], v{vXr} offset:{L_X+2304*w}\nds_read_b128 v[{vX+8*w+4}:{vX+8*w+7}], v{vXr} offset:{L_X+2304*w+32}")
def cvt_x(e):
    for i in range(4): e(f"v_cvt_pk_bf16_f32 v{vXb+i}, v{vX+2*i}, v{vX+2*i+1}")
def kv_prefetch(e, abort, check):
    if check:
        lp=e.lab("kf"); ok=e.lab("kok")
        if check==2: e(f"v_cmp_ne_u32 vcc, 1, v{vU+12}\ns_cbranch_vccz {ok}")
        e(f"""s_mul_i32 s{S_T0}, s{S_KV}, 1536
s_add_u32 s{S_T0}, s{S_T0}, {F_KV}
{lp}:
buffer_load_dword v{vU+12}, v{vU+11}, {WS}, s{S_T0} offen sc1
s_waitcnt vmcnt(0)
v_cmp_ne_u32 vcc, 1, v{vU+12}
s_cbranch_vccz {ok}
s_sub_u32 s{S_BUD}, s{S_BUD}, 1
s_cbranch_scc0 {lp}
s_branch {abort}
{ok}:""")
    e(f"""s_and_b32 s{S_T1}, s{S_KV}, 1
s_lshl_b32 s{S_T1}, s{S_T1}, 12
s_lshl_b32 s{S_T0}, s{S_KV}, 18
s_add_u32 m0, s{S_T1}, {L_KV}
s_add_u32 s{S_T2}, s{S_T0}, {KB}
buffer_load_dwordx4 v{vU+10}, {WS}, s{S_T2} offen sc1 lds
buffer_load_dwordx4 v{vU+10}, {WS}, s{S_T2} offen offset:1024 sc1 lds
s_add_u32 m0, s{S_T1}, {L_KV+2048}
s_add_u32 s{S_T2}, s{S_T0}, {VB}
buffer_load_dwordx4 v{vU+10}, {WS}, s{S_T2} offen sc1 lds
buffer_load_dwordx4 v{vU+10}, {WS}, s{S_T2} offen offset:1024 sc1 lds""")

def chain_main(e, st, abort, done, check_kv=True, prof=False, NSTEP=64):
    lead=e.lab("lead");
    e(f"s_mov_b32 s{S_STEP}, 0")
    slots(e); zero_acc(e,0,24)
    e(f"s_cmp_eq_u32 s{S_W}, 0\ns_cbranch_scc1 {lead}")
    e(f"""s_lshl_b32 s{S_T0}, s{S_TEAM}, 5
s_add_u32 s{S_T0}, s{S_T0}, s{S_RANK}
s_lshl_b32 s{S_T1}, s{S_T0}, 11
v_lshl_add_u32 v{vU+10}, v{vL}, 4, s{S_T1}
s_lshl_b32 s{S_T1}, s{S_T0}, 2
v_and_b32 v{vU+11}, 1, v{vL}
v_lshl_add_u32 v{vU+11}, v{vU+11}, 9, s{S_T1}
s_lshl_b32 s{S_T1}, s{S_T0}, 9
v_lshlrev_b32 v{vKMw}, 7, v{vT2}
v_lshl_add_u32 v{vKMw}, v{vT}, 4, v{vKMw}
v_subrev_u32 v{vKMw}, 128, v{vKMw}
v_add_u32 v{vKMw}, s{S_T1}, v{vKMw}
v_mov_b32 v{vU+3}, {hex(OOB)}
v_cmp_gt_u32 vcc, 8, v{vT}
v_cndmask_b32 v{vKMw}, v{vKMw}, v{vU+3}, vcc
v_lshl_add_u32 v{vU+13}, v{vL}, 3, s{S_T1}
v_and_b32 v{vVr}, 31, v{vL}
v_lshlrev_b32 v{vVr}, 5, v{vVr}
v_lshrrev_b32 v{vU+3}, 5, v{vL}
v_lshl_add_u32 v{vVr}, v{vU+3}, 4, v{vVr}
s_lshl_b32 s{S_T1}, s{S_T0}, 2
v_mov_b32 v{vU+14}, s{S_T1}
v_mov_b32 v{vU+15}, 1
v_lshlrev_b32 v{vU+7}, 4, v{vL}
s_mov_b32 s{S_KV}, 0""")
    ZA=OPT.get('za',24)
    def kvflag(add): e(f"s_mul_i32 s{S_T0}, s{S_STEP}, 1536\ns_add_u32 s{S_T0}, s{S_T0}, {F_KV+1536*add}\nbuffer_load_dword v{vU+12}, v{vU+11}, {WS}, s{S_T0} offen sc1")
    def kmflag(d): e(f"s_lshl_b32 s{S_T0}, s{S_STEP}, 9\ns_add_u32 s{S_T0}, s{S_T0}, {F_KM+512*d}\nbuffer_store_dword v{vU+15}, v{vU+14}, {WS}, s{S_T0} offen sc1")
    h0=e.lab("h0")
    e(f"s_cmp_lg_u32 s{S_W}, 2\ns_cbranch_scc1 {h0}")
    kv_prefetch(e, abort, 1); kvflag(1)
    e(f"{h0}:")
    if prof: e(f"v_mov_b32 v250, 0\nds_write_b32 v{vZ}, v250 offset:40000")
    hl=e.lab("hl"); e(f"{hl}:")
    t1=gather2(e, S_MEM, abort, qk_work(e))
    qk_phase(e)
    v_phase(e)
    b=e.lab("b"); c=e.lab("c"); b3=e.lab("b3")
    e(f"s_cmp_lg_u32 s{S_W}, 1\ns_cbranch_scc1 {b}")
    read_x(e)
    for w in range(4): e(f"ds_read_b128 v[{vVq+4*w}:{vVq+4*w+3}], v{vVr} offset:{L_V+1024*w}")
    e("s_waitcnt lgkmcnt(0)")
    sum4(e, vX, 8, 8); sum4(e, vVq, 4, 4)
    cvt_x(e)
    e(f"""v_cvt_pk_bf16_f32 v{vVm+4}, v{vVq}, v{vVq+1}
v_cvt_pk_bf16_f32 v{vVm+5}, v{vVq+2}, v{vVq+3}""")
    def kmst(): e(f"""s_lshl_b32 s{S_T0}, s{S_STEP}, 16
s_add_u32 s{S_T1}, s{S_T0}, {VM}
s_add_u32 s{S_T0}, s{S_T0}, {KM}
buffer_store_dwordx4 v[{vXb}:{vXb+3}], v{vKMw}, {WS}, s{S_T0} offen sc1
buffer_store_dwordx2 v[{vVm+4}:{vVm+5}], v{vU+13}, {WS}, s{S_T1} offen sc1""")
    def pois():
        e(f"s_add_u32 s{S_T4}, s{S_STEP}, 2\ns_and_b32 s{S_T4}, s{S_T4}, 3"); poison(e, S_T4, st)
    PO=OPT.get('po',2)
    e(f"s_cmp_lt_u32 s{S_STEP}, {NSTEP-1}\ns_cbranch_scc1 {c}")
    kmflag(-1); kmst(); e("s_waitcnt vmcnt(0)"); kmflag(0)
    e(f"""s_branch {done}
{b}:
s_cmp_lt_u32 s{S_STEP}, {NSTEP-1}
s_cbranch_scc0 {done}""")
    if PO==1:
        e(f"s_cmp_lg_u32 s{S_W}, 3\ns_cbranch_scc1 {c}"); pois()
    e(f"{c}:"); zero_acc(e,ZA,24-ZA); e("s_barrier")
    zero_acc(e,0,ZA)
    t2=gather2(e, S_O, abort, wo_work(e))
    wo_phase(e)
    f=e.lab("f"); g=e.lab("g"); f3=e.lab("f3"); f0=e.lab("f0")
    LB=OPT.get('lb',0)
    if LB: e("s_barrier")
    e(f"s_cmp_lg_u32 s{S_W}, 1\ns_cbranch_scc1 {f}\ns_cmp_eq_u32 s{S_STEP}, 0\ns_cbranch_scc1 {f0}")
    kmflag(-1); e(f"{f0}:")
    if not OPT.get('x2'): kmst()
    if PO==2: pois()
    bb="" if LB else "s_barrier\n"
    e(f"{bb}s_branch {g}\n{f}:\ns_cmp_lg_u32 s{S_W}, 2\ns_cbranch_scc1 {f3}\ns_add_u32 s{S_KV}, s{S_STEP}, 1")
    if not OPT.get('x1'): kv_prefetch(e, abort, 2); kvflag(2)
    e(f"{bb}s_branch {g}\n{f3}:\n{bb}")
    zero_acc(e,0,8)
    for i in range(OPT.get('pd',0)): e(f"v_mov_b32 v{vD+i%8}, 0")
    lp=e.lab("pp"); ok=e.lab("ppok")
    e(f"{lp}:")
    for x in range(4): e(f"buffer_load_dwordx4 v[{vC+4*x}:{vC+4*x+3}], v{vPr}, {WS}, s{S_PART} offen offset:{x*1024} sc1")
    e(f"""s_waitcnt vmcnt(2)
v_pk_add_f32 v[{vC}:{vC+1}], v[{vC}:{vC+1}], v[{vC+4}:{vC+5}]
v_pk_add_f32 v[{vC+2}:{vC+3}], v[{vC+2}:{vC+3}], v[{vC+6}:{vC+7}]
s_waitcnt vmcnt(0)
v_pk_add_f32 v[{vC+8}:{vC+9}], v[{vC+8}:{vC+9}], v[{vC+12}:{vC+13}]
v_pk_add_f32 v[{vC+10}:{vC+11}], v[{vC+10}:{vC+11}], v[{vC+14}:{vC+15}]
v_pk_add_f32 v[{vC}:{vC+1}], v[{vC}:{vC+1}], v[{vC+8}:{vC+9}]
v_pk_add_f32 v[{vC+2}:{vC+3}], v[{vC+2}:{vC+3}], v[{vC+10}:{vC+11}]
v_cmp_u_f32 vcc, v{vC}, v{vC}
v_cvt_pk_bf16_f32 v{vC+4}, v{vC}, v{vC+1}
v_cvt_pk_bf16_f32 v{vC+5}, v{vC+2}, v{vC+3}
s_cbranch_vccz {ok}""")
    if prof: e(f"v_add_u32 v250, 1, v250\nds_write_b32 v{vZ}, v250 offset:40000")
    e(f"""s_sub_u32 s{S_BUD}, s{S_BUD}, 1
s_cbranch_scc0 {lp}
s_branch {abort}
{ok}:
buffer_store_dwordx2 v[{vC+4}:{vC+5}], v{vMw}, {WS}, s{S_MEMN} offen {st}
{g}:
s_barrier
s_add_u32 s{S_STEP}, s{S_STEP}, 1""")
    slots(e); zero_acc(e,0,8)
    e(f"s_branch {hl}")
    t1(); t2()
    e(f"{lead}:")
    if prof:
        for i in range(20): e(f"v_mov_b32 v{230+i}, 0")
    PF[0]=prof
    ll=e.lab("ll"); e(f"{ll}:")
    tl_get(e); tl_put(e,True,226)
    stamp(e,prof,0)
    t1=gather2(e, S_MEM, abort, qk_work(e), 0, lambda: stamp(e,prof,1))
    qk_phase(e,lambda: stamp(e,prof,2))
    stamp(e,prof,3)
    read_x(e)
    e(f"ds_read_b128 v[{vK}:{vK+3}], v{vKr}\nds_read_b128 v[{vK+4}:{vK+7}], v{vKr} offset:128\ns_waitcnt lgkmcnt(6)")
    sum4(e, vX, 8, 8, "s_waitcnt lgkmcnt(2)")
    cvt_x(e)
    stamp(e,prof,4)
    X=f"v[{vXb}:{vXb+3}]"
    e(f"""v_mfma_f32_16x16x32_bf16 v[{vS}:{vS+3}], {X}, {X}, 0
s_waitcnt lgkmcnt(0)
v_mfma_f32_16x16x32_bf16 v[{vS+4}:{vS+7}], v[{vK}:{vK+3}], {X}, 0
v_mfma_f32_16x16x32_bf16 v[{vS+8}:{vS+11}], v[{vK+4}:{vK+7}], {X}, 0
ds_read_b128 v[{vVV}:{vVV+3}], v{vVk} offset:2048
ds_read_b128 v[{vVV+4}:{vVV+7}], v{vVk} offset:2304
v_xor_b32 v{vKr}, 4096, v{vKr}
v_xor_b32 v{vVk}, 4096, v{vVk}
buffer_store_dwordx4 v[{vS}:{vS+3}], v{vSCw0}, {WS}, s{S_SC} offen {st}
buffer_store_dwordx4 v[{vS+4}:{vS+7}], v{vSCw}, {WS}, s{S_SC} offen {st}
buffer_store_dwordx4 v[{vS+8}:{vS+11}], v{vSCw}, {WS}, s{S_SC} offen offset:512 {st}""")
    stamp(e,prof,5)
    def scl():
        for c_ in range(4):
            e(f"buffer_load_dwordx4 v[{vC+4*c_}:{vC+4*c_+3}], v{vSCr}, {WS}, s{S_SC} offen offset:{c_*1280} sc1")
            e(f"buffer_load_dword v{vC+16+c_}, v{vSCr0}, {WS}, s{S_SC} offen offset:{c_*1280} sc1")
    ES=OPT.get('es',1)
    v_phase(e, scl if ES else None)
    stamp(e,prof,6)
    e(f"s_cmp_lt_u32 s{S_STEP}, {NSTEP-1}\ns_cbranch_scc0 LEADEND_{ll}")
    lp=e.lab("sc"); ok=e.lab("scok")
    for w in range(4): e(f"ds_read_b64 v[{vVq+4*w}:{vVq+4*w+1}], v{vVr} offset:{L_V+1024*w}\nds_read_b64 v[{vVq+4*w+2}:{vVq+4*w+3}], v{vVr} offset:{L_V+1024*w+512}")
    zero_acc(e,ZA,24-ZA)
    e("s_waitcnt lgkmcnt(0)")
    sum4(e, vVq, 4, 4)
    e(f"v_cvt_pk_bf16_f32 v{vVm+4}, v{vVq}, v{vVq+1}\nv_cvt_pk_bf16_f32 v{vVm+6}, v{vVq+2}, v{vVq+3}")
    stamp(e,prof,7)
    sk=e.lab("sk")
    if ES: e(f"s_branch {sk}")
    e(f"{lp}:"); scl(); e(f"{sk}:")
    e(f"""s_waitcnt vmcnt(0)
v_pk_add_f32 v[{vC}:{vC+1}], v[{vC}:{vC+1}], v[{vC+4}:{vC+5}]
v_pk_add_f32 v[{vC+8}:{vC+9}], v[{vC+8}:{vC+9}], v[{vC+12}:{vC+13}]
v_pk_add_f32 v[{vC+16}:{vC+17}], v[{vC+16}:{vC+17}], v[{vC+18}:{vC+19}]
v_pk_add_f32 v[{vC+2}:{vC+3}], v[{vC+2}:{vC+3}], v[{vC+6}:{vC+7}]
v_pk_add_f32 v[{vC+10}:{vC+11}], v[{vC+10}:{vC+11}], v[{vC+14}:{vC+15}]
v_pk_add_f32 v[{vC}:{vC+1}], v[{vC}:{vC+1}], v[{vC+8}:{vC+9}]
v_add_f32 v{vC+4}, v{vC+16}, v{vC+17}
v_pk_add_f32 v[{vC+2}:{vC+3}], v[{vC+2}:{vC+3}], v[{vC+10}:{vC+11}]
v_cmp_u_f32 vcc, v{vC}, v{vC+4}
v_max3_f32 v{vU}, v{vC}, v{vC+1}, v{vC+4}
s_cbranch_vccz {ok}""")
    failc(e,1)
    e(f"""s_sub_u32 s{S_BUD}, s{S_BUD}, 1
s_cbranch_scc0 {lp}
s_branch {abort}
{ok}:""")
    stamp(e,prof,8)
    m=vU; t=vU+1
    e(f"""v_max3_f32 v{m}, v{m}, v{vC+2}, v{vC+3}
v_max_f32_dpp v{m}, v{m}, v{m} row_ror:8 row_mask:0xf bank_mask:0xf
v_mov_b32 v{t}, v{m}
v_permlane16_swap_b32 v{t}, v{m}
v_max_f32 v{m}, v{m}, v{t}
v_mov_b32 v{t}, v{m}
v_permlane32_swap_b32 v{t}, v{m}
v_max_f32 v{m}, v{m}, v{t}
v_mul_f32 v{m}, s{S_FL}, v{m}""")
    for i in [4,0,1,2,3]: e(f"v_fma_f32 v{vC+i}, v{vC+i}, s{S_FL}, -v{m}")
    for i in [4,0,1,2,3]: e(f"v_exp_f32 v{vC+i}, v{vC+i}")
    e(f"""v_mov_b32_dpp v{t}, v{vC+4} row_ror:8 row_mask:0xf bank_mask:0xf
v_cvt_pk_bf16_f32 v{vPb}, v{vC}, v{vC+1}
v_cvt_pk_bf16_f32 v{vPb+1}, v{vC+2}, v{vC+3}
v_cvt_pk_bf16_f32 v{vPb+4}, v{vC+4}, v{t}
v_mov_b32_dpp v{vPb+2}, v{vPb} row_ror:8 row_mask:0xf bank_mask:0xf
v_mov_b32_dpp v{vPb+3}, v{vPb+1} row_ror:8 row_mask:0xf bank_mask:0xf
v_mfma_f32_16x16x16_bf16 v[{vO}:{vO+3}], v[{vVm+4}:{vVm+5}], v[{vPb+4}:{vPb+5}], 0
v_pk_add_f32 v[{vC}:{vC+1}], v[{vC}:{vC+1}], v[{vC+2}:{vC+3}]
v_add_f32 v{m}, v{vC}, v{vC+4}
v_mfma_f32_16x16x16_bf16 v[{vO+4}:{vO+7}], v[{vVm+6}:{vVm+7}], v[{vPb+4}:{vPb+5}], 0
v_add_f32 v{m}, v{m}, v{vC+1}
v_mfma_f32_16x16x32_bf16 v[{vO}:{vO+3}], v[{vVV}:{vVV+3}], v[{vPb}:{vPb+3}], v[{vO}:{vO+3}]
v_add_f32_dpp v{m}, v{m}, v{m} row_ror:8 row_mask:0xf bank_mask:0xf
v_mov_b32 v{t}, v{m}
v_mfma_f32_16x16x32_bf16 v[{vO+4}:{vO+7}], v[{vVV+4}:{vVV+7}], v[{vPb}:{vPb+3}], v[{vO+4}:{vO+7}]
v_permlane16_swap_b32 v{t}, v{m}
v_add_f32 v{m}, v{m}, v{t}
v_mov_b32 v{t}, v{m}
v_permlane32_swap_b32 v{t}, v{m}
v_add_f32 v{m}, v{m}, v{t}
v_rcp_f32 v{m}, v{m}""")
    for i in range(8): e(f"v_mul_f32 v{vO+i}, v{vO+i}, v{m}")
    for i in range(4): e(f"v_cvt_pk_bf16_f32 v{vO+i}, v{vO+2*i}, v{vO+2*i+1}")
    e(f"buffer_store_dwordx4 v[{vO}:{vO+3}], v{vOw}, {WS}, s{S_O} offen {st}\ns_barrier")
    stamp(e,prof,9)
    zero_acc(e,0,ZA)
    t2=gather2(e, S_O, abort, wo_work(e), 2, lambda: stamp(e,prof,10))
    wo_phase(e)
    stamp(e,prof,11)
    lp=e.lab("pp"); ok=e.lab("ppok")
    for w in range(4): e(f"ds_read_b128 v[{vX+4*w}:{vX+4*w+3}], v{vWr} offset:{L_WO+2304*w}")
    e("s_waitcnt lgkmcnt(2)")
    sum4(e, vX, 4, 4, "s_waitcnt lgkmcnt(0)")
    e(f"""buffer_store_dwordx4 v[{vX}:{vX+3}], v{vPw}, {WS}, s{S_PART} offen sc1""")
    stamp(e,prof,12)
    e("s_barrier\ns_barrier")
    stamp(e,prof,13)
    e(f"s_add_u32 s{S_STEP}, s{S_STEP}, 1")
    slots(e); zero_acc(e,0,8)
    if prof:
        e("s_waitcnt lgkmcnt(0)")
        for i in range(13): e(f"s_sub_u32 s{S_T0}, s{S_PR+2*i+2}, s{S_PR+2*i}\nv_add_u32 v{230+i}, s{S_T0}, v{230+i}")
    e(f"s_branch {ll}"); t1(); t2(); e(f"LEADEND_{ll}:")
    if prof:
        e(f"s_lshl_b32 s{S_T0}, s{S_TEAM}, 5\ns_add_u32 s{S_T0}, s{S_T0}, s{S_RANK}\ns_lshl_b32 s{S_T0}, s{S_T0}, 7\ns_add_u32 s{S_T0}, s{S_T0}, {PROF}")
        e(f"ds_read_b32 v249, v{vZ} offset:40000\ns_waitcnt lgkmcnt(0)")
        for i in range(5): e(f"buffer_store_dwordx4 v[{230+4*i}:{233+4*i}], v{vZ}, {WS}, s{S_T0} offen offset:{16*i}")
    PF[0]=False
    e(f"s_branch {done}")
```

```python
from layout import *
from chain import *
G_SEG=64; G_END=65; G_INB=66; G_FIB=67; G_OUTB=68; G_FOB=69; G_M0=70; G_PEND=73; G_IN=74; G_JOB=75; G_FP=76; G_COL=77; G_TYPE=78; G_X=79; G_NS=80; G_FN=81
gRd=1; gIn=2; gFl=3; gOut=4; gFo=5; gOne=6; gIx=7; gT=8; gF=16; gA0=32; gA1=48; gR=64; gP=96
SA=f"s[{SRD_A}:{SRD_A+3}]"
def wload(e, stride, perm, nrows):
    vB=gT; vq=gT+1; t=gT+2; t2=gT+3
    e(f"""v_lshrrev_b32 v{t}, 2, v0
s_mov_b32 s{S_T0}, {stride}
v_mul_lo_u32 v{vB}, v{t}, s{S_T0}
v_and_b32 v{t2}, 3, v0
v_lshl_add_u32 v{vB}, v{t2}, 4, v{vB}
s_lshl_b32 s{S_T0}, s{S_W}, 6
s_add_u32 s{S_T0}, s{S_T0}, s{G_COL}
v_add_u32 v{vB}, s{S_T0}, v{vB}
s_lshl_b32 s{S_T4}, s{S_W}, 15
v_and_b32 v{t}, 3, v{t}
v_lshrrev_b32 v{vq}, 5, v0
v_lshl_add_u32 v{vq}, v{vq}, {7 if perm=='P' else 2}, v{t}
v_lshlrev_b32 v{vq}, 6, v{vq}
v_lshl_add_u32 v{vq}, v{t2}, 3, v{vq}
v_bfe_u32 v{t}, v0, 4, 1
v_lshl_add_u32 v{vq}, v{t}, 5, v{vq}
v_add_u32 v{vq}, s{S_T4}, v{vq}""")
    nb=(nrows+255)//256
    cnt=[min(256,nrows-256*b)//16 for b in range(nb)]
    def dma(b):
        for i in range(cnt[b]):
            e(f"s_add_u32 m0, s{S_T4}, {(b%2)*16384+i*1024}\ns_mov_b32 s{S_T0}, {(256*b+16*i)*stride}\nbuffer_load_dwordx4 v{vB}, {SA}, s{S_T0} offen lds")
    def tr(b):
        for k in range(cnt[b]):
            ks=16*b+k
            for p in range(2):
                off=(b%2)*16384+((64*p+4*k) if perm=='P' else (16*k+8*p))*64
                e(f"ds_read_b64_tr_b16 a[{4*ks+2*p}:{4*ks+2*p+1}], v{vq} offset:{off}")
    dma(0); dma(1)
    for b in range(nb):
        e(f"s_waitcnt vmcnt({cnt[b+1] if b+1<nb else 0})"); tr(b); e("s_waitcnt lgkmcnt(0)")
        if b+2<nb: dma(b+2)
def poll4(e, vd, va, sreg, abort):
    lp=e.lab("pl"); ok=e.lab("pk")
    e(f"""{lp}:
buffer_load_dwordx4 v[{vd}:{vd+3}], v{va}, {WS}, s{sreg} offen sc1
s_waitcnt vmcnt(0)
v_and_b32 v{vd}, v{vd}, v{vd+1}
v_and_b32 v{vd+2}, v{vd+2}, v{vd+3}
v_and_b32 v{vd}, v{vd}, v{vd+2}
v_cmp_ne_u32 vcc, 1, v{vd}
s_cbranch_vccz {ok}
s_sub_u32 s{S_BUD}, s{S_BUD}, 1
s_cbranch_scc0 {lp}
s_branch {abort}
{ok}:""")
def lane0(e, v, t):
    e(f"v_mov_b32 v{v}, {hex(OOB)}\nv_cmp_eq_u32 vcc, 0, v0\nv_cndmask_b32 v{v}, v{v}, v{t}, vcc")
def bymode(e, r, f):
    if not OPT.get('pl',1): f(" sc1"); return
    a=e.lab("bm"); b=e.lab("bn")
    e(f"s_cmp_eq_u32 s{r}, 0\ns_cbranch_scc0 {a}"); f(""); e(f"s_branch {b}\n{a}:"); f(" sc1"); e(f"{b}:")
GP=[False]
def gst(e,i):
    if GP[0]: e(f's_memtime s[{82+2*i}:{83+2*i}]')
def gemm_main(e, swap, epi, KS, in_sh, fi_mul, out_sh, fo_mul, abort, done):
    Q=KS//4; NST=4 if epi=="P" else 2
    grp=[min(4,Q-4*g) for g in range(4)]
    e(f"""v_lshlrev_b32 v{gRd}, 4, v0
s_mul_i32 s{G_M0}, s{S_W}, {Q*1024}
v_add_u32 v{gIn}, s{G_M0}, v{gRd}
v_min_u32 v{gFl}, s{G_FN}, v0
v_lshlrev_b32 v{gFl}, 4, v{gFl}
v_mov_b32 v{gOne}, 0""")
    lane0(e, gFo, gOne)
    e(f"v_mov_b32 v{gOne}, 1")
    if epi=="P":
        e(f"""v_bfe_u32 v{gT}, v0, 2, 3
v_lshlrev_b32 v{gOut}, 16, v{gT}
v_and_b32 v{gT}, 3, v0
v_lshl_add_u32 v{gOut}, v{gT}, 4, v{gOut}
v_lshrrev_b32 v{gT}, 5, v0
v_lshl_add_u32 v{gOut}, v{gT}, 6, v{gOut}
s_lshl_b32 s{S_T0}, s{S_W}, 9
v_add_u32 v{gOut}, s{S_T0}, v{gOut}""")
    else:
        e(f"s_lshl_b32 s{S_T0}, s{S_W}, 11\nv_add_u32 v{gOut}, s{S_T0}, v{gRd}")
    def fo():
        f=lambda sc: e(f"buffer_store_dword v{gOne}, v{gFo}, {WS}, s{G_FP} offen{sc}")
        if epi=="R": bymode(e,S_MODE,f)
        else: f(" sc1")
    def faddr(d, seg, add):
        e(f"s_mul_i32 s{d}, s{seg}, {fi_mul}\ns_add_u32 s{d}, s{d}, s{G_FIB}")
        if add: e(f"s_add_u32 s{d}, s{d}, {add*fi_mul}")
    def fload(s): e(f"buffer_load_dwordx4 v[{gF}:{gF+3}], v{gFl}, {WS}, s{s} offen sc1")
    def dgroup(g):
        e(f"s_add_u32 m0, s{G_M0}, {g*4096}\ns_add_u32 s{S_T0}, s{G_IN}, {g*4096}")
        for j in range(grp[g]): e(f"buffer_load_dwordx4 v{gIn}, {WS}, s{S_T0} offen offset:{j*1024} sc1 lds")
    if GP[0]:
        for i in range(93,100): e(f"s_mov_b32 s{i}, 0")
    loop=e.lab("gl"); fetch=e.lab("gf"); pb=e.lab("gb")
    e(f"s_mov_b32 s{G_NS}, s{G_SEG}\ns_barrier\n{fetch}:")
    faddr(S_T1, G_NS, 0); poll4(e, gF, gFl, S_T1, abort)
    e(f"s_lshl_b32 s{G_IN}, s{G_NS}, {in_sh}\ns_add_u32 s{G_IN}, s{G_IN}, s{G_INB}")
    for g in range(4): dgroup(g)
    e(f"s_add_u32 s{S_T1}, s{S_T1}, {fi_mul}"); fload(S_T1)
    e(f"s_mov_b32 s{G_PEND}, 0\ns_waitcnt vmcnt(0)\n{loop}:")
    e(f"""s_barrier
s_mov_b32 s{G_SEG}, s{G_NS}
s_add_u32 s{G_NS}, s{G_SEG}, 1
s_xor_b32 s{G_M0}, s{G_M0}, 65536""")
    tl_get(e); gst(e,0)
    D=6; SP=OPT['sp']; PF=OPT['pf']
    def rd(ks): e(f"ds_read_b128 v[{gR+4*(ks%8)}:{gR+4*(ks%8)+3}], v{gRd} offset:{ks*1024}")
    for ks in range(D): rd(ks)
    e(f"""v_and_b32 v{gF}, v{gF}, v{gF+1}
v_and_b32 v{gF+2}, v{gF+2}, v{gF+3}
v_and_b32 v{gF}, v{gF}, v{gF+2}
v_cmp_ne_u32 vcc, 1, v{gF}
s_lshl_b32 s{G_IN}, s{G_NS}, {in_sh}
s_add_u32 s{G_IN}, s{G_IN}, s{G_INB}
s_cmp_lt_u32 s{G_NS}, s{G_END}
s_cselect_b64 vcc, vcc, -1
s_cmp_eq_u64 vcc, 0
s_cselect_b32 s{S_T0}, 0, {hex(OOB)}
v_add_u32 v{gIx}, s{S_T0}, v{gIn}""")
    for ks in range(KS):
        if ks+D<KS: rd(ks+D)
        e(f"s_waitcnt lgkmcnt({min(D,KS-1-ks)})")
        acc=gA0 if ks%2==0 else gA1
        A=f"a[{4*ks}:{4*ks+3}]"; B=f"v[{gR+4*(ks%8)}:{gR+4*(ks%8)+3}]"
        if swap: A,B=B,A
        e(f"v_mfma_f32_32x32x16_bf16 v[{acc}:{acc+15}], {A}, {B}, {'0' if ks<2 else f'v[{acc}:{acc+15}]'}")
        if ks==16: gst(e,1)
        if ks==34: gst(e,2)
        if ks==KS-1: gst(e,3)
        if ks%SP==SP-1 and ks//SP<Q:
            i=ks//SP
            if i%4==0: e(f"s_add_u32 m0, s{G_M0}, {i*1024}\ns_add_u32 s{S_T3}, s{G_IN}, {i*1024}")
            e(f"buffer_load_dwordx4 v{gIx}, {WS}, s{S_T3} offen offset:{(i%4)*1024} sc1 lds")
        if ks==PF:
            l=e.lab("sp"); l2=e.lab("sq")
            e(f"""s_cmp_eq_u32 s{G_PEND}, 0
s_cbranch_scc1 {l}
s_waitcnt vmcnt({min(Q,(PF+1)//SP)})""")
            fo(); e(f"{l}:")
        if ks==KS-16:
            faddr(S_T1, G_NS, 1); fload(S_T1)
            e(f"""s_lshl_b32 s{S_T2}, s{G_SEG}, {out_sh}
s_add_u32 s{S_T2}, s{S_T2}, s{G_OUTB}
s_mul_i32 s{G_FP}, s{G_SEG}, {fo_mul}
s_add_u32 s{G_FP}, s{G_FP}, s{G_FOB}""")
    e(f"v_xor_b32 v{gRd}, 65536, v{gRd}")
    tl_put(e)
    for i in range(0,16,2): e(f"v_pk_add_f32 v[{gA0+i}:{gA0+i+1}], v[{gA0+i}:{gA0+i+1}], v[{gA1+i}:{gA1+i+1}]")
    if epi=="P":
        for g in range(4): e(f"buffer_store_dwordx4 v[{gA0+4*g}:{gA0+4*g+3}], v{gOut}, {WS}, s{S_T2} offen offset:{g*128} sc1")
    else:
        if epi=="R":
            for i in range(16): e(f"v_max_f32 v{gA0+i}, 0, v{gA0+i}")
        for i in range(8): e(f"v_cvt_pk_bf16_f32 v{gP+i}, v{gA0+2*i}, v{gA0+2*i+1}")
        so=lambda sc: [e(f"buffer_store_dwordx4 v[{gP+4*ab}:{gP+4*ab+3}], v{gOut}, {WS}, s{S_T2} offen offset:{ab*1024}{sc}") for ab in range(2)]
        if epi=="R": bymode(e,S_MODE,so)
        else: so(" sc1")
    e(f"""s_cbranch_vccnz {pb}
s_mov_b32 s{G_PEND}, 1
s_waitcnt vmcnt({NST})""")
    if GP[0]:
        gst(e,4); e("s_waitcnt lgkmcnt(0)")
        for i in range(4): e(f"s_sub_u32 s{S_T0}, s{84+2*i}, s{82+2*i}\ns_add_u32 s{94+i}, s{94+i}, s{S_T0}")
        e(f"s_add_u32 s98, s98, 1\ns_sub_u32 s{S_T0}, s82, s99\ns_mov_b32 s99, s90\ns_cmp_lt_u32 s{S_T0}, 20000\ns_cselect_b32 s{S_T0}, s{S_T0}, 0\ns_add_u32 s93, s93, s{S_T0}")
    e(f"""s_branch {loop}
{pb}:
s_waitcnt vmcnt(0)""")
    fo()
    e(f"""s_cmp_lt_u32 s{G_NS}, s{G_END}
s_cbranch_scc1 {fetch}""")
    if GP[0]:
        for i in range(93,99): e(f"s_mov_b32 s4, s{i}"); tl_put(e,False)
    e(f"""s_barrier
s_branch {done}""")
```

```python
from layout import *
from chain import *
from gemm import *
L_MISC=131072
L_TK=L_MISC; L_MOD=L_MISC+64; L_ST=L_MISC+1024
LOG2E="0x3fb8aa3b"
def rnd(e, a, t):
    e(f"v_cvt_pk_bf16_f32 v{t}, v{a}, v{a+1}\nv_lshlrev_b32 v{a}, 16, v{t}\nv_and_b32 v{a+1}, 0xffff0000, v{t}")
def unpack(e, d, s, n):
    for i in range(n): e(f"v_lshlrev_b32 v{d+2*i}, 16, v{s+i}\nv_and_b32 v{d+2*i+1}, 0xffff0000, v{s+i}")
def pk(op, d, a, b): return f"v_pk_{op}_f32 v[{d}:{d+1}], v[{a}:{a+1}], v[{b}:{b+1}]"
def wred(e, regs, t):
    for r in regs: e(f"v_add_f32_dpp v{r}, v{r}, v{r} row_ror:4 row_mask:0xf bank_mask:0xf")
    for r in regs: e(f"v_add_f32_dpp v{r}, v{r}, v{r} row_ror:8 row_mask:0xf bank_mask:0xf")
    for sw in ("16","32"):
        for i,r in enumerate(regs): e(f"v_mov_b32 v{t+i}, v{r}")
        for i,r in enumerate(regs): e(f"v_permlane{sw}_swap_b32 v{t+i}, v{r}")
        for i,r in enumerate(regs): e(f"v_add_f32 v{r}, v{r}, v{t+i}")
def ln_norm(e, Xs, T, vW, vR, offs):
    n=len(Xs)
    for g,X in enumerate(Xs):
        t=T+28*g
        for i in range(0,8,2): e(pk("add",t+i,X+i,X+8+i))
        e(pk("add",t,t,t+4)); e(pk("add",t+2,t+2,t+6)); e(pk("add",t,t,t+2))
        e(f"v_add_f32 v{t+16}, v{t}, v{t+1}")
    for g in range(n): wred(e,[T+28*g+16],T+28*g+18)
    for g,X in enumerate(Xs):
        t=T+28*g
        e(f"v_mul_f32 v{t+16}, 0x3b800000, v{t+16}\nv_mov_b32 v{t+17}, v{t+16}")
        for i in range(0,16,2): e(f"v_pk_add_f32 v[{t+i}:{t+i+1}], v[{X+i}:{X+i+1}], v[{t+16}:{t+17}] neg_lo:[0,1] neg_hi:[0,1]")
        e(pk("mul",t,t,t))
        for i in range(2,16,2): e(f"v_pk_fma_f32 v[{t}:{t+1}], v[{t+i}:{t+i+1}], v[{t+i}:{t+i+1}], v[{t}:{t+1}]")
        e(f"v_add_f32 v{t+17}, v{t}, v{t+1}")
    for g in range(n): wred(e,[T+28*g+17],T+28*g+18)
    e("s_mov_b64 exec, 15")
    for g in range(n): e(f"ds_write_b64 v{vW}, v[{T+28*g+16}:{T+28*g+17}] offset:{offs[g]}")
    e("s_mov_b64 exec, -1\ns_waitcnt lgkmcnt(0)\ns_barrier")
    for g in range(n):
        t=T+28*g
        e(f"ds_read_b128 v[{t}:{t+3}], v{vR} offset:{offs[g]}\nds_read_b128 v[{t+4}:{t+7}], v{vR} offset:{offs[g]+16}")
    e("s_waitcnt lgkmcnt(0)")
    for g,X in enumerate(Xs):
        t=T+28*g
        e(pk("add",t+8,t,t+2)); e(pk("add",t+10,t+4,t+6)); e(pk("add",t+8,t+8,t+10))
        e(f"v_mul_f32 v{t+8}, 0x3e800000, v{t+8}")
        for k in range(4): e(f"v_sub_f32 v{t+2*k}, v{t+2*k}, v{t+8}")
        e(f"""v_mul_f32 v{t}, v{t}, v{t}
v_fmac_f32 v{t}, v{t+2}, v{t+2}
v_fmac_f32 v{t}, v{t+4}, v{t+4}
v_fmac_f32 v{t}, v{t+6}, v{t+6}
v_mul_f32 v{t+9}, 0x3a800000, v{t+9}
v_fmac_f32 v{t+9}, 0x3e800000, v{t}""")
        rnd(e,t+8,t+10)
        e(f"""v_add_f32 v{t+9}, 0x3727c5ac, v{t+9}
v_cvt_pk_bf16_f32 v{t+9}, v{t+9}, v{t+9}
v_and_b32 v{t+9}, 0xffff0000, v{t+9}
v_sqrt_f32 v{t+9}, v{t+9}
v_cvt_pk_bf16_f32 v{t+9}, v{t+9}, v{t+9}
v_and_b32 v{t+9}, 0xffff0000, v{t+9}
v_rcp_f32 v{t+10}, v{t+9}
v_mov_b32 v{t+9}, v{t+8}
v_mov_b32 v{t+11}, v{t+10}""")
        for i in range(0,16,2): e(f"v_pk_add_f32 v[{X+i}:{X+i+1}], v[{X+i}:{X+i+1}], v[{t+8}:{t+9}] neg_lo:[0,1] neg_hi:[0,1]")
        for i in range(0,16,2): rnd(e,X+i,t+12+(i//2)%4)
        for i in range(0,16,2): e(pk("mul",X+i,X+i,t+10))
def modulate(e, X, OPC, SH, P, t):
    for i in range(0,16,2): rnd(e,X+i,t+(i//2)%4)
    for i in range(0,16,2): e(pk("mul",X+i,X+i,OPC+i))
    for i in range(0,16,2): rnd(e,X+i,t+(i//2)%4)
    for i in range(0,16,2): e(pk("add",X+i,X+i,SH+i))
    for i in range(8): e(f"v_cvt_pk_bf16_f32 v{P+i}, v{X+2*i}, v{X+2*i+1}")
def modload(e, d, vM, chunk):
    e(f"s_mov_b32 s{S_T0}, {MOD+chunk*4096}")
    for i in range(4): e(f"buffer_load_dwordx4 v[{d+4*i}:{d+4*i+3}], v{vM}, {WS}, s{S_T0} offen offset:{i*256} sc1")
def oneplus(e, d, t):
    for i in range(16): e(f"v_add_f32 v{d+i}, 1.0, v{d+i}")
    for i in range(0,16,2): rnd(e,d+i,t+(i//2)%4)
def red_lanes(e, vM, vH, vX, vW, vR, t):
    e(f"""v_lshrrev_b32 v{t}, 2, v0
v_and_b32 v{t+1}, 3, v0
s_lshl_b32 s{S_T0}, s{S_W}, 10
v_lshl_add_u32 v{vM}, v{t}, 4, s{S_T0}
s_lshl_b32 s{S_T0}, s{S_W}, 14
v_lshl_add_u32 v{vH}, v{t}, 10, s{S_T0}
v_lshl_add_u32 v{vH}, v{t+1}, 4, v{vH}
s_lshl_b32 s{S_T0}, s{S_W}, 9
v_lshl_add_u32 v{vX}, v{t}, 3, s{S_T0}
v_lshl_add_u32 v{vX}, v{t+1}, 11, v{vX}
v_lshlrev_b32 v{vR}, 5, v{t+1}
v_add_u32 v{vR}, {L_ST}, v{vR}
s_lshl_b32 s{S_T0}, s{S_W}, 3
v_add_u32 v{vW}, s{S_T0}, v{vR}""")
SB=f"s[{SRD_B}:{SRD_B+3}]"
pW=176; pC=44; pAcc=60; pT=68; pX=96; pN=240; pM=228; pH=229
def pro_loads(e):
    srd(e, SRD_A, P_WMOD, 1024*12288); srd(e, SRD_B, P_C, 2048)
    e(f"""v_lshrrev_b32 v{pT}, 2, v0
v_and_b32 v{pT+1}, 3, v0
s_lshl_b32 s{S_T0}, s{S_W}, 9
v_lshl_add_u32 v{pT+2}, v{pT}, 1, s{S_T0}""")
    for i in range(16): e(f"buffer_load_ushort v{pC+i}, v{pT+2}, {SB}, 0 offen offset:{i*32}")
    e(f"""s_mul_i32 s{S_T0}, s{S_W}, {256*12288}
s_cmp_lt_u32 s2, 192
s_cselect_b32 s{S_T0}, s{S_T0}, {hex(OOB)}
v_mul_u32_u24 v{pT+3}, 12288, v{pT}
v_lshl_add_u32 v{pT+3}, v{pT+1}, 4, v{pT+3}
v_add_u32 v{pT+3}, s{S_T0}, v{pT+3}
s_lshl_b32 s{S_T0}, s2, 6""")
    for i in range(16):
        e(f"buffer_load_dwordx4 v[{pW+4*i}:{pW+4*i+3}], v{pT+3}, {SA}, s{S_T0} offen")
        if i<15: e(f"s_add_u32 s{S_T0}, s{S_T0}, {16*12288}")
    srd(e, SRD_B, P_X, 2048*2048)
    red_lanes(e, pT+4, pT+5, pT+6, pT+7, pT+8, pT)
    e(f"s_lshl_b32 s{S_T0}, s2, 14\ns_add_u32 s{S_T1}, s{S_T0}, 8192")
    for g in range(2):
        for i in range(4): e(f"buffer_load_dwordx2 v[{pN+8*g+2*i}:{pN+8*g+2*i+1}], v{pT+6}, {SB}, s{S_T0+g} offen offset:{i*128}")
def pro_mod(e):
    l=e.lab("nomod"); l2=e.lab("nm2")
    e(f"s_cmp_ge_u32 s2, 192\ns_cbranch_scc1 {l}\ns_waitcnt vmcnt(24)")
    t=pX
    for i in range(16): e(f"v_lshlrev_b32 v{pC+i}, 16, v{pC+i}\nv_mul_f32 v{t+i}, 0xbfb8aa3b, v{pC+i}")
    for i in range(16): e(f"v_exp_f32 v{t+i}, v{t+i}")
    for i in range(16): e(f"v_add_f32 v{t+i}, 1.0, v{t+i}")
    for i in range(16): e(f"v_rcp_f32 v{t+i}, v{t+i}")
    for i in range(16): e(f"v_mul_f32 v{pC+i}, v{pC+i}, v{t+i}")
    for i in range(0,16,2): rnd(e,pC+i,t+i)
    for i in range(16):
        e(f"s_waitcnt vmcnt({23-i})")
        unpack(e,t+8*(i%2),pW+4*i,4)
        for j in range(8):
            if i==0: e(f"v_mul_f32 v{pAcc+j}, v{t+j}, v{pC}")
            else: e(f"v_fmac_f32 v{pAcc+j}, v{t+8*(i%2)+j}, v{pC+i}")
    wred(e,[pAcc+j for j in range(8)],t)
    e(f"""v_lshlrev_b32 v{t}, 5, v0
s_lshl_b32 s{S_T0}, s{S_W}, 7
s_add_u32 s{S_T0}, s{S_T0}, {L_MOD}
v_add_u32 v{t}, s{S_T0}, v{t}
s_mov_b64 exec, 15
ds_write_b128 v{t}, v[{pAcc}:{pAcc+3}]
ds_write_b128 v{t}, v[{pAcc+4}:{pAcc+7}] offset:16
s_mov_b64 exec, -1
s_waitcnt lgkmcnt(0)
s_barrier
s_cmp_lg_u32 s{S_W}, 0
s_cbranch_scc1 {l}
v_and_b32 v{t+1}, 31, v0
v_lshlrev_b32 v{t+1}, 2, v{t+1}
v_add_u32 v{t}, {L_MOD}, v{t+1}""")
    for w in range(4): e(f"ds_read_b32 v{t+2+w}, v{t} offset:{w*128}")
    e(f"""s_lshl_b32 s{S_T0}, s2, 7
s_add_u32 s{S_T0}, s{S_T0}, {MOD}
s_waitcnt lgkmcnt(0)
v_add_f32 v{t+2}, v{t+2}, v{t+3}
v_add_f32 v{t+4}, v{t+4}, v{t+5}
v_add_f32 v{t+2}, v{t+2}, v{t+4}
v_cvt_pk_bf16_f32 v{t+2}, v{t+2}, v{t+2}
v_and_b32 v{t+2}, 0xffff0000, v{t+2}
buffer_store_dword v{t+2}, v{t+1}, {WS}, s{S_T0} offen sc1
{l}:""")
def pro_ln(e):
    e(f"s_waitcnt vmcnt(0)\nv_mov_b32 v{pM}, v{pT+4}\nv_mov_b32 v{pH}, v{pT+5}")
    unpack(e,pX,pN,16)
    ln_norm(e,[pX,pX+16],pW-8,pT+7,pT+8,[0,128])
    for i in range(16): e(f"v_cvt_pk_bf16_f32 v{pN+i}, v{pX+2*i}, v{pX+2*i+1}")
def pro_fin(e):
    O=172; Sh=188; X=204; t=220
    modload(e,O,pM,1); modload(e,Sh,pM,0)
    e(f"""s_lshr_b32 s{S_T1}, s2, 2
s_lshl_b32 s{S_T1}, s{S_T1}, 16
s_and_b32 s{S_T2}, s2, 3
s_lshl_b32 s{S_T2}, s{S_T2}, 7
s_add_u32 s{S_T1}, s{S_T1}, s{S_T2}
s_add_u32 s{S_T1}, s{S_T1}, {H1}
s_waitcnt vmcnt(4)""")
    oneplus(e,O,t)
    e("s_waitcnt vmcnt(0)")
    for g in range(2):
        unpack(e,X,pN+8*g,8)
        for i in range(0,16,2): e(pk("mul",X+i,X+i,O+i))
        for i in range(0,16,2): rnd(e,X+i,t+(i//2)%4)
        for i in range(0,16,2): e(pk("add",X+i,X+i,Sh+i))
        for i in range(8): e(f"v_cvt_pk_bf16_f32 v{pN+8*g+i}, v{X+2*i}, v{X+2*i+1}")
        for ab in range(2): e(f"buffer_store_dwordx4 v[{pN+8*g+4*ab}:{pN+8*g+4*ab+3}], v{pH}, {WS}, s{S_T1} offen offset:{ab*512+g*64} sc1")
    e(f"""s_lshl_b32 s{S_T1}, s2, 4
s_lshl_b32 s{S_T2}, s{S_W}, 2
s_add_u32 s{S_T1}, s{S_T1}, s{S_T2}
s_add_u32 s{S_T1}, s{S_T1}, {F_H1}
v_mov_b32 v{t+1}, 0""")
    lane0(e,t,t+1)
    e(f"v_mov_b32 v{t+1}, 1\ns_waitcnt vmcnt(0)\nbuffer_store_dword v{t+1}, v{t}, {WS}, s{S_T1} offen sc1")
R_TG=66; R_P=67; R_A=68; R_B=69; R_FP=74
def feval(e,F):
    e(f"v_and_b32 v{F}, v{F}, v{F+1}\nv_and_b32 v{F+2}, v{F+2}, v{F+3}\nv_and_b32 v{F}, v{F}, v{F+2}\nv_cmp_ne_u32 vcc, 1, v{F}")
def red(e, first, abort, done, STEP):
    vM=1;vH=2;vX=3;vW=4;vR=5;vP=6;vFl=7;vFo=8;vOne=9;vQ=10;t=12;F=16
    G=20; O=36; Sh=52; PS=[68,132]; XS=[196,204]; X=212; T=228; PK=228; PX=248; R=228
    FP=F_P1 if first else F_P2; NL=20 if first else 18; NS=4+(1 if TL[0] else 0)
    R_LO=82; R_HI=83
    red_lanes(e,vM,vH,vX,vW,vR,t)
    e(f"""s_lshl_b32 s{S_T0}, s{S_W}, 12
v_lshl_add_u32 v{vP}, v0, 4, s{S_T0}
s_lshl_b32 s{S_T0}, s{S_W}, 11
v_lshl_add_u32 v{vQ}, v0, 4, s{S_T0}
v_lshrrev_b32 v{vFl}, 5, v0
v_mul_u32_u24 v{vFl}, {512*STEP-512}, v{vFl}
v_lshl_add_u32 v{vFl}, v0, 4, v{vFl}
s_lshl_b32 s{S_T0}, s{R_TG}, 4
s_lshl_b32 s{S_T1}, s{S_W}, 2
s_add_u32 s{S_T0}, s{S_T0}, s{S_T1}
v_mov_b32 v{vOne}, s{S_T0}""")
    lane0(e,vFo,vOne); e(f"v_mov_b32 v{vOne}, 1")
    if first:
        modload(e,G,vM,2); modload(e,O,vM,4); modload(e,Sh,vM,3)
        srd(e, SRD_B, P_X, 2048*2048)
        e("s_waitcnt vmcnt(0)"); oneplus(e,O,t)
    else:
        modload(e,G,vM,5); srd(e, SRD_B, P_OUT, 2048*2048)
    e(f"s_lshl_b32 s{R_TG}, s{R_TG}, 13\ns_mov_b32 s{G_NS}, s{G_SEG}")
    def loads(k):
        P=PS[k]; XR=XS[k]
        e(f"""s_lshl_b32 s{S_T2}, s{G_NS}, 16
s_add_u32 s{S_T2}, s{S_T2}, s{R_TG}
s_lshl_b32 s{R_P}, s{S_T2}, 3
s_add_u32 s{R_P}, s{R_P}, {P1 if first else P2}""")
        for kc in range(4):
            for i in range(4): e(f"buffer_load_dwordx4 v[{P+16*kc+4*i}:{P+16*kc+4*i+3}], v{vP}, {WS}, s{R_P} offen offset:{i*1024} sc1")
            if kc<3: e(f"s_add_u32 s{R_P}, s{R_P}, 16384")
        if first:
            for i in range(4): e(f"buffer_load_dwordx2 v[{XR+2*i}:{XR+2*i+1}], v{vX}, {SB}, s{S_T2} offen offset:{i*128}")
        else:
            e(f"s_add_u32 s{S_T2}, s{S_T2}, {X1}")
            for ab in range(2): e(f"buffer_load_dwordx4 v[{XR+4*ab}:{XR+4*ab+3}], v{vQ}, {WS}, s{S_T2} offen offset:{ab*1024} sc1")
        e(f"s_add_u32 s{G_NS}, s{G_NS}, {STEP}")
    def fl(seg,add): e(f"s_lshl_b32 s{S_T1}, s{seg}, 9\ns_add_u32 s{S_T1}, s{S_T1}, {FP+512*add*STEP}\nbuffer_load_dwordx4 v[{F}:{F+3}], v{vFl}, {WS}, s{S_T1} offen sc1")
    def flag(back): e(f"s_lshl_b32 s{S_T0}, s{G_SEG}, 7\ns_add_u32 s{S_T0}, s{S_T0}, {F_H2-128*back*STEP}\nbuffer_store_dword v{vOne}, v{vFo}, {WS}, s{S_T0} offen sc1")
    top=[e.lab("rt"),e.lab("rt")]; fet=[e.lab("rf"),e.lab("rf")]
    for k in range(2):
        P=PS[k]; XR=XS[k]
        ok=e.lab("rk")
        e(f"{fet[k]}:"); fl(G_NS,0); e("s_waitcnt vmcnt(0)"); feval(e,F)
        e(f"""s_cmp_eq_u32 vcc_lo, 0
s_cbranch_scc1 {ok}
s_sub_u32 s{S_BUD}, s{S_BUD}, 1
s_cbranch_scc0 {fet[k]}
s_branch {abort}
{ok}:""")
        fl(G_NS,1); loads(k)
        e(f"s_mov_b32 s{G_PEND}, 0\ns_waitcnt vmcnt(0)\n{top[k]}:")
        feval(e,F)
        if first:
            l=e.lab("rp")
            e(f"s_cmp_eq_u32 s{G_PEND}, 2\ns_cbranch_scc0 {l}\ns_mov_b32 s{G_PEND}, 1"); flag(2); e(f"{l}:")
        e(f"s_mov_b64 s[{R_LO}:{R_HI}], vcc")
        for i in range(0,16,2): e(pk("add",P+i,P+i,P+16+i))
        for i in range(0,16,2): e(pk("add",P+32+i,P+32+i,P+48+i))
        for i in range(0,16,2): e(pk("add",R+i,P+i,P+32+i))
        unpack(e,X,XR,8)
        fl(G_SEG,2)
        la=e.lab("ra"); lb=e.lab("rb")
        e(f"""s_lshl_b32 s{R_A}, s{G_SEG}, 16
s_add_u32 s{R_A}, s{R_A}, s{R_TG}
s_sub_u32 s{S_T0}, s{G_NS}, s{G_SEG}
s_cmp_eq_u32 s{S_T0}, {STEP}
s_cbranch_scc0 {la}
s_cmp_lt_u32 s{G_NS}, 64
s_cselect_b32 s{R_LO}, s{R_LO}, 1
s_cmp_eq_u32 s{R_LO}, 0
s_cbranch_scc0 {lb}""")
        loads(1-k)
        e(f"""{la}:
s_cmp_lt_u32 s{G_NS}, 64
s_cselect_b32 s{R_HI}, s{R_HI}, 1
s_cmp_eq_u32 s{R_HI}, 0
s_cbranch_scc0 {lb}""")
        loads(k); e(f"{lb}:")
        for i in range(0,16,2): rnd(e,R+i,t+(i//2)%4)
        for i in range(0,16,2): e(pk("mul",R+i,R+i,G+i))
        for i in range(0,16,2): rnd(e,R+i,t+(i//2)%4)
        for i in range(0,16,2): e(pk("add",X+i,X+i,R+i))
        for i in range(8): e(f"v_cvt_pk_bf16_f32 v{PX+i}, v{X+2*i}, v{X+2*i+1}")
        if first:
            e(f"s_add_u32 s{R_B}, s{R_A}, {X1}")
            for ab in range(2): e(f"buffer_store_dwordx4 v[{PX+4*ab}:{PX+4*ab+3}], v{vQ}, {WS}, s{R_B} offen offset:{ab*1024} sc1")
            unpack(e,X,PX,8)
            ln_norm(e,[X],T,vW,vR,[0])
            e(f"v_xor_b32 v{vW}, 128, v{vW}\nv_xor_b32 v{vR}, 128, v{vR}")
            modulate(e,X,O,Sh,PK,t)
            e(f"""s_lshl_b32 s{S_T1}, s{G_SEG}, 16
s_lshr_b32 s{S_T0}, s{R_TG}, 7
s_add_u32 s{S_T1}, s{S_T1}, s{S_T0}
s_add_u32 s{S_T1}, s{S_T1}, {H2}""")
            for ab in range(2): e(f"buffer_store_dwordx4 v[{PK+4*ab}:{PK+4*ab+3}], v{vH}, {WS}, s{S_T1} offen offset:{ab*512} sc1")
        else:
            for i in range(4): e(f"buffer_store_dwordx2 v[{PX+2*i}:{PX+2*i+1}], v{vX}, {SB}, s{R_A} offen offset:{i*128}")
        tl(e)
        pb=e.lab("rb"); d3=e.lab("rd")
        e(f"""s_sub_u32 s{S_T0}, s{G_NS}, s{G_SEG}
s_add_u32 s{G_SEG}, s{G_SEG}, {STEP}
s_cmp_eq_u32 s{S_T0}, {STEP}
s_cbranch_scc1 {pb}
s_add_u32 s{G_PEND}, s{G_PEND}, 1
s_cmp_eq_u32 s{S_T0}, {3*STEP}
s_cbranch_scc1 {d3}
s_waitcnt vmcnt({NS})
s_branch {top[1-k]}
{d3}:
s_waitcnt vmcnt({NS+NL})
s_branch {top[1-k]}
{pb}:""")
        if first:
            l=e.lab("rq")
            e(f"s_waitcnt vmcnt(0)\ns_cmp_eq_u32 s{G_PEND}, 0\ns_cbranch_scc1 {l}"); flag(2); e(f"{l}:"); flag(1)
        e(f"s_cmp_lt_u32 s{G_SEG}, 64\ns_cbranch_scc0 {done}")
        if k==1: e(f"s_branch {fet[0]}")
A_H=65; A_SC=66; A_MK=68; A_FP=100
def att(e, abort, done):
    vA=1;vKM=2;vVM=3;vF1=4;vF2=5;vFo=6;vOne=7;t=8;F=16;Pb=20;m=30;F2=96
    KMr=128;VMr=160;S=168;SM=184;O=32
    e(f"""s_lshl_b32 s{S_T0}, s{A_H}, 13
v_lshl_add_u32 v{vA}, v0, 4, s{S_T0}
v_lshrrev_b32 v{t}, 5, v0
v_and_b32 v{t+1}, 7, v0
s_lshl_b32 s{S_T0}, s{A_H}, 11
v_lshl_add_u32 v{vKM}, v{t}, 7, s{S_T0}
v_lshl_add_u32 v{vKM}, v{t+1}, 4, v{vKM}
v_lshl_add_u32 v{vVM}, v0, 3, s{S_T0}
s_lshl_b32 s{S_T0}, s{A_H}, 4
v_mov_b32 v{vF2}, s{S_T0}
v_min_u32 v{vF1}, 2, v0
v_lshl_add_u32 v{vF1}, v{vF1}, 9, s{S_T0}
v_and_b32 v{t+1}, 31, v0
v_lshlrev_b32 v{t}, 2, v{t}
v_sub_u32 v{t}, v{t+1}, v{t}
s_and_b32 s{S_T0}, s{A_H}, 7
s_lshl_b32 s{S_T0}, s{S_T0}, 2
s_lshl_b32 s{S_T1}, s{G_X}, 11
s_add_u32 s{S_T0}, s{S_T0}, s{S_T1}
v_mov_b32 v{vOne}, s{S_T0}
s_mov_b32 s{S_STEP}, 0
s_mov_b32 s3, s{S_MODE}""")
    def oflag():
        l=e.lab("of"); e(f"s_cmp_eq_u32 s{S_STEP}, 0\ns_cbranch_scc1 {l}\ns_mov_b32 s{S_STEP}, 0")
        bymode(e,3,lambda sc: e(f"buffer_store_dword v{vOne}, v{vFo}, {WS}, s{A_FP} offen{sc}")); e(f"{l}:")
    lane0(e,vFo,vOne)
    e(f"v_mov_b32 v{vOne}, 1\ns_mov_b32 s{A_SC}, 0x3db504f3\ns_mov_b32 s{A_SC+1}, 0x3db504f3")
    for r in range(16): e(f"v_cmp_gt_i32 s[{A_MK+2*r}:{A_MK+2*r+1}], {8*(r//4)+r%4}, v{t}")
    def qkv(k,add):
        e(f"s_lshl_b32 s{S_T3}, s{G_SEG}, 18")
        for n,base in enumerate((QB,KB,VB)):
            reg=96*k+32*n
            for hf in range(2):
                e(f"s_add_u32 s{S_T0}, s{S_T3}, {base+hf*4096+(add<<18)}")
                for j in range(4): e(f"buffer_load_dwordx4 a[{reg+16*hf+4*j}:{reg+16*hf+4*j+3}], v{vA}, {WS}, s{S_T0} offen offset:{j*1024} sc1")
        e(f"""s_mul_i32 s{S_T0}, s{G_SEG}, 1536
s_add_u32 s{S_T0}, s{S_T0}, {F_KV+1536*(add+2)}
buffer_load_dwordx4 v[{F}:{F+3}], v{vF1}, {WS}, s{S_T0} offen sc1
s_lshl_b32 s{S_T0}, s{G_SEG}, 9
s_add_u32 s{S_T0}, s{S_T0}, {F_KM+512*add}
buffer_load_dwordx4 v[{F2}:{F2+3}], v{vF2}, {WS}, s{S_T0} offen sc1""")
    e(f"s_mul_i32 s{S_T1}, s{G_SEG}, 1536\ns_add_u32 s{S_T1}, s{S_T1}, {F_KV}")
    poll4(e,F,vF1,S_T1,abort); qkv(0,0); e("s_waitcnt vmcnt(0)")
    def scale(b,n):
        for i in range(0,n,2): rnd(e,b+i,t+(i//2)%4)
        for i in range(0,n,2): e(f"v_pk_mul_f32 v[{b+i}:{b+i+1}], v[{b+i}:{b+i+1}], s[{A_SC}:{A_SC+1}]")
        for i in range(0,n,2): rnd(e,b+i,t+(i//2)%4)
    lp=e.lab("al"); e(f"{lp}:")
    for st in range(2):
        Q=96*st; K=Q+32; V=Q+64
        for k in range(8): e(f"v_mfma_f32_32x32x16_bf16 v[{S}:{S+15}], a[{K+4*k}:{K+4*k+3}], a[{Q+4*k}:{Q+4*k+3}], {'0' if k==0 else f'v[{S}:{S+15}]'}")
        l1=e.lab("a1"); l2=e.lab("a2")
        feval(e,F2)
        e(f"s_cbranch_vccz {l1}\ns_waitcnt vmcnt(0)"); oflag()
        e(f"s_lshl_b32 s{S_T1}, s{G_SEG}, 9\ns_add_u32 s{S_T1}, s{S_T1}, {F_KM}")
        poll4(e,F2,vF2,S_T1,abort)
        e(f"{l1}:\ns_lshl_b32 s{S_T0}, s{G_SEG}, 16\ns_add_u32 s{S_T1}, s{S_T0}, {VM}\ns_add_u32 s{S_T0}, s{S_T0}, {KM}")
        for k in range(8): e(f"buffer_load_dwordx4 v[{KMr+4*k}:{KMr+4*k+3}], v{vKM}, {WS}, s{S_T0} offen offset:{k*256} sc1")
        for c in range(4): e(f"buffer_load_dwordx2 v[{VMr+2*c}:{VMr+2*c+1}], v{vVM}, {WS}, s{S_T1} offen offset:{c*512} sc1")
        feval(e,F)
        e(f"""s_cbranch_vccz {l2}
s_cmp_ge_u32 s{G_SEG}, 62
s_cbranch_scc1 {l2}
s_mul_i32 s{S_T1}, s{G_SEG}, 1536
s_add_u32 s{S_T1}, s{S_T1}, {F_KV+2*1536}""")
        poll4(e,F,vF1,S_T1,abort)
        e(f"{l2}:"); qkv(1-st,2)
        scale(S,16)
        e(f"v_mov_b32 v{m+1}, 0xce6e6b28")
        for r in range(16): e(f"v_cndmask_b32 v{S+r}, v{S+r}, v{m+1}, s[{A_MK+2*r}:{A_MK+2*r+1}]")
        e(f"v_max3_f32 v{m}, v{S}, v{S+1}, v{S+2}")
        for r in range(3,15,2): e(f"v_max3_f32 v{m}, v{m}, v{S+r}, v{S+r+1}")
        e(f"v_max_f32 v{m}, v{m}, v{S+15}")
        for k in range(8):
            e(f"s_waitcnt vmcnt({26+11-k})\nv_mfma_f32_32x32x16_bf16 v[{SM}:{SM+15}], v[{KMr+4*k}:{KMr+4*k+3}], a[{Q+4*k}:{Q+4*k+3}], {'0' if k==0 else f'v[{SM}:{SM+15}]'}")
        e("s_waitcnt vmcnt(26)"); oflag()
        scale(SM,4)
        e(f"""v_max3_f32 v{m}, v{m}, v{SM}, v{SM+1}
v_max3_f32 v{m}, v{m}, v{SM+2}, v{SM+3}
v_mov_b32 v{m+1}, v{m}
v_permlane32_swap_b32 v{m+1}, v{m}
v_max_f32 v{m}, v{m}, v{m+1}
v_mul_f32 v{m}, {LOG2E}, v{m}
s_mov_b32 s{S_T0}, {LOG2E}""")
        for r in range(20): e(f"v_fma_f32 v{S+r}, v{S+r}, s{S_T0}, -v{m}")
        for r in range(20): e(f"v_exp_f32 v{S+r}, v{S+r}")
        e(pk("add",t,S,S+2)); e(pk("add",t+2,S+4,S+6))
        for i in range(8,20,4): e(pk("add",t,t,S+i)); e(pk("add",t+2,t+2,S+i+2))
        e(pk("add",t,t,t+2))
        e(f"""v_add_f32 v{m}, v{t}, v{t+1}
v_mov_b32 v{m+1}, v{m}
v_permlane32_swap_b32 v{m+1}, v{m}
v_add_f32 v{m}, v{m}, v{m+1}
v_rcp_f32 v{m}, v{m}
v_mov_b32 v{m+1}, v{m}""")
        for i in range(0,20,2): e(pk("mul",S+i,S+i,m))
        for i in range(10): e(f"v_cvt_pk_bf16_f32 v{Pb+i}, v{S+2*i}, v{S+2*i+1}")
        for c in range(4): e(f"v_mfma_f32_32x32x8_bf16 v[{O+16*c}:{O+16*c+15}], v[{VMr+2*c}:{VMr+2*c+1}], v[{Pb+8}:{Pb+9}], 0")
        for ab in range(2):
            for c in range(4): e(f"v_mfma_f32_32x32x16_bf16 v[{O+16*c}:{O+16*c+15}], a[{V+8*c+4*ab}:{V+8*c+4*ab+3}], v[{Pb+4*ab}:{Pb+4*ab+3}], v[{O+16*c}:{O+16*c+15}]")
        e(f"s_lshl_b32 s{S_T0}, s{G_SEG}, 18\ns_add_u32 s{S_T0}, s{S_T0}, {OB}\ns_add_u32 s{S_T1}, s{S_T0}, 4096")
        for c in range(4):
            for i in range(8): e(f"v_cvt_pk_bf16_f32 v{KMr+8*c+i}, v{O+16*c+2*i}, v{O+16*c+2*i+1}")
        bymode(e,3,lambda sc: [e(f"buffer_store_dwordx4 v[{KMr+8*c+4*ab}:{KMr+8*c+4*ab+3}], v{vA}, {WS}, s{S_T0+c//2} offen offset:{(c%2)*2048+ab*1024}{sc}") for c in range(4) for ab in range(2)])
        e(f"s_lshl_b32 s{A_FP}, s{G_SEG}, 5\ns_add_u32 s{A_FP}, s{A_FP}, {F_O}\ns_mov_b32 s{S_STEP}, 1")
        tl(e)
        e(f"s_add_u32 s{G_SEG}, s{G_SEG}, 2\ns_waitcnt vmcnt({8+(1 if TL[0] else 0)})")
    e(f"s_cmp_lt_u32 s{G_SEG}, 64\ns_cbranch_scc1 {lp}\ns_waitcnt vmcnt(0)"); oflag(); e(f"s_branch {done}")
```

```python
import sys
from asmlib import *
from common import *
from roles import *
import chain as CH
KW={a.split("=")[0]:int(a.split("=")[1]) for a in sys.argv[2:] if "=" in a}
SPLIT=KW.get("split",50); OPT.update(KW)
prof = "prof" in sys.argv
out=sys.argv[1]
N=KNAME+"_kernel"
e=Asm()
CH.TL[0]="tl" in sys.argv
import gemm as GM; GM.GP[0]="gp" in sys.argv
header(e,N); entry(e,"EXIT"); tl_init(e); tl(e); ticket_issue(e); pro_loads(e); ticket_finish(e,L_TK,41)
pro_mod(e); tl(e); pro_ln(e)
if CH.TL[0]: e(f"s_lshl_b32 s4, s{S_TEAM}, 8\ns_add_u32 s4, s4, s{S_RANK}"); tl_put(e,False)
T_KQ,T_V,T_WO,T_F1,T_F2,T_CH,T_NONE=range(7)
e(f"""ROLE0:
s_mov_b32 s{G_JOB}, 0
s_mov_b32 s{G_TYPE}, {T_NONE}
s_cmp_ge_u32 s{S_RANK}, 32
s_cbranch_scc1 ARR
s_sub_u32 s{G_X}, s{S_TEAM}, 4
s_cbranch_scc0 ARR
s_mov_b32 s{G_TYPE}, {T_CH}""")
chain_pre(e,"sc1")
e(f"ARR:\ns_cmp_eq_u32 s{S_MODE}, 0\ns_cbranch_scc0 ARR2")
arrive(e,32,230)
e("s_branch ARR3\nARR2:")
arrive(e,40,230)
e(f"""ARR3:
s_cmp_ge_u32 s{S_RANK}, 32
s_cbranch_scc1 HOOK
s_cmp_eq_u32 s{G_TYPE}, {T_CH}
s_cbranch_scc0 JOB""")
load_weights(e)
e("s_branch HOOK")
e(f"""NEXT:
s_add_u32 s{G_JOB}, s{G_JOB}, 1
JOB:
s_lshr_b32 s{S_T0}, s{S_RANK}, 3
s_and_b32 s{S_T1}, s{S_RANK}, 7
s_mov_b32 s{G_SEG}, 0
s_mov_b32 s{G_END}, {SPLIT}
s_cmp_eq_u32 s{S_T0}, 3
s_cbranch_scc0 JNT
s_cmp_eq_u32 s{G_JOB}, 3
s_cbranch_scc1 JMISC
s_mov_b32 s{S_T0}, s{G_JOB}
s_mov_b32 s{G_SEG}, {SPLIT}
s_mov_b32 s{G_END}, 64
s_branch JQKV
JNT:
s_cmp_eq_u32 s{G_JOB}, 0
s_cbranch_scc0 JB
JQKV:
s_lshl_b32 s{S_T2}, s{G_X}, 3
s_add_u32 s{S_T1}, s{S_T1}, s{S_T2}
s_lshl_b32 s{G_COL}, s{S_T1}, 8
s_lshl_b32 s{G_OUTB}, s{S_T1}, 13
s_lshl_b32 s{G_FOB}, s{S_T1}, 4
s_lshl_b32 s{S_T2}, s{S_W}, 2
s_add_u32 s{G_FOB}, s{G_FOB}, s{S_T2}
s_lshl_b32 s{S_T2}, s{S_T0}, 9
s_add_u32 s{G_FOB}, s{G_FOB}, s{S_T2}
s_add_u32 s{G_FOB}, s{G_FOB}, {F_KV}
s_mov_b32 s{G_INB}, {H1}
s_mov_b32 s{G_FIB}, {F_H1}
s_mov_b32 s{G_FN}, 3
s_mov_b32 s{G_TYPE}, {T_KQ}
s_cmp_eq_u32 s{S_T0}, 1
s_cbranch_scc1 JV
s_cmp_eq_u32 s{S_T0}, 2
s_cbranch_scc1 JQ
s_add_u32 s{G_OUTB}, s{G_OUTB}, {KB}""")
srd(e,SRD_A,P_WK,0x800000)
e(f"s_branch WLQ\nJV:\ns_add_u32 s{G_OUTB}, s{G_OUTB}, {VB}\ns_mov_b32 s{G_TYPE}, {T_V}")
srd(e,SRD_A,P_WV,0x800000)
e(f"s_branch WLQ\nJQ:\ns_add_u32 s{G_OUTB}, s{G_OUTB}, {QB}")
srd(e,SRD_A,P_WQ,0x800000)
e("WLQ:")
wload(e,8192,'P',1024)
e(f"s_cmp_eq_u32 s{G_JOB}, 0\ns_cbranch_scc0 MAIN\nHOOK:\ns_cmp_eq_u32 s{S_MODE}, 0\ns_cbranch_scc0 HOOK2")
tl(e,226)
wait_all(e,32,230,"ABORT")
e(f"s_cmp_lg_u64 vcc, 0\ns_cselect_b32 s{S_MODE}, 1, 0")
pro_fin(e)
tl(e,226)
e(f"""s_cmp_eq_u32 s{S_MODE}, 0
s_cbranch_scc1 MAIN
s_lshr_b32 s{S_TEAM}, s2, 5
s_and_b32 s{S_RANK}, s2, 31
s_waitcnt vmcnt(0)
s_barrier
s_branch ROLE0
HOOK2:""")
wait_all(e,40,230,"ABORT")
e(f"""MAIN:
s_cmp_eq_u32 s{G_TYPE}, {T_KQ}
s_cbranch_scc1 M_KQ
s_cmp_eq_u32 s{G_TYPE}, {T_V}
s_cbranch_scc1 M_V
s_cmp_eq_u32 s{G_TYPE}, {T_CH}
s_cbranch_scc0 ABORT
s_cmp_eq_u32 s{S_MODE}, 0
s_cbranch_scc0 M_CS""")
chain_main(e,"","ABORT","JR2",check_kv=True,prof=prof)
e("M_CS:")
chain_main(e,"sc1","ABORT","JR2",check_kv=True)
e("M_KQ:"); gemm_main(e,False,"B",64,16,64,18,1536,"ABORT","NEXT")
e("M_V:");  gemm_main(e,True,"B",64,16,64,18,1536,"ABORT","NEXT")
e(f"""JB:
s_cmp_eq_u32 s{G_JOB}, 1
s_cbranch_scc0 DONE
s_mov_b32 s{G_END}, 64
s_lshl_b32 s{S_T2}, s{G_X}, 3
s_add_u32 s{S_T2}, s{S_T2}, s{S_T1}
s_lshl_b32 s{G_FOB}, s{S_T2}, 4
s_lshl_b32 s{S_T2}, s{S_W}, 2
s_add_u32 s{G_FOB}, s{G_FOB}, s{S_T2}
s_lshl_b32 s{G_INB}, s{G_X}, 16
s_lshl_b32 s{G_COL}, s{S_T1}, 8
s_lshl_b32 s{G_OUTB}, s{S_T1}, 11
s_lshl_b32 s{S_T2}, s{G_X}, 14
s_add_u32 s{G_OUTB}, s{G_OUTB}, s{S_T2}
s_cmp_eq_u32 s{S_T0}, 1
s_cbranch_scc1 JF1
s_cmp_eq_u32 s{S_T0}, 2
s_cbranch_scc1 JF2
s_add_u32 s{G_FOB}, s{G_FOB}, {F_P1}
s_add_u32 s{G_INB}, s{G_INB}, {OB}
s_add_u32 s{G_OUTB}, s{G_OUTB}, {P1}
s_lshl_b32 s{S_T2}, s{G_X}, 21
s_add_u32 s{G_COL}, s{G_COL}, s{S_T2}
s_lshl_b32 s{G_FIB}, s{G_X}, 11
s_add_u32 s{G_FIB}, s{G_FIB}, {F_O}
s_mov_b32 s{G_FN}, 1""")
srd(e,SRD_A,P_WO,0x800000); wload(e,2048,'Q',1024)
gemm_main(e,False,"P",64,18,32,19,512,"ABORT","DONE")
e(f"""JF2:
s_add_u32 s{G_FOB}, s{G_FOB}, {F_P2}
s_add_u32 s{G_INB}, s{G_INB}, {FB}
s_add_u32 s{G_OUTB}, s{G_OUTB}, {P2}
s_mul_i32 s{S_T2}, s{G_X}, {896*2048}
s_add_u32 s{G_COL}, s{G_COL}, s{S_T2}
s_lshl_b32 s{G_FIB}, s{G_X}, 7
s_add_u32 s{G_FIB}, s{G_FIB}, {F_F}
s_mov_b32 s{G_FN}, 6""")
srd(e,SRD_A,P_W2,3584*2048); wload(e,2048,'Q',896)
gemm_main(e,False,"P",56,18,512,19,512,"ABORT","DONE")
e(f"""JF1:
s_cmp_eq_u32 s{S_T1}, 7
s_cbranch_scc1 DONE
s_add_u32 s{G_FOB}, s{G_FOB}, {F_F}
s_lshl_b32 s{G_OUTB}, s{S_T1}, 13
s_add_u32 s{G_OUTB}, s{G_OUTB}, s{G_INB}
s_add_u32 s{G_OUTB}, s{G_OUTB}, {FB}
s_mov_b32 s{G_INB}, {H2}
s_mul_i32 s{S_T2}, s{G_X}, {7*256}
s_add_u32 s{G_COL}, s{G_COL}, s{S_T2}
s_mov_b32 s{G_FIB}, {F_H2}
s_mov_b32 s{G_FN}, 7""")
srd(e,SRD_A,P_W1,1024*7168); wload(e,7168,'P',1024)
gemm_main(e,False,"R",64,16,128,18,512,"ABORT","DONE")
e(f"""JMISC:
s_cmp_lt_u32 s{S_T1}, 4
s_cbranch_scc1 JATT
s_lshl_b32 s{R_TG}, s{G_X}, 1
s_and_b32 s{S_T2}, s{S_T1}, 1
s_add_u32 s{R_TG}, s{R_TG}, s{S_T2}
s_bfe_u32 s{G_SEG}, s{S_T1}, 0x10001""")
red(e,True,"ABORT","DONE",2)
e(f"""JR2:
s_and_b32 s{R_TG}, s{S_RANK}, 7
s_lshr_b32 s{G_SEG}, s{S_RANK}, 3
s_lshl_b32 s{S_T0}, s{S_TEAM}, 2
s_add_u32 s{G_SEG}, s{G_SEG}, s{S_T0}""")
tl(e); red(e,False,"ABORT","DONE",16)
e(f"""JATT:
s_lshl_b32 s{S_T1}, s{S_T1}, 2
s_add_u32 s{S_T1}, s{S_T1}, s{S_W}
s_lshr_b32 s{G_SEG}, s{S_T1}, 3
s_and_b32 s{S_T1}, s{S_T1}, 7
s_lshl_b32 s{A_H}, s{G_X}, 3
s_add_u32 s{A_H}, s{A_H}, s{S_T1}""")
att(e,"ABORT","DONE")
e("DONE:"); tl(e); e("s_waitcnt vmcnt(0)\ns_endpgm")
abort_code(e,"ABORT","EXIT")
ref=open("cdna_kernels/"+KNAME+".s.ref").read()
head=ref[:ref.index("; @launch")]
txt=head+"; @launch grid=(256,1,1) block=(256,1,1) lds=147456\n.amdgcn_target \"amdgcn-amd-amdhsa--gfx950\"\n"+e.finish()+kdesc(N)
open(out,"w").write(txt); print("nops",e.nops,"lines",txt.count("\n"),"bytes",len(txt))
```

```python
from layout import *
from chain import *
G_SEG=64; G_END=65; G_INB=66; G_FIB=67; G_OUTB=68; G_FOB=69; G_M0=70; G_PEND=73; G_IN=74; G_JOB=75; G_FP=76; G_COL=77; G_TYPE=78; G_X=79; G_NS=80; G_FN=81
gRd=1; gIn=2; gFl=3; gOut=4; gFo=5; gOne=6; gIx=7; gT=8; gF=16; gA0=32; gA1=48; gR=64; gP=96
SA=f"s[{SRD_A}:{SRD_A+3}]"
def wload(e, stride, perm, nrows):
    vB=gT; vq=gT+1; t=gT+2; t2=gT+3; vc=gT+4; M16=OPT.get('m16',1)
    e(f"""v_lshrrev_b32 v{t}, 2, v0
s_mov_b32 s{S_T0}, {stride}
v_mul_lo_u32 v{vB}, v{t}, s{S_T0}
v_and_b32 v{t2}, 3, v0
v_lshl_add_u32 v{vB}, v{t2}, 4, v{vB}
s_lshl_b32 s{S_T0}, s{S_W}, 6
s_add_u32 s{S_T0}, s{S_T0}, s{G_COL}
v_add_u32 v{vB}, s{S_T0}, v{vB}
s_lshl_b32 s{S_T4}, s{S_W}, 15
v_and_b32 v{t}, 3, v{t}
v_mov_b32 v{vq}, 0""")
    if not M16: e(f"""v_lshrrev_b32 v{vq}, 5, v0
v_lshl_add_u32 v{vq}, v{vq}, {7 if perm=='P' else 2}, v{t}
v_lshlrev_b32 v{vq}, 6, v{vq}
v_lshl_add_u32 v{vq}, v{t2}, 3, v{vq}
v_bfe_u32 v{t}, v0, 4, 1
v_lshl_add_u32 v{vq}, v{t}, 5, v{vq}
v_add_u32 v{vq}, s{S_T4}, v{vq}""")
    else:
        e(f"""v_bfe_u32 v{vq}, v0, 4, 1
v_lshl_add_u32 v{t}, v{vq}, {7 if perm=='P' else 2}, v{t}
v_lshrrev_b32 v{vq}, 5, v0
v_lshl_add_u32 v{t}, v{vq}, {2 if perm=='P' else 4}, v{t}
v_lshlrev_b32 v{vq}, 6, v{t}
v_add_u32 v{vq}, s{S_T4}, v{vq}
v_lshlrev_b32 v{t}, 3, v{t2}
v_and_b32 v{vc}, 2, v{t2}
v_lshl_add_u32 v{vc}, v{vc}, 3, v{t}
s_cmp_eq_u32 s{G_TYPE}, 1
s_cselect_b64 vcc, -1, 0
s_cselect_b32 s{S_T0}, 32, 16
v_cndmask_b32 v{t}, v{vc}, v{t}, vcc
v_add_u32 v{vq}, v{vq}, v{t}
v_add_u32 v{vc}, s{S_T0}, v{vq}""")
    nb=(nrows+255)//256
    cnt=[min(256,nrows-256*b)//16 for b in range(nb)]
    def dma(b):
        for i in range(cnt[b]):
            e(f"s_add_u32 m0, s{S_T4}, {(b%2)*16384+i*1024}\ns_mov_b32 s{S_T0}, {(256*b+16*i)*stride}\nbuffer_load_dwordx4 v{vB}, {SA}, s{S_T0} offen lds")
    def tr(b):
        for k in range(cnt[b]):
            ks=16*b+k
            if M16:
                m=k>>1; c=k&1
                for p in range(2):
                    off=(b%2)*16384+((64*p+8*m) if perm=='P' else (32*m+8*p))*64
                    e(f"ds_read_b64_tr_b16 a[{4*ks+2*p}:{4*ks+2*p+1}], v{vc if c else vq} offset:{off}")
                continue
            for p in range(2):
                off=(b%2)*16384+((64*p+4*k) if perm=='P' else (16*k+8*p))*64
                e(f"ds_read_b64_tr_b16 a[{4*ks+2*p}:{4*ks+2*p+1}], v{vq} offset:{off}")
    dma(0); dma(1)
    for b in range(nb):
        e(f"s_waitcnt vmcnt({cnt[b+1] if b+1<nb else 0})"); tr(b); e("s_waitcnt lgkmcnt(0)")
        if b+2<nb: dma(b+2)
def poll4(e, vd, va, sreg, abort, lo=False):
    lp=e.lab("pl"); ok=e.lab("pk")
    e(f"""{lp}:
buffer_load_dwordx4 v[{vd}:{vd+3}], v{va}, {WS}, s{sreg} offen sc1
s_waitcnt vmcnt(0)
v_and_b32 v{vd}, v{vd}, v{vd+1}
v_and_b32 v{vd+2}, v{vd+2}, v{vd+3}
v_and_b32 v{vd}, v{vd}, v{vd+2}
v_cmp_ne_u32 vcc, 1, v{vd}
{f's_cmp_eq_u32 vcc_lo, 0{chr(10)}s_cbranch_scc1' if lo else 's_cbranch_vccz'} {ok}
s_sub_u32 s{S_BUD}, s{S_BUD}, 1
s_cbranch_scc0 {lp}
s_branch {abort}
{ok}:""")
def lane0(e, v, t):
    e(f"v_mov_b32 v{v}, {hex(OOB)}\nv_cmp_eq_u32 vcc, 0, v0\nv_cndmask_b32 v{v}, v{v}, v{t}, vcc")
def bymode(e, r, f):
    if not OPT.get('pl',1): f(" sc1"); return
    a=e.lab("bm"); b=e.lab("bn")
    e(f"s_cmp_eq_u32 s{r}, 0\ns_cbranch_scc0 {a}"); f(""); e(f"s_branch {b}\n{a}:"); f(" sc1"); e(f"{b}:")
GP=[False]
def gst(e,i):
    if GP[0] and not OPT.get('gl'): e(f's_memtime s[{82+2*i}:{83+2*i}]')
def gemm_main(e, swap, epi, KS, in_sh, fi_mul, out_sh, fo_mul, abort, done):
    Q=KS//4; NST=4 if epi=="P" else 2; M16=OPT.get('m16',1)
    grp=[min(4,Q-4*g) for g in range(4)]
    LS=[' sc1','',' nt',' sc1 nt'][OPT.get('ls',0)] if epi=='P' else ' sc1'
    gTo=24; gTx=25; gTd=26; NL=19 if epi=='R' else KS//4; TO=OPT.get('to',1)
    ACC=[32,104]; RD=[[20,21],[22,23]]
    D=6; FL=OPT.get('fl',32); PF=min(KS-8,OPT.get('pf2',44)); gOx=27; gFx=28; gOob=29
    e(f"v_lshlrev_b32 v{gRd}, 4, v0")
    if M16:
        e(f"""v_lshrrev_b32 v{gT}, 4, v0
v_and_b32 v{gT+1}, 15, v0
v_lshlrev_b32 v{gT+2}, 4, v{gT+1}
v_lshl_add_u32 v{gT+2}, v{gT}, 9, v{gT+2}""")
        if swap:
            e(f"""v_and_b32 v{gT+3}, 8, v{gT+1}
v_add_u32 v{gT+3}, v{gT+3}, v{gT+1}
v_and_b32 v{gT+1}, 1, v{gT}
v_lshl_add_u32 v{gT+3}, v{gT+1}, 3, v{gT+3}
v_lshlrev_b32 v{gT+3}, 4, v{gT+3}
v_lshl_add_u32 v{RD[0][0]}, v{gT}, 9, v{gT+3}
v_xor_b32 v{RD[0][1]}, 128, v{RD[0][0]}
v_lshrrev_b32 v{gT+3}, 5, v0
v_lshlrev_b32 v{gT+3}, 7, v{gT+3}
v_xor_b32 v{gRd}, v{gT+3}, v{gRd}""")
        else: e(f"v_mov_b32 v{RD[0][0]}, v{gT+2}\nv_add_u32 v{RD[0][1]}, 256, v{gT+2}")
    else: e(f"v_mov_b32 v{RD[0][0]}, v{gRd}\nv_add_u32 v{RD[0][1]}, 1024, v{gRd}")
    e(f"""v_add_u32 v{RD[1][0]}, 0x10000, v{RD[0][0]}
v_add_u32 v{RD[1][1]}, 0x10000, v{RD[0][1]}
s_lshl_b32 s{G_M0}, s{S_W}, 10
v_add_u32 v{gIn}, s{G_M0}, v{gRd}
v_and_b32 v{gFl}, 31, v0
v_min_u32 v{gFl}, s{G_FN}, v{gFl}
v_lshlrev_b32 v{gFl}, 4, v{gFl}
v_lshrrev_b32 v{gTo}, 5, v0
v_mul_u32_u24 v{gTo}, {fi_mul}, v{gTo}
v_add_u32 v{gFl}, v{gFl}, v{gTo}
s_and_b32 s{S_T0}, s{S_RANK}, 7
s_lshl_b32 s{S_T0}, s{S_T0}, 2
s_add_u32 s{S_T0}, s{S_T0}, s{S_W}
s_mul_i32 s{S_T0}, s{S_T0}, {NL}
v_add_u32 v{gTo}, s{S_T0}, v0
v_min_u32 v{gTo}, {KS*8-1}, v{gTo}
v_lshlrev_b32 v{gTo}, 7, v{gTo}
v_mov_b32 v{gTx}, {hex(OOB)}
v_mov_b32 v{gOob}, {hex(OOB)}
v_cmp_gt_u32 vcc, {NL}, v0
v_cndmask_b32 v{gTo}, v{gTx}, v{gTo}, vcc
v_mov_b32 v{gOne}, 0""")
    lane0(e, gFo, gOne)
    e(f"v_mov_b32 v{gOne}, 1")
    if epi=="P":
        e(f"""v_bfe_u32 v{gT+3}, v0, 2, {2 if M16 else 3}
v_lshlrev_b32 v{gOut}, 16, v{gT+3}
v_and_b32 v{gT+3}, 3, v0
v_lshl_add_u32 v{gOut}, v{gT+3}, 4, v{gOut}
v_lshrrev_b32 v{gT+3}, 5, v0
v_lshl_add_u32 v{gOut}, v{gT+3}, {8 if M16 else 6}, v{gOut}
s_lshl_b32 s{S_T0}, s{S_W}, 9
v_add_u32 v{gOut}, s{S_T0}, v{gOut}""")
        if M16: e(f"v_bfe_u32 v{gT+3}, v0, 4, 1\nv_lshl_add_u32 v{gOut}, v{gT+3}, 6, v{gOut}")
    else:
        e(f"s_lshl_b32 s{S_T0}, s{S_W}, 11\nv_add_u32 v{gOut}, s{S_T0}, v{gT+2 if M16 else gRd}")
    def fo(back,va=gFo):
        e(f"s_mul_i32 s{G_FP}, s{G_SEG}, {fo_mul}\ns_add_u32 s{G_FP}, s{G_FP}, s{G_FOB}")
        if back: e(f"s_sub_u32 s{G_FP}, s{G_FP}, {back*fo_mul}")
        f=lambda sc: e(f"buffer_store_dword v{gOne}, v{va}, {WS}, s{G_FP} offen{sc}")
        if epi=="R": bymode(e,S_MODE,f)
        else: f(" sc1")
    def faddr(d, seg, add):
        e(f"s_mul_i32 s{d}, s{seg}, {fi_mul}\ns_add_u32 s{d}, s{d}, s{G_FIB}")
        if add: e(f"s_add_u32 s{d}, s{d}, {add*fi_mul}")
    def fload(s): e(f"buffer_load_dwordx4 v[{gF}:{gF+3}], v{gFl}, {WS}, s{s} offen sc1")
    def rd(b,ks): e(f"ds_read_b128 v[{gR+4*(ks%8)}:{gR+4*(ks%8)+3}], v{RD[b][ks&1]} offset:{(ks>>1)*2048}")
    def mf(b,ks):
        B=f"v[{gR+4*(ks%8)}:{gR+4*(ks%8)+3}]"
        if M16:
            t=ks&1
            for c in range(2):
                acc=ACC[b]+(8*c+4*t if swap else 8*t+4*c); w=8*(ks>>1)+4*c
                A=f"a[{w}:{w+3}]"; X,Y=(B,A) if swap else (A,B)
                e(f"v_mfma_f32_16x16x32_bf16 v[{acc}:{acc+3}], {X}, {Y}, {'0' if ks<2 else f'v[{acc}:{acc+3}]'}")
        else:
            acc=ACC[b]+16*(ks&1); A=f"a[{4*ks}:{4*ks+3}]"; X,Y=(B,A) if swap else (A,B)
            e(f"v_mfma_f32_32x32x16_bf16 v[{acc}:{acc+15}], {X}, {Y}, {'0' if ks<2 else f'v[{acc}:{acc+15}]'}")
    def epi_parts(b,back):
        a=ACC[b]; L=[]
        if not M16:
            for i in range(0,16,2): L.append(f"v_add_f32 v{a+i}, v{a+i}, v{a+16+i}\nv_add_f32 v{a+i+1}, v{a+i+1}, v{a+17+i}")
        if epi=="R":
            for i in range(0,16,2): L.append(f"v_max_f32 v{a+i}, 0, v{a+i}\nv_max_f32 v{a+i+1}, 0, v{a+i+1}")
        if epi!="P":
            for i in range(0,8,2): L.append(f"v_cvt_pk_bf16_f32 v{gP+i}, v{a+2*i}, v{a+2*i+1}\nv_cvt_pk_bf16_f32 v{gP+i+1}, v{a+2*i+2}, v{a+2*i+3}")
        return L
    def saddr(back):
        e(f"s_lshl_b32 s{S_T2}, s{G_SEG}, {out_sh}\ns_add_u32 s{S_T2}, s{S_T2}, s{G_OUTB}")
        if back: e(f"s_sub_u32 s{S_T2}, s{S_T2}, {back<<out_sh}")
        if epi=="P" and M16: e(f"s_add_u32 s{S_T4}, s{S_T2}, {4<<16}")
    def store(b,g,va):
        a=ACC[b]
        if epi=="P":
            if M16: e(f"buffer_store_dwordx4 v[{a+4*g}:{a+4*g+3}], v{va}, {WS}, s{S_T4 if g>>1 else S_T2} offen offset:{(g&1)*128} sc1")
            else: e(f"buffer_store_dwordx4 v[{a+4*g}:{a+4*g+3}], v{va}, {WS}, s{S_T2} offen offset:{g*128} sc1")
        else:
            so=lambda sc: e(f"buffer_store_dwordx4 v[{gP+4*g}:{gP+4*g+3}], v{va}, {WS}, s{S_T2} offen offset:{g*(256 if M16 else 1024)}{sc}")
            if epi=="R": bymode(e,S_MODE,so)
            else: so(" sc1")
    def dma(b,i,va): e(f"s_add_u32 m0, s{G_M0}, {b*65536+i*4096}\ns_add_u32 s{S_T3}, s{G_IN}, {i*4096}\nbuffer_load_dwordx4 v{va}, {WS}, s{S_T3} offen{LS} lds")
    if GP[0]:
        for i in range(93,100): e(f"s_mov_b32 s{i}, 0")
        if OPT.get('gl'): e("s_memtime s[82:83]\ns_memrealtime s[84:85]")
    np_=(len(epi_parts(0,1))+1)//2; p0=3; s0=(p0+np_+3)//4*4
    ops=[(4*i+2,f"d{i}") for i in range(Q)]+[(s0+4*g,f"s{g}") for g in range(NST)]+[(FL,"fl"),(PF,"fo")]
    if TL[0]: ops.append((FL-1,"tl"))
    if TO: ops.append((FL+4,"to"))
    ops.sort(key=lambda x:x[0]); names=[n for k,n in ops]
    def younger(name, ks, prev):
        i=names.index(name); n=len([1 for k,x in ops if k<ks])
        return len(ops)-1-i+n if prev else n-1-i
    loop=[e.lab("gl"),e.lab("gl")]; fetch=[e.lab("gf"),e.lab("gf")]; tail=[e.lab("gt"),e.lab("gt")]
    e(f"s_mov_b32 s{G_NS}, s{G_SEG}\ns_barrier\ns_branch {fetch[0]}")
    for b in range(2):
        e(f"""{loop[b]}:
s_mov_b32 s{G_SEG}, s{G_NS}
s_add_u32 s{G_NS}, s{G_SEG}, 1""")
        tl_get(e); gst(e,0)
        pre=[f"""v_and_b32 v{gF}, v{gF}, v{gF+1}
v_and_b32 v{gF+2}, v{gF+2}, v{gF+3}
s_lshl_b32 s{G_IN}, s{G_NS}, {in_sh}
s_add_u32 s{G_IN}, s{G_IN}, s{G_INB}""",
             f"""v_and_b32 v{gF}, v{gF}, v{gF+2}
v_cmp_ne_u32 vcc, 1, v{gF}
s_cmp_lt_u32 s{G_NS}, s{G_END}
s_cselect_b32 vcc_lo, vcc_lo, -1
s_cmp_eq_u32 vcc_lo, 0
s_cselect_b32 s{S_T0}, 0, {hex(OOB)}
v_add_u32 v{gIx}, s{S_T0}, v{gIn}""",
             f"""s_add_u32 s{S_T0}, s{G_NS}, 1
s_cmp_lt_u32 s{S_T0}, s{G_END}
s_cselect_b32 vcc_hi, vcc_hi, -1
s_cmp_eq_u32 vcc_hi, 0
s_cselect_b32 s{S_T0}, 0, {hex(OOB)}
s_mov_b32 vcc_hi, 0
v_add_u32 v{gTx}, s{S_T0}, v{gTo}""",
             f"v_add_u32 v{gOx}, s{G_PEND}, v{gOut}\nv_add_u32 v{gFx}, s{G_PEND}, v{gFo}"]
        parts=epi_parts(1-b,1)
        for ks in range(KS):
            if ks+D<KS:
                if (ks+D)%16==0:
                    q=(ks+D)//16
                    if q==1: gst(e,1)
                    e(f"s_waitcnt vmcnt({younger(f'd{min(4*q+3,Q-1)}',ks,True)})\ns_barrier")
                    if q==1: gst(e,2)
                rd(b,ks+D)
            else:
                if ks+D==KS:
                    gst(e,3)
                    e(f"s_cbranch_vccnz {tail[b]}\ns_waitcnt vmcnt({younger('d3',ks,False)})\ns_barrier"); gst(e,4)
                rd(1-b,ks+D-KS)
            e(f"s_waitcnt lgkmcnt({D})")
            mf(b,ks)
            if ks<4: e(pre[ks])
            if ks>=p0:
                for x in parts[2*(ks-p0):2*(ks-p0)+2]: e(x)
            for k,n in ops:
                if k!=ks: continue
                if n[0]=="d": dma(1-b,int(n[1:]),gIx)
                elif n[0]=="s":
                    if n=="s0": saddr(1)
                    store(1-b,int(n[1:]),gOx)
                elif n=="tl": tl_put(e,False)
                elif n=="fl": faddr(S_T1, G_NS, 1); fload(S_T1)
                elif n=="to": e(f"s_add_u32 s{S_T0}, s{G_IN}, {1<<in_sh}\nbuffer_load_dword v{gTd}, v{gTx}, {WS}, s{S_T0} offen sc1")
                elif n=="fo":
                    e(f"s_waitcnt vmcnt({names.index('fo')-names.index(f's{NST-1}')-1})"); fo(1,gFx)
        e(f"s_mov_b32 s{G_PEND}, 0\ns_waitcnt vmcnt({younger('fl',0,True)})")
        if GP[0] and not OPT.get('gl'):
            e("s_waitcnt lgkmcnt(0)")
            for i in range(4): e(f"s_sub_u32 s{S_T0}, s{84+2*i}, s{82+2*i}\ns_add_u32 s{94+i}, s{94+i}, s{S_T0}")
            e(f"s_add_u32 s98, s98, 1\ns_sub_u32 s{S_T0}, s82, s99\ns_mov_b32 s99, s90\ns_cmp_lt_u32 s{S_T0}, 20000\ns_cselect_b32 s{S_T0}, s{S_T0}, 0\ns_add_u32 s93, s93, s{S_T0}")
        if b==1: e(f"s_branch {loop[0]}")
    for b in range(2):
        e(f"{tail[b]}:")
        for ks in range(KS-D,KS):
            e(f"s_waitcnt lgkmcnt({KS-1-ks})"); mf(b,ks)
        for x in epi_parts(b,0): e(x)
        saddr(0)
        for g in range(NST): store(b,g,gOut)
        e("s_waitcnt vmcnt(0)")
        fo(0)
        e(f"s_cmp_lt_u32 s{G_NS}, s{G_END}\ns_cbranch_scc0 {loop[0]}_x\n{fetch[1-b]}:")
        faddr(S_T1, G_NS, 0); poll4(e, gF, gFl, S_T1, abort, True)
        e(f"s_lshl_b32 s{G_IN}, s{G_NS}, {in_sh}\ns_add_u32 s{G_IN}, s{G_IN}, s{G_INB}\ns_add_u32 s{S_T1}, s{S_T1}, {fi_mul}")
        fload(S_T1); n3=0; i7=names.index("d7")
        for j,n in enumerate(names):
            if n[0]=="d": dma(1-b,int(n[1:]),gIn)
            elif j>i7: e(f"buffer_load_dword v{gTd}, v{gOob}, {WS}, 0 offen")
            else: continue
            n3 = 0 if n=="d3" else n3+1
        assert names.index("fl")>i7
        e(f"s_mov_b32 s{G_PEND}, {hex(OOB)}\ns_waitcnt vmcnt({n3})\ns_barrier")
        for ks in range(D): rd(1-b,ks)
        e(f"s_branch {loop[1-b]}")
    e(f"{loop[0]}_x:")
    if GP[0]:
        if OPT.get('gl'): e("s_memtime s[86:87]\ns_memrealtime s[88:89]\ns_waitcnt lgkmcnt(0)\ns_sub_u32 s93, s86, s82\ns_sub_u32 s94, s88, s84\ns_mov_b32 s98, 1")
        for i in range(93,99): e(f"s_mov_b32 s4, s{i}"); tl_put(e,False)
    e(f"""s_barrier
s_branch {done}""")
```

```python
from layout import *
from chain import *
from gemm import *
L_MISC=131072
L_TK=L_MISC; L_MOD=L_MISC+64; L_ST=L_MISC+1024
LOG2E="0x3fb8aa3b"
def rnd(e, a, t):
    e(f"v_cvt_pk_bf16_f32 v{t}, v{a}, v{a+1}\nv_lshlrev_b32 v{a}, 16, v{t}\nv_and_b32 v{a+1}, 0xffff0000, v{t}")
def unpack(e, d, s, n):
    for i in range(n): e(f"v_lshlrev_b32 v{d+2*i}, 16, v{s+i}\nv_and_b32 v{d+2*i+1}, 0xffff0000, v{s+i}")
def pk(op, d, a, b): return f"v_pk_{op}_f32 v[{d}:{d+1}], v[{a}:{a+1}], v[{b}:{b+1}]"
def wred(e, regs, t):
    for r in regs: e(f"v_add_f32_dpp v{r}, v{r}, v{r} row_ror:4 row_mask:0xf bank_mask:0xf")
    for r in regs: e(f"v_add_f32_dpp v{r}, v{r}, v{r} row_ror:8 row_mask:0xf bank_mask:0xf")
    for sw in ("16","32"):
        for i,r in enumerate(regs): e(f"v_mov_b32 v{t+i}, v{r}")
        for i,r in enumerate(regs): e(f"v_permlane{sw}_swap_b32 v{t+i}, v{r}")
        for i,r in enumerate(regs): e(f"v_add_f32 v{r}, v{r}, v{t+i}")
def ln_norm(e, Xs, T, vW, vR, offs):
    n=len(Xs)
    for g,X in enumerate(Xs):
        t=T+28*g
        for i in range(0,8,2): e(pk("add",t+i,X+i,X+8+i))
        e(pk("add",t,t,t+4)); e(pk("add",t+2,t+2,t+6)); e(pk("add",t,t,t+2))
        e(f"v_add_f32 v{t+16}, v{t}, v{t+1}")
    for g in range(n): wred(e,[T+28*g+16],T+28*g+18)
    for g,X in enumerate(Xs):
        t=T+28*g
        e(f"v_mul_f32 v{t+16}, 0x3b800000, v{t+16}\nv_mov_b32 v{t+17}, v{t+16}")
        for i in range(0,16,2): e(f"v_pk_add_f32 v[{t+i}:{t+i+1}], v[{X+i}:{X+i+1}], v[{t+16}:{t+17}] neg_lo:[0,1] neg_hi:[0,1]")
        e(pk("mul",t,t,t))
        for i in range(2,16,2): e(f"v_pk_fma_f32 v[{t}:{t+1}], v[{t+i}:{t+i+1}], v[{t+i}:{t+i+1}], v[{t}:{t+1}]")
        e(f"v_add_f32 v{t+17}, v{t}, v{t+1}")
    for g in range(n): wred(e,[T+28*g+17],T+28*g+18)
    e("s_mov_b64 exec, 15")
    for g in range(n): e(f"ds_write_b64 v{vW}, v[{T+28*g+16}:{T+28*g+17}] offset:{offs[g]}")
    e("s_mov_b64 exec, -1\ns_waitcnt lgkmcnt(0)\ns_barrier")
    for g in range(n):
        t=T+28*g
        e(f"ds_read_b128 v[{t}:{t+3}], v{vR} offset:{offs[g]}\nds_read_b128 v[{t+4}:{t+7}], v{vR} offset:{offs[g]+16}")
    e("s_waitcnt lgkmcnt(0)")
    for g,X in enumerate(Xs):
        t=T+28*g
        e(pk("add",t+8,t,t+2)); e(pk("add",t+10,t+4,t+6)); e(pk("add",t+8,t+8,t+10))
        e(f"v_mul_f32 v{t+8}, 0x3e800000, v{t+8}")
        for k in range(4): e(f"v_sub_f32 v{t+2*k}, v{t+2*k}, v{t+8}")
        e(f"""v_mul_f32 v{t}, v{t}, v{t}
v_fmac_f32 v{t}, v{t+2}, v{t+2}
v_fmac_f32 v{t}, v{t+4}, v{t+4}
v_fmac_f32 v{t}, v{t+6}, v{t+6}
v_mul_f32 v{t+9}, 0x3a800000, v{t+9}
v_fmac_f32 v{t+9}, 0x3e800000, v{t}""")
        rnd(e,t+8,t+10)
        e(f"""v_add_f32 v{t+9}, 0x3727c5ac, v{t+9}
v_cvt_pk_bf16_f32 v{t+9}, v{t+9}, v{t+9}
v_and_b32 v{t+9}, 0xffff0000, v{t+9}
v_sqrt_f32 v{t+9}, v{t+9}
v_cvt_pk_bf16_f32 v{t+9}, v{t+9}, v{t+9}
v_and_b32 v{t+9}, 0xffff0000, v{t+9}
v_rcp_f32 v{t+10}, v{t+9}
v_mov_b32 v{t+9}, v{t+8}
v_mov_b32 v{t+11}, v{t+10}""")
        for i in range(0,16,2): e(f"v_pk_add_f32 v[{X+i}:{X+i+1}], v[{X+i}:{X+i+1}], v[{t+8}:{t+9}] neg_lo:[0,1] neg_hi:[0,1]")
        for i in range(0,16,2): rnd(e,X+i,t+12+(i//2)%4)
        for i in range(0,16,2): e(pk("mul",X+i,X+i,t+10))
def modulate(e, X, OPC, SH, P, t):
    for i in range(0,16,2): rnd(e,X+i,t+(i//2)%4)
    for i in range(0,16,2): e(pk("mul",X+i,X+i,OPC+i))
    for i in range(0,16,2): rnd(e,X+i,t+(i//2)%4)
    for i in range(0,16,2): e(pk("add",X+i,X+i,SH+i))
    for i in range(8): e(f"v_cvt_pk_bf16_f32 v{P+i}, v{X+2*i}, v{X+2*i+1}")
def modload(e, d, vM, chunk):
    e(f"s_mov_b32 s{S_T0}, {MOD+chunk*4096}")
    for i in range(4): e(f"buffer_load_dwordx4 v[{d+4*i}:{d+4*i+3}], v{vM}, {WS}, s{S_T0} offen offset:{i*256} sc1")
def oneplus(e, d, t):
    for i in range(16): e(f"v_add_f32 v{d+i}, 1.0, v{d+i}")
    for i in range(0,16,2): rnd(e,d+i,t+(i//2)%4)
def red_lanes(e, vM, vH, vX, vW, vR, t):
    e(f"""v_lshrrev_b32 v{t}, 2, v0
v_and_b32 v{t+1}, 3, v0
s_lshl_b32 s{S_T0}, s{S_W}, 10
v_lshl_add_u32 v{vM}, v{t}, 4, s{S_T0}
s_lshl_b32 s{S_T0}, s{S_W}, 14
v_lshl_add_u32 v{vH}, v{t}, 10, s{S_T0}
v_lshl_add_u32 v{vH}, v{t+1}, 4, v{vH}
s_lshl_b32 s{S_T0}, s{S_W}, 9
v_lshl_add_u32 v{vX}, v{t}, 3, s{S_T0}
v_lshl_add_u32 v{vX}, v{t+1}, 11, v{vX}
v_lshlrev_b32 v{vR}, 5, v{t+1}
v_add_u32 v{vR}, {L_ST}, v{vR}
s_lshl_b32 s{S_T0}, s{S_W}, 3
v_add_u32 v{vW}, s{S_T0}, v{vR}""")
SB=f"s[{SRD_B}:{SRD_B+3}]"
pW=176; pC=44; pAcc=60; pT=68; pX=96; pN=240; pM=228; pH=229
def pro_loads(e):
    srd(e, SRD_A, P_WMOD, 1024*12288); srd(e, SRD_B, P_C, 2048)
    e(f"""v_lshrrev_b32 v{pT}, 2, v0
v_and_b32 v{pT+1}, 3, v0
s_lshl_b32 s{S_T0}, s{S_W}, 9
v_lshl_add_u32 v{pT+2}, v{pT}, 1, s{S_T0}""")
    for i in range(16): e(f"buffer_load_ushort v{pC+i}, v{pT+2}, {SB}, 0 offen offset:{i*32}")
    e(f"""s_mul_i32 s{S_T0}, s{S_W}, {256*12288}
s_cmp_lt_u32 s2, 192
s_cselect_b32 s{S_T0}, s{S_T0}, {hex(OOB)}
v_mul_u32_u24 v{pT+3}, 12288, v{pT}
v_lshl_add_u32 v{pT+3}, v{pT+1}, 4, v{pT+3}
v_add_u32 v{pT+3}, s{S_T0}, v{pT+3}
s_lshl_b32 s{S_T0}, s2, 6""")
    for i in range(16):
        e(f"buffer_load_dwordx4 v[{pW+4*i}:{pW+4*i+3}], v{pT+3}, {SA}, s{S_T0} offen")
        if i<15: e(f"s_add_u32 s{S_T0}, s{S_T0}, {16*12288}")
    srd(e, SRD_B, P_X, 2048*2048)
    red_lanes(e, pT+4, pT+5, pT+6, pT+7, pT+8, pT)
    e(f"s_lshl_b32 s{S_T0}, s2, 14\ns_add_u32 s{S_T1}, s{S_T0}, 8192")
    for g in range(2):
        for i in range(4): e(f"buffer_load_dwordx2 v[{pN+8*g+2*i}:{pN+8*g+2*i+1}], v{pT+6}, {SB}, s{S_T0+g} offen offset:{i*128}")
def pro_mod(e):
    l=e.lab("nomod"); l2=e.lab("nm2")
    e(f"s_cmp_ge_u32 s2, 192\ns_cbranch_scc1 {l}\ns_waitcnt vmcnt(24)")
    t=pX
    for i in range(16): e(f"v_lshlrev_b32 v{pC+i}, 16, v{pC+i}\nv_mul_f32 v{t+i}, 0xbfb8aa3b, v{pC+i}")
    for i in range(16): e(f"v_exp_f32 v{t+i}, v{t+i}")
    for i in range(16): e(f"v_add_f32 v{t+i}, 1.0, v{t+i}")
    for i in range(16): e(f"v_rcp_f32 v{t+i}, v{t+i}")
    for i in range(16): e(f"v_mul_f32 v{pC+i}, v{pC+i}, v{t+i}")
    for i in range(0,16,2): rnd(e,pC+i,t+i)
    for i in range(16):
        e(f"s_waitcnt vmcnt({23-i})")
        unpack(e,t+8*(i%2),pW+4*i,4)
        for j in range(8):
            if i==0: e(f"v_mul_f32 v{pAcc+j}, v{t+j}, v{pC}")
            else: e(f"v_fmac_f32 v{pAcc+j}, v{t+8*(i%2)+j}, v{pC+i}")
    wred(e,[pAcc+j for j in range(8)],t)
    e(f"""v_lshlrev_b32 v{t}, 5, v0
s_lshl_b32 s{S_T0}, s{S_W}, 7
s_add_u32 s{S_T0}, s{S_T0}, {L_MOD}
v_add_u32 v{t}, s{S_T0}, v{t}
s_mov_b64 exec, 15
ds_write_b128 v{t}, v[{pAcc}:{pAcc+3}]
ds_write_b128 v{t}, v[{pAcc+4}:{pAcc+7}] offset:16
s_mov_b64 exec, -1
s_waitcnt lgkmcnt(0)
s_barrier
s_cmp_lg_u32 s{S_W}, 0
s_cbranch_scc1 {l}
v_and_b32 v{t+1}, 31, v0
v_lshlrev_b32 v{t+1}, 2, v{t+1}
v_add_u32 v{t}, {L_MOD}, v{t+1}""")
    for w in range(4): e(f"ds_read_b32 v{t+2+w}, v{t} offset:{w*128}")
    e(f"""s_lshl_b32 s{S_T0}, s2, 7
s_add_u32 s{S_T0}, s{S_T0}, {MOD}
s_waitcnt lgkmcnt(0)
v_add_f32 v{t+2}, v{t+2}, v{t+3}
v_add_f32 v{t+4}, v{t+4}, v{t+5}
v_add_f32 v{t+2}, v{t+2}, v{t+4}
v_cvt_pk_bf16_f32 v{t+2}, v{t+2}, v{t+2}
v_and_b32 v{t+2}, 0xffff0000, v{t+2}
buffer_store_dword v{t+2}, v{t+1}, {WS}, s{S_T0} offen sc1
{l}:""")
def pro_ln(e):
    e(f"s_waitcnt vmcnt(0)\nv_mov_b32 v{pM}, v{pT+4}\nv_mov_b32 v{pH}, v{pT+5}")
    unpack(e,pX,pN,16)
    ln_norm(e,[pX,pX+16],pW-8,pT+7,pT+8,[0,128])
    for i in range(16): e(f"v_cvt_pk_bf16_f32 v{pN+i}, v{pX+2*i}, v{pX+2*i+1}")
def pro_fin(e):
    O=172; Sh=188; X=204; t=220
    modload(e,O,pM,1); modload(e,Sh,pM,0)
    e(f"""s_lshr_b32 s{S_T1}, s2, 2
s_lshl_b32 s{S_T1}, s{S_T1}, 16
s_and_b32 s{S_T2}, s2, 3
s_lshl_b32 s{S_T2}, s{S_T2}, 7
s_add_u32 s{S_T1}, s{S_T1}, s{S_T2}
s_add_u32 s{S_T1}, s{S_T1}, {H1}
s_waitcnt vmcnt(4)""")
    oneplus(e,O,t)
    e("s_waitcnt vmcnt(0)")
    for g in range(2):
        unpack(e,X,pN+8*g,8)
        for i in range(0,16,2): e(pk("mul",X+i,X+i,O+i))
        for i in range(0,16,2): rnd(e,X+i,t+(i//2)%4)
        for i in range(0,16,2): e(pk("add",X+i,X+i,Sh+i))
        for i in range(8): e(f"v_cvt_pk_bf16_f32 v{pN+8*g+i}, v{X+2*i}, v{X+2*i+1}")
        for ab in range(2): e(f"buffer_store_dwordx4 v[{pN+8*g+4*ab}:{pN+8*g+4*ab+3}], v{pH}, {WS}, s{S_T1} offen offset:{ab*512+g*64} sc1")
    e(f"""s_lshl_b32 s{S_T1}, s2, 4
s_lshl_b32 s{S_T2}, s{S_W}, 2
s_add_u32 s{S_T1}, s{S_T1}, s{S_T2}
s_add_u32 s{S_T1}, s{S_T1}, {F_H1}
v_mov_b32 v{t+1}, 0""")
    lane0(e,t,t+1)
    e(f"v_mov_b32 v{t+1}, 1\ns_waitcnt vmcnt(0)\nbuffer_store_dword v{t+1}, v{t}, {WS}, s{S_T1} offen sc1")
R_TG=66; R_P=67; R_A=68; R_B=69; R_FP=74
def feval(e,F):
    e(f"v_and_b32 v{F}, v{F}, v{F+1}\nv_and_b32 v{F+2}, v{F+2}, v{F+3}\nv_and_b32 v{F}, v{F}, v{F+2}\nv_cmp_ne_u32 vcc, 1, v{F}")
def red(e, first, abort, done, STEP):
    vM=1;vH=2;vX=3;vW=4;vR=5;vP=6;vFl=7;vFo=8;vOne=9;vQ=10;t=12;F=16
    G=20; O=36; Sh=52; PS=[68,132]; XS=[196,204]; X=212; T=228; PK=228; PX=248; R=228
    FP=F_P1 if first else F_P2; NL=20 if first else 18; NS=4+(1 if TL[0] else 0)
    R_LO=82; R_HI=83
    red_lanes(e,vM,vH,vX,vW,vR,t)
    e(f"""s_lshl_b32 s{S_T0}, s{S_W}, 12
v_lshl_add_u32 v{vP}, v0, 4, s{S_T0}
s_lshl_b32 s{S_T0}, s{S_W}, 11
v_lshl_add_u32 v{vQ}, v0, 4, s{S_T0}
v_lshrrev_b32 v{vFl}, 5, v0
v_mul_u32_u24 v{vFl}, {512*STEP-512}, v{vFl}
v_lshl_add_u32 v{vFl}, v0, 4, v{vFl}
s_lshl_b32 s{S_T0}, s{R_TG}, 4
s_lshl_b32 s{S_T1}, s{S_W}, 2
s_add_u32 s{S_T0}, s{S_T0}, s{S_T1}
v_mov_b32 v{vOne}, s{S_T0}""")
    lane0(e,vFo,vOne); e(f"v_mov_b32 v{vOne}, 1")
    if first:
        modload(e,G,vM,2); modload(e,O,vM,4); modload(e,Sh,vM,3)
        srd(e, SRD_B, P_X, 2048*2048)
        e("s_waitcnt vmcnt(0)"); oneplus(e,O,t)
    else:
        modload(e,G,vM,5); srd(e, SRD_B, P_OUT, 2048*2048)
    e(f"s_lshl_b32 s{R_TG}, s{R_TG}, 13\ns_mov_b32 s{G_NS}, s{G_SEG}")
    def loads(k):
        P=PS[k]; XR=XS[k]
        e(f"""s_lshl_b32 s{S_T2}, s{G_NS}, 16
s_add_u32 s{S_T2}, s{S_T2}, s{R_TG}
s_lshl_b32 s{R_P}, s{S_T2}, 3
s_add_u32 s{R_P}, s{R_P}, {P1 if first else P2}""")
        for kc in range(4):
            for i in range(4): e(f"buffer_load_dwordx4 v[{P+16*kc+4*i}:{P+16*kc+4*i+3}], v{vP}, {WS}, s{R_P} offen offset:{i*1024} sc1")
            if kc<3: e(f"s_add_u32 s{R_P}, s{R_P}, 16384")
        if first:
            for i in range(4): e(f"buffer_load_dwordx2 v[{XR+2*i}:{XR+2*i+1}], v{vX}, {SB}, s{S_T2} offen offset:{i*128}")
        else:
            e(f"s_add_u32 s{S_T2}, s{S_T2}, {X1}")
            for ab in range(2): e(f"buffer_load_dwordx4 v[{XR+4*ab}:{XR+4*ab+3}], v{vQ}, {WS}, s{S_T2} offen offset:{ab*1024} sc1")
        e(f"s_add_u32 s{G_NS}, s{G_NS}, {STEP}")
    def fl(seg,add): e(f"s_lshl_b32 s{S_T1}, s{seg}, 9\ns_add_u32 s{S_T1}, s{S_T1}, {FP+512*add*STEP}\nbuffer_load_dwordx4 v[{F}:{F+3}], v{vFl}, {WS}, s{S_T1} offen sc1")
    def flag(back): e(f"s_lshl_b32 s{S_T0}, s{G_SEG}, 7\ns_add_u32 s{S_T0}, s{S_T0}, {F_H2-128*back*STEP}\nbuffer_store_dword v{vOne}, v{vFo}, {WS}, s{S_T0} offen sc1")
    top=[e.lab("rt"),e.lab("rt")]; fet=[e.lab("rf"),e.lab("rf")]
    for k in range(2):
        P=PS[k]; XR=XS[k]
        ok=e.lab("rk")
        e(f"{fet[k]}:"); fl(G_NS,0); e("s_waitcnt vmcnt(0)"); feval(e,F)
        e(f"""s_cmp_eq_u32 vcc_lo, 0
s_cbranch_scc1 {ok}
s_sub_u32 s{S_BUD}, s{S_BUD}, 1
s_cbranch_scc0 {fet[k]}
s_branch {abort}
{ok}:""")
        fl(G_NS,1); loads(k)
        e(f"s_mov_b32 s{G_PEND}, 0\ns_waitcnt vmcnt(0)\n{top[k]}:")
        feval(e,F)
        RM=OPT.get('rm',1)
        if first and not RM:
            l=e.lab("rp")
            e(f"s_cmp_eq_u32 s{G_PEND}, 2\ns_cbranch_scc0 {l}\ns_mov_b32 s{G_PEND}, 1"); flag(2); e(f"{l}:")
        e(f"s_mov_b32 s{R_FP}, s{G_NS}")
        e(f"s_mov_b64 s[{R_LO}:{R_HI}], vcc")
        for i in range(0,16,2): e(pk("add",P+i,P+i,P+16+i))
        for i in range(0,16,2): e(pk("add",P+32+i,P+32+i,P+48+i))
        for i in range(0,16,2): e(pk("add",R+i,P+i,P+32+i))
        unpack(e,X,XR,8)
        fl(G_SEG,2)
        la=e.lab("ra"); lb=e.lab("rb")
        e(f"""s_lshl_b32 s{R_A}, s{G_SEG}, 16
s_add_u32 s{R_A}, s{R_A}, s{R_TG}
s_sub_u32 s{S_T0}, s{G_NS}, s{G_SEG}
s_cmp_eq_u32 s{S_T0}, {STEP}
s_cbranch_scc0 {la}
s_cmp_lt_u32 s{G_NS}, 64
s_cselect_b32 s{R_LO}, s{R_LO}, 1
s_cmp_eq_u32 s{R_LO}, 0
s_cbranch_scc0 {lb}""")
        loads(1-k)
        e(f"""{la}:
s_cmp_lt_u32 s{G_NS}, 64
s_cselect_b32 s{R_HI}, s{R_HI}, 1
s_cmp_eq_u32 s{R_HI}, 0
s_cbranch_scc0 {lb}""")
        loads(k); e(f"{lb}:")
        for i in range(0,16,2): rnd(e,R+i,t+(i//2)%4)
        for i in range(0,16,2): e(pk("mul",R+i,R+i,G+i))
        for i in range(0,16,2): rnd(e,R+i,t+(i//2)%4)
        for i in range(0,16,2): e(pk("add",X+i,X+i,R+i))
        for i in range(8): e(f"v_cvt_pk_bf16_f32 v{PX+i}, v{X+2*i}, v{X+2*i+1}")
        if first:
            e(f"s_add_u32 s{R_B}, s{R_A}, {X1}")
            for ab in range(2): e(f"buffer_store_dwordx4 v[{PX+4*ab}:{PX+4*ab+3}], v{vQ}, {WS}, s{R_B} offen offset:{ab*1024} sc1")
            unpack(e,X,PX,8)
            ln_norm(e,[X],T,vW,vR,[0])
            e(f"v_xor_b32 v{vW}, 128, v{vW}\nv_xor_b32 v{vR}, 128, v{vR}")
            modulate(e,X,O,Sh,PK,t)
            if RM:
                l=e.lab("rm"); l1=e.lab("rm"); l2=e.lab("rm")
                e(f"""s_cmp_eq_u32 s{G_PEND}, 0
s_cbranch_scc1 {l}
s_mov_b32 s{G_PEND}, 0
s_sub_u32 s{S_T0}, s{G_NS}, s{R_FP}
s_cmp_gt_u32 s{S_T0}, {STEP}
s_cbranch_scc1 {l2}
s_cmp_eq_u32 s{S_T0}, {STEP}
s_cbranch_scc1 {l1}
s_waitcnt vmcnt(3)
{l1}:
s_waitcnt vmcnt({3+NL})
{l2}:
s_waitcnt vmcnt({3+2*NL})"""); flag(1); e(f"{l}:")
            e(f"""s_lshl_b32 s{S_T1}, s{G_SEG}, 16
s_lshr_b32 s{S_T0}, s{R_TG}, 7
s_add_u32 s{S_T1}, s{S_T1}, s{S_T0}
s_add_u32 s{S_T1}, s{S_T1}, {H2}""")
            for ab in range(2): e(f"buffer_store_dwordx4 v[{PK+4*ab}:{PK+4*ab+3}], v{vH}, {WS}, s{S_T1} offen offset:{ab*512} sc1")
        else:
            for i in range(4): e(f"buffer_store_dwordx2 v[{PX+2*i}:{PX+2*i+1}], v{vX}, {SB}, s{R_A} offen offset:{i*128}")
        tl(e)
        pb=e.lab("rb"); d3=e.lab("rd")
        e(f"""s_sub_u32 s{S_T0}, s{G_NS}, s{G_SEG}
s_add_u32 s{G_SEG}, s{G_SEG}, {STEP}
s_cmp_eq_u32 s{S_T0}, {STEP}
s_cbranch_scc1 {pb}
s_add_u32 s{G_PEND}, s{G_PEND}, 1
s_cmp_eq_u32 s{S_T0}, {3*STEP}
s_cbranch_scc1 {d3}
s_waitcnt vmcnt({NS})
s_branch {top[1-k]}
{d3}:
s_waitcnt vmcnt({NS+NL})
s_branch {top[1-k]}
{pb}:""")
        if first:
            l=e.lab("rq")
            e(f"s_waitcnt vmcnt(0)\ns_cmp_eq_u32 s{G_PEND}, 0\ns_cbranch_scc1 {l}"); flag(2); e(f"{l}:"); flag(1)
        e(f"s_cmp_lt_u32 s{G_SEG}, 64\ns_cbranch_scc0 {done}")
        if k==1: e(f"s_branch {fet[0]}")
A_H=65; A_SC=66; A_MK=68; A_FP=100; A_N1=16; A_N2=17; A_END=18
def att(e, abort, done):
    vA=1;vKM=2;vVM=3;vF1=4;vF2=5;vFo=6;vOne=7;t=8;F=16;Pb=20;m=30;F2=96
    KMr=128;VMr=160;S=168;SM=184;O=32
    e(f"""s_lshl_b32 s{S_T0}, s{A_H}, 13
v_lshl_add_u32 v{vA}, v0, 4, s{S_T0}
v_lshrrev_b32 v{t}, 5, v0
v_and_b32 v{t+1}, 7, v0
s_lshl_b32 s{S_T0}, s{A_H}, 11
v_lshl_add_u32 v{vKM}, v{t}, 7, s{S_T0}
v_lshl_add_u32 v{vKM}, v{t+1}, 4, v{vKM}
v_lshl_add_u32 v{vVM}, v0, 3, s{S_T0}
s_lshl_b32 s{S_T0}, s{A_H}, 4
v_mov_b32 v{vF2}, s{S_T0}
v_min_u32 v{vF1}, 2, v0
v_lshl_add_u32 v{vF1}, v{vF1}, 9, s{S_T0}
v_and_b32 v{t+1}, 31, v0
v_lshlrev_b32 v{t}, 2, v{t}
v_sub_u32 v{t}, v{t+1}, v{t}
s_and_b32 s{S_T0}, s{A_H}, 7
s_lshl_b32 s{S_T0}, s{S_T0}, 2
s_lshl_b32 s{S_T1}, s{G_X}, 11
s_add_u32 s{S_T0}, s{S_T0}, s{S_T1}
v_mov_b32 v{vOne}, s{S_T0}
s_mov_b32 s{S_STEP}, 0
s_mov_b32 s3, s{S_MODE}""")
    def oflag():
        l=e.lab("of"); e(f"s_cmp_eq_u32 s{S_STEP}, 0\ns_cbranch_scc1 {l}\ns_mov_b32 s{S_STEP}, 0")
        bymode(e,3,lambda sc: e(f"buffer_store_dword v{vOne}, v{vFo}, {WS}, s{A_FP} offen{sc}")); e(f"{l}:")
    lane0(e,vFo,vOne)
    e(f"v_mov_b32 v{vOne}, 1\ns_mov_b32 s{A_SC}, 0x3db504f3\ns_mov_b32 s{A_SC+1}, 0x3db504f3")
    for r in range(16): e(f"v_cmp_gt_i32 s[{A_MK+2*r}:{A_MK+2*r+1}], {8*(r//4)+r%4}, v{t}")
    AE=OPT.get('ae',16)
    def nxt(d,c): e(f"s_cmp_lt_u32 s{c}, {AE}\ns_cselect_b32 s{S_T0}, 4, 2\ns_add_u32 s{d}, s{c}, s{S_T0}")
    def qkv(k,a,n):
        e(f"s_cmp_lt_u32 s{a}, s{A_END}\ns_cselect_b32 s{S_T3}, s{a}, s{G_SEG}\ns_lshl_b32 s{S_T3}, s{S_T3}, 18")
        for n_,base in enumerate((QB,KB,VB)):
            reg=96*k+32*n_
            for hf in range(2):
                e(f"s_add_u32 s{S_T0}, s{S_T3}, {base+hf*4096}")
                for j in range(4): e(f"buffer_load_dwordx4 a[{reg+16*hf+4*j}:{reg+16*hf+4*j+3}], v{vA}, {WS}, s{S_T0} offen offset:{j*1024} sc1")
        e(f"""s_mul_i32 s{S_T0}, s{n}, 1536
s_add_u32 s{S_T0}, s{S_T0}, {F_KV}
buffer_load_dwordx4 v[{F}:{F+3}], v{vF1}, {WS}, s{S_T0} offen sc1
s_lshl_b32 s{S_T0}, s{a}, 9
s_add_u32 s{S_T0}, s{S_T0}, {F_KM}
buffer_load_dwordx4 v[{F2}:{F2+3}], v{vF2}, {WS}, s{S_T0} offen sc1""")
    e(f"s_mul_i32 s{S_T1}, s{G_SEG}, 1536\ns_add_u32 s{S_T1}, s{S_T1}, {F_KV}")
    nxt(A_N1,G_SEG); nxt(A_N2,A_N1)
    poll4(e,F,vF1,S_T1,abort); qkv(0,G_SEG,A_N1); e("s_waitcnt vmcnt(0)")
    def scale(b,n):
        for i in range(0,n,2): rnd(e,b+i,t+(i//2)%4)
        for i in range(0,n,2): e(f"v_pk_mul_f32 v[{b+i}:{b+i+1}], v[{b+i}:{b+i+1}], s[{A_SC}:{A_SC+1}]")
        for i in range(0,n,2): rnd(e,b+i,t+(i//2)%4)
    lp=e.lab("al"); e(f"{lp}:")
    for st in range(2):
        Q=96*st; K=Q+32; V=Q+64
        for k in range(8): e(f"v_mfma_f32_32x32x16_bf16 v[{S}:{S+15}], a[{K+4*k}:{K+4*k+3}], a[{Q+4*k}:{Q+4*k+3}], {'0' if k==0 else f'v[{S}:{S+15}]'}")
        l1=e.lab("a1"); l2=e.lab("a2")
        feval(e,F2)
        e(f"s_cbranch_vccz {l1}\ns_waitcnt vmcnt(0)"); oflag()
        e(f"s_lshl_b32 s{S_T1}, s{G_SEG}, 9\ns_add_u32 s{S_T1}, s{S_T1}, {F_KM}")
        poll4(e,F2,vF2,S_T1,abort)
        e(f"{l1}:\ns_lshl_b32 s{S_T0}, s{G_SEG}, 16\ns_add_u32 s{S_T1}, s{S_T0}, {VM}\ns_add_u32 s{S_T0}, s{S_T0}, {KM}")
        for k in range(8): e(f"buffer_load_dwordx4 v[{KMr+4*k}:{KMr+4*k+3}], v{vKM}, {WS}, s{S_T0} offen offset:{k*256} sc1")
        for c in range(4): e(f"buffer_load_dwordx2 v[{VMr+2*c}:{VMr+2*c+1}], v{vVM}, {WS}, s{S_T1} offen offset:{c*512} sc1")
        feval(e,F)
        e(f"""s_cbranch_vccz {l2}
s_cmp_ge_u32 s{A_N1}, s{A_END}
s_cbranch_scc1 {l2}
s_mul_i32 s{S_T1}, s{A_N1}, 1536
s_add_u32 s{S_T1}, s{S_T1}, {F_KV}""")
        poll4(e,F,vF1,S_T1,abort)
        e(f"{l2}:"); qkv(1-st,A_N1,A_N2)
        scale(S,16)
        e(f"v_mov_b32 v{m+1}, 0xce6e6b28")
        for r in range(16): e(f"v_cndmask_b32 v{S+r}, v{S+r}, v{m+1}, s[{A_MK+2*r}:{A_MK+2*r+1}]")
        e(f"v_max3_f32 v{m}, v{S}, v{S+1}, v{S+2}")
        for r in range(3,15,2): e(f"v_max3_f32 v{m}, v{m}, v{S+r}, v{S+r+1}")
        e(f"v_max_f32 v{m}, v{m}, v{S+15}")
        for k in range(8):
            e(f"s_waitcnt vmcnt({26+11-k})\nv_mfma_f32_32x32x16_bf16 v[{SM}:{SM+15}], v[{KMr+4*k}:{KMr+4*k+3}], a[{Q+4*k}:{Q+4*k+3}], {'0' if k==0 else f'v[{SM}:{SM+15}]'}")
        e("s_waitcnt vmcnt(26)"); oflag()
        scale(SM,4)
        e(f"""v_max3_f32 v{m}, v{m}, v{SM}, v{SM+1}
v_max3_f32 v{m}, v{m}, v{SM+2}, v{SM+3}
v_mov_b32 v{m+1}, v{m}
v_permlane32_swap_b32 v{m+1}, v{m}
v_max_f32 v{m}, v{m}, v{m+1}
v_mul_f32 v{m}, {LOG2E}, v{m}
s_mov_b32 s{S_T0}, {LOG2E}""")
        for r in range(20): e(f"v_fma_f32 v{S+r}, v{S+r}, s{S_T0}, -v{m}")
        for r in range(20): e(f"v_exp_f32 v{S+r}, v{S+r}")
        e(pk("add",t,S,S+2)); e(pk("add",t+2,S+4,S+6))
        for i in range(8,20,4): e(pk("add",t,t,S+i)); e(pk("add",t+2,t+2,S+i+2))
        e(pk("add",t,t,t+2))
        e(f"""v_add_f32 v{m}, v{t}, v{t+1}
v_mov_b32 v{m+1}, v{m}
v_permlane32_swap_b32 v{m+1}, v{m}
v_add_f32 v{m}, v{m}, v{m+1}
v_rcp_f32 v{m}, v{m}
v_mov_b32 v{m+1}, v{m}""")
        for i in range(0,20,2): e(pk("mul",S+i,S+i,m))
        for i in range(10): e(f"v_cvt_pk_bf16_f32 v{Pb+i}, v{S+2*i}, v{S+2*i+1}")
        for c in range(4): e(f"v_mfma_f32_32x32x8_bf16 v[{O+16*c}:{O+16*c+15}], v[{VMr+2*c}:{VMr+2*c+1}], v[{Pb+8}:{Pb+9}], 0")
        for ab in range(2):
            for c in range(4): e(f"v_mfma_f32_32x32x16_bf16 v[{O+16*c}:{O+16*c+15}], a[{V+8*c+4*ab}:{V+8*c+4*ab+3}], v[{Pb+4*ab}:{Pb+4*ab+3}], v[{O+16*c}:{O+16*c+15}]")
        e(f"s_lshl_b32 s{S_T0}, s{G_SEG}, 18\ns_add_u32 s{S_T0}, s{S_T0}, {OB}\ns_add_u32 s{S_T1}, s{S_T0}, 4096")
        for c in range(4):
            for i in range(8): e(f"v_cvt_pk_bf16_f32 v{KMr+8*c+i}, v{O+16*c+2*i}, v{O+16*c+2*i+1}")
        bymode(e,3,lambda sc: [e(f"buffer_store_dwordx4 v[{KMr+8*c+4*ab}:{KMr+8*c+4*ab+3}], v{vA}, {WS}, s{S_T0+c//2} offen offset:{(c%2)*2048+ab*1024}{sc}") for c in range(4) for ab in range(2)])
        e(f"s_lshl_b32 s{A_FP}, s{G_SEG}, 5\ns_add_u32 s{A_FP}, s{A_FP}, {F_O}\ns_mov_b32 s{S_STEP}, 1")
        tl(e)
        e(f"s_mov_b32 s{G_SEG}, s{A_N1}\ns_mov_b32 s{A_N1}, s{A_N2}"); nxt(A_N2,A_N1)
        e(f"s_waitcnt vmcnt({8+(1 if TL[0] else 0)})")
    e(f"s_cmp_lt_u32 s{G_SEG}, s{A_END}\ns_cbranch_scc1 {lp}\ns_waitcnt vmcnt(0)"); oflag(); e(f"s_branch {done}")
```

```python
import sys
from asmlib import *
from common import *
from roles import *
import chain as CH
KW={a.split("=")[0]:int(a.split("=")[1]) for a in sys.argv[2:] if "=" in a}
SPLIT=KW.get("split",50); OPT.update(KW)
prof = "prof" in sys.argv
out=sys.argv[1]
N=KNAME+"_kernel"
e=Asm()
CH.TL[0]="tl" in sys.argv
import gemm as GM; GM.GP[0]="gp" in sys.argv
header(e,N); entry(e,"EXIT"); tl_init(e); tl(e); ticket_issue(e); pro_loads(e); ticket_finish(e,L_TK,41)
pro_mod(e); tl(e); pro_ln(e)
if CH.TL[0]: e(f"s_lshl_b32 s4, s{S_TEAM}, 8\ns_add_u32 s4, s4, s{S_RANK}"); tl_put(e,False)
T_KQ,T_V,T_WO,T_F1,T_F2,T_CH,T_NONE=range(7)
e(f"""ROLE0:
s_mov_b32 s{G_JOB}, 0
s_mov_b32 s{G_TYPE}, {T_NONE}
s_cmp_ge_u32 s{S_RANK}, 32
s_cbranch_scc1 ARR
s_sub_u32 s{G_X}, s{S_TEAM}, 4
s_cbranch_scc0 ARR
s_mov_b32 s{G_TYPE}, {T_CH}""")
chain_pre(e,"sc1")
e(f"ARR:\ns_cmp_eq_u32 s{S_MODE}, 0\ns_cbranch_scc0 ARR2")
arrive(e,32,230)
e("s_branch ARR3\nARR2:")
arrive(e,40,230)
e(f"""ARR3:
s_cmp_ge_u32 s{S_RANK}, 32
s_cbranch_scc1 HOOK
s_cmp_eq_u32 s{G_TYPE}, {T_CH}
s_cbranch_scc0 JOB""")
load_weights(e)
e("s_branch HOOK")
e(f"""NEXT:
s_add_u32 s{G_JOB}, s{G_JOB}, 1
JOB:
s_lshr_b32 s{S_T0}, s{S_RANK}, 3
s_and_b32 s{S_T1}, s{S_RANK}, 7
s_mov_b32 s{G_SEG}, 0
s_mov_b32 s{G_END}, {SPLIT}
s_cmp_eq_u32 s{S_T0}, 3
s_cbranch_scc0 JNT
s_cmp_eq_u32 s{G_JOB}, 3
s_cbranch_scc1 JMISC
s_mov_b32 s{S_T0}, s{G_JOB}
s_mov_b32 s{G_SEG}, {SPLIT}
s_mov_b32 s{G_END}, 64
s_branch JQKV
JNT:
s_cmp_eq_u32 s{G_JOB}, 0
s_cbranch_scc0 JB
JQKV:
s_lshl_b32 s{S_T2}, s{G_X}, 3
s_add_u32 s{S_T1}, s{S_T1}, s{S_T2}
s_lshl_b32 s{G_COL}, s{S_T1}, 8
s_lshl_b32 s{G_OUTB}, s{S_T1}, 13
s_lshl_b32 s{G_FOB}, s{S_T1}, 4
s_lshl_b32 s{S_T2}, s{S_W}, 2
s_add_u32 s{G_FOB}, s{G_FOB}, s{S_T2}
s_lshl_b32 s{S_T2}, s{S_T0}, 9
s_add_u32 s{G_FOB}, s{G_FOB}, s{S_T2}
s_add_u32 s{G_FOB}, s{G_FOB}, {F_KV}
s_mov_b32 s{G_INB}, {H1}
s_mov_b32 s{G_FIB}, {F_H1}
s_mov_b32 s{G_FN}, 3
s_mov_b32 s{G_TYPE}, {T_KQ}
s_cmp_eq_u32 s{S_T0}, 1
s_cbranch_scc1 JV
s_cmp_eq_u32 s{S_T0}, 2
s_cbranch_scc1 JQ
s_add_u32 s{G_OUTB}, s{G_OUTB}, {KB}""")
srd(e,SRD_A,P_WK,0x800000)
e(f"s_branch WLQ\nJV:\ns_add_u32 s{G_OUTB}, s{G_OUTB}, {VB}\ns_mov_b32 s{G_TYPE}, {T_V}")
srd(e,SRD_A,P_WV,0x800000)
e(f"s_branch WLQ\nJQ:\ns_add_u32 s{G_OUTB}, s{G_OUTB}, {QB}")
srd(e,SRD_A,P_WQ,0x800000)
e("WLQ:")
wload(e,8192,'P',1024)
e(f"s_cmp_eq_u32 s{G_JOB}, 0\ns_cbranch_scc0 MAIN\nHOOK:\ns_cmp_eq_u32 s{S_MODE}, 0\ns_cbranch_scc0 HOOK2")
tl(e,226)
wait_all(e,32,230,"ABORT")
e(f"s_cmp_lg_u64 vcc, 0\ns_cselect_b32 s{S_MODE}, 1, 0")
pro_fin(e)
tl(e,226)
e(f"""s_cmp_eq_u32 s{S_MODE}, 0
s_cbranch_scc1 MAIN
s_lshr_b32 s{S_TEAM}, s2, 5
s_and_b32 s{S_RANK}, s2, 31
s_waitcnt vmcnt(0)
s_barrier
s_branch ROLE0
HOOK2:""")
wait_all(e,40,230,"ABORT")
e(f"""MAIN:
s_cmp_eq_u32 s{G_TYPE}, {T_KQ}
s_cbranch_scc1 M_KQ
s_cmp_eq_u32 s{G_TYPE}, {T_V}
s_cbranch_scc1 M_V
s_cmp_eq_u32 s{G_TYPE}, {T_CH}
s_cbranch_scc0 ABORT
s_cmp_eq_u32 s{S_MODE}, 0
s_cbranch_scc0 M_CS""")
chain_main(e,"","ABORT","JR2",check_kv=True,prof=prof)
e("M_CS:")
chain_main(e,"sc1","ABORT","JR2",check_kv=True)
e("M_KQ:"); gemm_main(e,False,"B",64,16,64,18,1536,"ABORT","NEXT")
e("M_V:");  gemm_main(e,True,"B",64,16,64,18,1536,"ABORT","NEXT")
e(f"""JB:
s_cmp_eq_u32 s{G_JOB}, 1
s_cbranch_scc0 DONE
s_mov_b32 s{G_TYPE}, {T_KQ}
s_mov_b32 s{G_END}, 64
s_lshl_b32 s{S_T2}, s{G_X}, 3
s_add_u32 s{S_T2}, s{S_T2}, s{S_T1}
s_lshl_b32 s{G_FOB}, s{S_T2}, 4
s_lshl_b32 s{S_T2}, s{S_W}, 2
s_add_u32 s{G_FOB}, s{G_FOB}, s{S_T2}
s_lshl_b32 s{G_INB}, s{G_X}, 16
s_lshl_b32 s{G_COL}, s{S_T1}, 8
s_lshl_b32 s{G_OUTB}, s{S_T1}, 11
s_lshl_b32 s{S_T2}, s{G_X}, 14
s_add_u32 s{G_OUTB}, s{G_OUTB}, s{S_T2}
s_cmp_eq_u32 s{S_T0}, 1
s_cbranch_scc1 JF1
s_cmp_eq_u32 s{S_T0}, 2
s_cbranch_scc1 JF2
s_add_u32 s{G_FOB}, s{G_FOB}, {F_P1}
s_add_u32 s{G_INB}, s{G_INB}, {OB}
s_add_u32 s{G_OUTB}, s{G_OUTB}, {P1}
s_lshl_b32 s{S_T2}, s{G_X}, 21
s_add_u32 s{G_COL}, s{G_COL}, s{S_T2}
s_lshl_b32 s{G_FIB}, s{G_X}, 11
s_add_u32 s{G_FIB}, s{G_FIB}, {F_O}
s_mov_b32 s{G_FN}, 1""")
srd(e,SRD_A,P_WO,0x800000); wload(e,2048,'Q',1024)
gemm_main(e,False,"P",64,18,32,19,512,"ABORT","DONE")
e(f"""JF2:
s_add_u32 s{G_FOB}, s{G_FOB}, {F_P2}
s_add_u32 s{G_INB}, s{G_INB}, {FB}
s_add_u32 s{G_OUTB}, s{G_OUTB}, {P2}
s_mul_i32 s{S_T2}, s{G_X}, {896*2048}
s_add_u32 s{G_COL}, s{G_COL}, s{S_T2}
s_lshl_b32 s{G_FIB}, s{G_X}, 7
s_add_u32 s{G_FIB}, s{G_FIB}, {F_F}
s_mov_b32 s{G_FN}, 6""")
srd(e,SRD_A,P_W2,3584*2048); wload(e,2048,'Q',896)
gemm_main(e,False,"P",56,18,512,19,512,"ABORT","DONE")
e(f"""JF1:
s_cmp_eq_u32 s{S_T1}, 7
s_cbranch_scc1 DONE
s_add_u32 s{G_FOB}, s{G_FOB}, {F_F}
s_lshl_b32 s{G_OUTB}, s{S_T1}, 13
s_add_u32 s{G_OUTB}, s{G_OUTB}, s{G_INB}
s_add_u32 s{G_OUTB}, s{G_OUTB}, {FB}
s_mov_b32 s{G_INB}, {H2}
s_mul_i32 s{S_T2}, s{G_X}, {7*256}
s_add_u32 s{G_COL}, s{G_COL}, s{S_T2}
s_mov_b32 s{G_FIB}, {F_H2}
s_mov_b32 s{G_FN}, 7""")
srd(e,SRD_A,P_W1,1024*7168); wload(e,7168,'P',1024)
gemm_main(e,False,"R",64,16,128,18,512,"ABORT","DONE")
e(f"""JRED1:
s_cmp_eq_u32 s{A_END}, 64
s_cbranch_scc1 DONE
s_barrier
s_sub_u32 s{G_X}, s{S_TEAM}, 4
s_and_b32 s{S_T1}, s{S_RANK}, 7
JRED1B:
s_lshl_b32 s{R_TG}, s{G_X}, 1
s_and_b32 s{S_T2}, s{S_T1}, 1
s_add_u32 s{R_TG}, s{R_TG}, s{S_T2}
s_bfe_u32 s{G_SEG}, s{S_T1}, 0x10001""")
red(e,True,"ABORT","DONE",2)
e(f"""JR2:
s_and_b32 s{R_TG}, s{S_RANK}, 7
s_lshr_b32 s{G_SEG}, s{S_RANK}, 3
s_lshl_b32 s{S_T0}, s{S_TEAM}, 2
s_add_u32 s{G_SEG}, s{G_SEG}, s{S_T0}""")
tl(e); red(e,False,"ABORT","DONE",16)
AE=OPT.get('ae',16)
e(f"""JMISC:
s_cmp_lt_u32 s{S_T1}, 4
s_cselect_b32 s{A_END}, 64, {AE}""")
if AE==0: e("s_cbranch_scc0 JRED1B")
e(f"""s_lshl_b32 s{S_T1}, s{S_T1}, 2
s_add_u32 s{S_T1}, s{S_T1}, s{S_W}
s_lshr_b32 s{G_SEG}, s{S_T1}, 3
s_and_b32 s{S_T1}, s{S_T1}, 7
s_lshl_b32 s{A_H}, s{G_X}, 3
s_add_u32 s{A_H}, s{A_H}, s{S_T1}""")
att(e,"ABORT","JRED1")
e("DONE:"); tl(e); e("s_waitcnt vmcnt(0)\ns_endpgm")
abort_code(e,"ABORT","EXIT")
ref=open("cdna_kernels/"+KNAME+".s.ref").read()
head=ref[:ref.index("; @launch")]
txt=head+"; @launch grid=(256,1,1) block=(256,1,1) lds=147456\n.amdgcn_target \"amdgcn-amd-amdhsa--gfx950\"\n"+e.finish()+kdesc(N)
open(out,"w").write(txt); print("nops",e.nops,"lines",txt.count("\n"),"bytes",len(txt))
```

```python
from layout import *
OPT=dict(sp=2,pf=30)
S_WG=2; S_XCC=3
SRD_WS=8
SRD_A=12
SRD_B=16
SRD_DBG=20
S_P=24
P_X,P_MEM0,P_WQ,P_WK,P_WV,P_WO,P_SEG,P_BX,P_W1,P_W2,P_C,P_WMOD,P_OUT,P_DBG,P_WS = [24+2*i for i in range(15)]
S_W=54; S_TEAM=55; S_RANK=56; S_BUD=57; S_STEP=58
S_T0=59; S_T1=60; S_T2=61; S_T3=62; S_T4=63
S_MEM=64; S_MEMN=65; S_SC=66; S_O=67; S_PART=68; S_KV=69; S_KM=70; S_FL=71; S_MODE=72
S_PR=74
L_X=0
L_WO=9216
L_V=18432
L_KV=24576
L_STAGE=0
def srd(e, d, p, size):
    e(f"s_mov_b32 s{d}, s{p}\ns_mov_b32 s{d+1}, s{p+1}\ns_mov_b32 s{d+2}, {hex(size)}\ns_mov_b32 s{d+3}, 0x00020000")
WS=f"s[{SRD_WS}:{SRD_WS+3}]"
vL=0; vT=1; vT2=2; vT3=3; vG=4; vIdx=5; vXw=6; vVw=7; vXr=8; vVr=9; vWr=10; vKr=11; vVk=12
vSCw=13; vSCw0=14; vSCr=15; vSCr0=16; vOw=17; vPw=18; vPr=19; vMw=20; vPois=21
vZ=22; vKMw=23
vP4=24
vA=28
vD=44
vX=172
vXb=76
vK=80
vVV=88
vS=96
vC=108
vVm=128
vVq=204
vPb=136
vO=144
vU=152
vZ4=168
def lane_setup(e):
    e(f"""v_and_b32 v{vT}, 15, v{vL}
v_lshrrev_b32 v{vT2}, 4, v{vL}
s_lshl_b32 s{S_T0}, s{S_TEAM}, 16
s_lshl_b32 s{S_T1}, s{S_W}, 12
s_add_u32 s{S_T1}, s{S_T1}, s{S_T0}
v_lshlrev_b32 v{vG}, 4, v{vL}
v_add_u32 v{vG}, s{S_T1}, v{vG}
v_mov_b32 v{vIdx}, 0x4444
v_mov_b32 v{vT3}, 0xeeee
v_cmp_le_u32 vcc, 8, v{vT}
v_cndmask_b32 v{vIdx}, v{vIdx}, v{vT3}, vcc
v_and_b32 v{vT3}, 1, v{vT2}
v_mul_u32_u24 v{vXw}, 576, v{vT3}
v_lshl_add_u32 v{vXw}, v{vT}, 2, v{vXw}
v_lshrrev_b32 v{vU}, 1, v{vT2}
v_lshl_add_u32 v{vXw}, v{vU}, 6, v{vXw}
s_mul_i32 s{S_T1}, s{S_W}, 2304
v_add_u32 v{vXw}, s{S_T1}, v{vXw}
v_lshlrev_b32 v{vVw}, 4, v{vT3}
v_lshl_add_u32 v{vVw}, v{vT}, 5, v{vVw}
v_lshl_add_u32 v{vVw}, v{vU}, 9, v{vVw}
s_lshl_b32 s{S_T1}, s{S_W}, 10
v_add_u32 v{vVw}, s{S_T1}, v{vVw}
v_mul_u32_u24 v{vXr}, 144, v{vT}
v_lshl_add_u32 v{vXr}, v{vT3}, 4, v{vXr}
v_lshl_add_u32 v{vXr}, v{vU}, 6, v{vXr}
v_lshlrev_b32 v{vVr}, 5, v{vT}
v_lshl_add_u32 v{vVr}, v{vT2}, 3, v{vVr}
v_bfe_u32 v{vU+1}, v{vL}, 1, 3
v_mul_u32_u24 v{vWr}, 144, v{vU+1}
v_lshl_add_u32 v{vWr}, v{vT2}, 5, v{vWr}
v_and_b32 v{vU+1}, 1, v{vL}
v_lshl_add_u32 v{vWr}, v{vU+1}, 4, v{vWr}
v_lshlrev_b32 v{vVk}, 10, v{vU}
v_lshl_add_u32 v{vVk}, v{vT3}, 9, v{vVk}
v_add_u32 v{vVk}, {L_KV}, v{vVk}
v_lshrrev_b32 v{vU+1}, 3, v{vT}
v_lshl_add_u32 v{vKr}, v{vU+1}, 8, v{vVk}
v_and_b32 v{vU+2}, 7, v{vL}
v_lshl_add_u32 v{vKr}, v{vU+2}, 4, v{vKr}
v_lshl_add_u32 v{vVk}, v{vT}, 4, v{vVk}
s_mul_i32 s{S_T1}, s{S_TEAM}, 163840
s_mul_i32 s{S_T2}, s{S_RANK}, 1280
s_add_u32 s{S_T2}, s{S_T2}, s{S_T1}
v_lshlrev_b32 v{vSCw}, 7, v{vT2}
v_lshl_add_u32 v{vSCw}, v{vT}, 4, v{vSCw}
s_lshl_b32 s{S_T3}, s{S_RANK}, 9
s_add_u32 s{S_T3}, s{S_T3}, s{S_T0}
v_add_u32 v{vOw}, s{S_T3}, v{vSCw}
v_add_u32 v{vSCw}, s{S_T2}, v{vSCw}
v_add_u32 v{vSCw0}, 768, v{vSCw}
v_mov_b32 v{vU+3}, {hex(OOB)}
v_cmp_le_u32 vcc, 8, v{vT}
v_cndmask_b32 v{vSCw}, v{vSCw}, v{vU+3}, vcc
v_cndmask_b32 v{vOw}, v{vOw}, v{vU+3}, vcc
v_cndmask_b32 v{vSCw0}, v{vSCw0}, v{vU+3}, vcc
v_cmp_gt_u32 vcc, 2, v{vT2}
v_cndmask_b32 v{vSCw0}, v{vSCw0}, v{vU+3}, vcc
s_and_b32 s{S_T2}, s{S_RANK}, 28
s_mul_i32 s{S_T2}, s{S_T2}, 1280
s_add_u32 s{S_T2}, s{S_T2}, s{S_T1}
v_lshlrev_b32 v{vSCr}, 9, v{vU+1}
v_lshl_add_u32 v{vSCr}, v{vT2}, 7, v{vSCr}
v_lshl_add_u32 v{vSCr}, v{vU+2}, 4, v{vSCr}
v_add_u32 v{vSCr}, s{S_T2}, v{vSCr}
v_lshrrev_b32 v{vSCr0}, 5, v{vL}
v_lshlrev_b32 v{vSCr0}, 7, v{vSCr0}
v_lshl_add_u32 v{vSCr0}, v{vU+2}, 4, v{vSCr0}
v_bfe_u32 v{vU+4}, v{vL}, 3, 2
v_lshl_add_u32 v{vSCr0}, v{vU+4}, 2, v{vSCr0}
s_add_u32 s{S_T2}, s{S_T2}, 1024
v_add_u32 v{vSCr0}, s{S_T2}, v{vSCr0}
s_lshl_b32 s{S_T2}, s{S_RANK}, 12
v_lshlrev_b32 v{vPr}, 4, v{vL}
v_add_u32 v{vPr}, s{S_T2}, v{vPr}
s_lshl_b32 s{S_T2}, s{S_TEAM}, 10
v_add_u32 v{vPw}, s{S_T2}, v{vPr}
v_lshlrev_b32 v{vMw}, 3, v{vL}
v_add_u32 v{vMw}, s{S_T3}, v{vMw}
v_mov_b32 v{vZ}, 0""")
    for i in range(4): e(f"v_mov_b32 v{vP4+i}, -1\nv_mov_b32 v{vZ4+i}, 0")
    e(f"v_mov_b32 v{vPb+5}, 0\nv_mov_b32 v{vVm+5}, 0\nv_mov_b32 v{vVm+7}, 0")

def poison(e, slotreg, st, m=vP4):
    e(f"""s_lshl_b32 s{S_T0}, s{slotreg}, 14
s_add_u32 s{S_T1}, s{S_T0}, {CH_O}""")
    if m is not None: e(f"buffer_store_dwordx2 v[{m}:{m+1}], v{vMw}, {WS}, s{S_T0} offen {st}")
    e(f"""buffer_store_dwordx2 v[{vP4}:{vP4+1}], v{vMw}, {WS}, s{S_T1} offen {st}
s_mul_i32 s{S_T0}, s{slotreg}, 40960
s_add_u32 s{S_T0}, s{S_T0}, {CH_SC}
s_lshl_b32 s{S_T1}, s{slotreg}, 17
s_add_u32 s{S_T1}, s{S_T1}, {CH_PART}
buffer_store_dwordx4 v[{vP4}:{vP4+3}], v{vU+8}, {WS}, s{S_T0} offen {st}
buffer_store_dword v{vP4}, v{vU+9}, {WS}, s{S_T0} offen {st}
buffer_store_dwordx4 v[{vP4}:{vP4+3}], v{vPw}, {WS}, s{S_T1} offen sc1""")

def load_weights(e, h1=None, h2=None):
    vR=vU; vB1=vU+1; vB2=vU+2; vAd=vU+3
    e(f"""v_lshrrev_b32 v{vR}, 2, v{vL}
v_and_b32 v{vT3}, 3, v{vL}
v_lshlrev_b32 v{vT3}, 4, v{vT3}
s_lshl_b32 s{S_T0}, s{S_W}, 8
v_add_u32 v{vR}, s{S_T0}, v{vR}
s_lshl_b32 s{S_T1}, s{S_TEAM}, 11
s_lshl_b32 s{S_T2}, s{S_RANK}, 6
s_add_u32 s{S_T1}, s{S_T1}, s{S_T2}
v_lshl_add_u32 v{vB1}, v{vR}, 13, v{vT3}
v_add_u32 v{vB1}, s{S_T1}, v{vB1}
s_lshl_b32 s{S_T1}, s{S_TEAM}, 21
s_add_u32 s{S_T1}, s{S_T1}, s{S_T2}
v_lshl_add_u32 v{vB2}, v{vR}, 11, v{vT3}
v_add_u32 v{vB2}, s{S_T1}, v{vB2}
s_lshl_b32 s{S_T4}, s{S_W}, 15
s_add_u32 s{S_T4}, s{S_T4}, {L_STAGE}""")
    vq=vU+4; vo=vU+5; t=vU+6; t2=vU+7
    e(f"""v_lshrrev_b32 v{t}, 1, v{vT2}
v_and_b32 v{t2}, 1, v{vT2}
v_lshlrev_b32 v{vq}, 4, v{t}
v_lshl_add_u32 v{vq}, v{t2}, 2, v{vq}
v_lshlrev_b32 v{vo}, 3, v{t}
v_lshl_add_u32 v{vo}, v{t2}, 4, v{vo}
v_bfe_u32 v{t}, v{vL}, 3, 1
v_lshl_add_u32 v{vq}, v{t}, 3, v{vq}
v_lshl_add_u32 v{vo}, v{t}, 2, v{vo}
v_bfe_u32 v{t}, v{vL}, 2, 1
v_add_u32 v{vq}, v{vq}, v{t}
v_add_u32 v{vo}, v{vo}, v{t}
v_and_b32 v{t}, 3, v{vL}
v_lshlrev_b32 v{t}, 3, v{t}
v_add_u32 v{t}, s{S_T4}, v{t}
v_lshl_add_u32 v{vq}, v{vq}, 6, v{t}
v_lshl_add_u32 v{vo}, v{vo}, 6, v{t}""")
    def dma(blk):
        p=[P_WQ,P_WK,P_WV,P_WO][blk]
        sr = SRD_A if blk%2==0 else SRD_B
        srd(e, sr, p, 0x800000)
        for i in range(16):
            e(f"s_add_u32 m0, s{S_T4}, {(blk%2)*16384+i*1024}")
            step = i*16*(8192 if blk<3 else 2048)
            e(f"s_mov_b32 s{S_T0}, {step}")
            e(f"buffer_load_dwordx4 v{vB1 if blk<3 else vB2}, s[{sr}:{sr+3}], s{S_T0} offen lds")
    def tr(blk):
        for tile in range(2):
            for t_ in range(4):
                base = (blk*2+tile)*32 + t_*8 if blk<3 else 192 + tile*32 + t_*8
                for p in range(4):
                    off=(blk%2)*16384 + (64*t_+32*(p>>1)+2*(p&1))*64 + tile*32
                    e(f"ds_read_b64_tr_b16 a[{base+2*p}:{base+2*p+1}], v{vq if blk<3 else vo} offset:{off}")
    W=OPT.get('wt',0)
    def st():
        if W: tl(e,226)
    dma(0)
    if h1: h1()
    dma(1)
    if h2: h2()
    e("s_waitcnt vmcnt(16)"); tr(0); e("s_waitcnt lgkmcnt(0)"); st(); dma(2)
    e(f"s_waitcnt vmcnt({16+W})"); tr(1); e("s_waitcnt lgkmcnt(0)"); st(); dma(3)
    e(f"s_waitcnt vmcnt({16+W})"); tr(2); st()
    e("s_waitcnt vmcnt(0)"); tr(3); e("s_waitcnt lgkmcnt(0)")

def chain_init(e, st):
    chain_pre(e, st); load_weights(e)
def chain_pre(e, st):
    chain_pre1(e)
    poison(e, S_W, st, None)
    l=e.lab("ci"); l2=e.lab("cj")
    e(f"""s_lshl_b32 s{S_T0}, s{S_W}, 14
s_cmp_lg_u32 s{S_W}, 0
s_cbranch_scc1 {l}
s_waitcnt vmcnt(4)
buffer_store_dwordx2 v[{vU+14}:{vU+15}], v{vMw}, {WS}, s{S_T0} offen {st}
s_branch {l2}
{l}:
buffer_store_dwordx2 v[{vP4}:{vP4+1}], v{vMw}, {WS}, s{S_T0} offen {st}
{l2}:""")
def chain_pre1(e):
    lane_setup(e)
    e(f"""s_mul_i32 s{S_T1}, s{S_TEAM}, 163840
s_mul_i32 s{S_T2}, s{S_RANK}, 1280
s_add_u32 s{S_T2}, s{S_T2}, s{S_T1}
v_lshl_add_u32 v{vU+8}, v{vL}, 4, s{S_T2}
s_add_u32 s{S_T2}, s{S_T2}, 1024
v_lshl_add_u32 v{vU+9}, v{vL}, 2, s{S_T2}""")
    srd(e, SRD_A, P_MEM0, 16384)
    e(f"""v_bfe_u32 v{vU}, v{vL}, 1, 3
v_lshlrev_b32 v{vU}, 11, v{vU}
v_lshl_add_u32 v{vU}, v{vT2}, 4, v{vU}
v_and_b32 v{vU+1}, 1, v{vL}
v_lshl_add_u32 v{vU}, v{vU+1}, 3, v{vU}
s_lshl_b32 s{S_T0}, s{S_RANK}, 6
buffer_load_dwordx2 v[{vU+14}:{vU+15}], v{vU}, s[{SRD_A}:{SRD_A+3}], s{S_T0} offen""")
def chain_pre2(e, st):
    for i in range(4): e(f"v_mov_b32 v{vZ4+i}, 0")
    l=e.lab("ci"); l2=e.lab("cj")
    e(f"s_cmp_lg_u32 s{S_W}, 0\ns_cbranch_scc1 {l}")
    poison(e, S_W, st, vU+14)
    e(f"s_branch {l2}\n{l}:")
    poison(e, S_W, st)
    e(f"{l2}:")

TL=[False]
def tl_init(e):
    if TL[0]: e(f"s_lshl_b32 s6, s2, 10\ns_add_u32 s6, s6, {PROF+0x10000}\ns_cmp_eq_u32 s{S_W}, 0\ns_cselect_b32 s7, 0, {hex(OOB)}")
def tl_get(e):
    if TL[0]: e("s_memrealtime s[4:5]")
def tl_put(e, wait=True, v=14):
    if TL[0]:
        if wait: e("s_waitcnt lgkmcnt(0)")
        e(f"v_mov_b32 v{v}, s4\nv_mov_b32 v{v+1}, s7\nbuffer_store_dword v{v}, v{v+1}, {WS}, s6 offen\ns_add_u32 s6, s6, 4")
def tl(e,v=14):
    tl_get(e); tl_put(e,True,v)
def stamp(e, prof, i):
    if prof: e(f"s_memtime s[{S_PR+2*i}:{S_PR+2*i+1}]")

PF=[None]
def failc(e,i):
    if PF[0]: e(f'v_add_u32 v{246+i}, 1, v{246+i}')
def gather(e, sreg, abort, pre=None, fc=None):
    lp=e.lab("g"); ok=e.lab("gok")
    e(f"{lp}:")
    for t in range(4): e(f"buffer_load_dwordx4 v[{vA+4*t}:{vA+4*t+3}], v{vG}, {WS}, s{sreg} offen offset:{t*1024} sc1")
    if pre: pre()
    e(f"""s_waitcnt vmcnt(0)
v_max3_u32 v{vU}, v{vA}, v{vA+2}, v{vA+4}
v_max3_u32 v{vU+1}, v{vA+6}, v{vA+8}, v{vA+10}
v_max3_u32 v{vU}, v{vU}, v{vA+12}, v{vA+14}
v_max_u32 v{vU}, v{vU}, v{vU+1}
v_cmp_eq_u32 vcc, -1, v{vU}
s_cbranch_vccz {ok}""")
    if fc is not None: failc(e,fc)
    e(f"""s_sub_u32 s{S_BUD}, s{S_BUD}, 1
s_cbranch_scc0 {lp}
s_branch {abort}
{ok}:""")
def gather2(e, sreg, abort, work, fc=None, st=None):
    C=[e.lab("gc") for _ in range(4)]; R=[e.lab("gr") for _ in range(4)]
    ld=lambda t: e(f"buffer_load_dwordx4 v[{vA+4*t}:{vA+4*t+3}], v{vG}, {WS}, s{sreg} offen offset:{t*1024} sc1")
    for t in range(4): ld(t)
    for t in range(4):
        e(f"""{C[t]}:
s_waitcnt vmcnt({3-t})
v_max_u32 v{vU}, v{vA+4*t}, v{vA+4*t+2}
v_cmp_eq_u32 vcc, -1, v{vU}
s_cbranch_vccnz {R[t]}""")
        if t==3 and st: st()
        work(t)
    def tail():
        for t in range(4):
            e(f"{R[t]}:")
            for u in range(t,4): ld(u)
            if fc is not None: failc(e,fc)
            e(f"s_sub_u32 s{S_BUD}, s{S_BUD}, 1\ns_cbranch_scc0 {C[t]}\ns_branch {abort}")
    return tail
def smf(e, d, t, a): e(f"v_smfmac_f32_16x16x64_bf16 v[{d}:{d+3}], v[{vA+4*t}:{vA+4*t+3}], a[{a}:{a+7}], v{vIdx}")
def fold(e, d):
    for i in range(4): e(f"v_permlane32_swap_b32 v{d+i}, v{d+4+i}")
    e(f"v_pk_add_f32 v[{d}:{d+1}], v[{d}:{d+1}], v[{d+4}:{d+5}]\nv_pk_add_f32 v[{d+2}:{d+3}], v[{d+2}:{d+3}], v[{d+6}:{d+7}]")
def qk_phase(e,st=None):
    for p in range(2):
        fold(e, vD+8*p)
        for i in range(4): e(f"ds_write_b32 v{vXw}, v{vD+8*p+i} offset:{L_X+p*1152+i*144}")
    if st: st()
    e("s_waitcnt lgkmcnt(0)\ns_barrier")
def v_phase(e,pre=None):
    for t in range(4):
        for tile in range(2): smf(e, vD+16+4*tile, t, (4+tile)*32+t*8)
    fold(e, vD+16)
    e(f"ds_write_b128 v{vVw}, v[{vD+16}:{vD+19}] offset:{L_V}")
    if pre: pre()
    e("s_waitcnt lgkmcnt(0)\ns_barrier")
def qk_work(e): return lambda t: [smf(e, vD+4*tile, t, tile*32+t*8) for tile in range(4)]
def wo_work(e): return lambda t: [smf(e, vD+4*tile, t, 192+tile*32+t*8) for tile in range(2)]
def wo_phase(e):
    fold(e, vD)
    for i in range(4): e(f"ds_write_b32 v{vXw}, v{vD+i} offset:{L_WO+i*144}")
    e("s_waitcnt lgkmcnt(0)\ns_barrier")
def sum4(e, b, n, stride, waits=None):
    for k in range(0,n,2): e(f"v_pk_add_f32 v[{b+k}:{b+k+1}], v[{b+k}:{b+k+1}], v[{b+stride+k}:{b+stride+k+1}]")
    if waits: e(waits)
    for k in range(0,n,2): e(f"v_pk_add_f32 v[{b+2*stride+k}:{b+2*stride+k+1}], v[{b+2*stride+k}:{b+2*stride+k+1}], v[{b+3*stride+k}:{b+3*stride+k+1}]")
    for k in range(0,n,2): e(f"v_pk_add_f32 v[{b+k}:{b+k+1}], v[{b+k}:{b+k+1}], v[{b+2*stride+k}:{b+2*stride+k+1}]")
def zero_acc(e, lo, n):
    for i in range(n): e(f"v_mov_b32 v{vD+lo+i}, 0")
def slots(e):
    e(f"""s_and_b32 s{S_T0}, s{S_STEP}, 3
s_lshl_b32 s{S_MEM}, s{S_T0}, 14
s_add_u32 s{S_O}, s{S_MEM}, {CH_O}
s_mul_i32 s{S_SC}, s{S_T0}, 40960
s_add_u32 s{S_SC}, s{S_SC}, {CH_SC}
s_lshl_b32 s{S_PART}, s{S_T0}, 17
s_add_u32 s{S_PART}, s{S_PART}, {CH_PART}
s_add_u32 s{S_MEMN}, s{S_MEM}, 16384
s_and_b32 s{S_MEMN}, s{S_MEMN}, 0xffff""")
def read_x(e):
    for w in range(4): e(f"ds_read_b128 v[{vX+8*w}:{vX+8*w+3}], v{vXr} offset:{L_X+2304*w}\nds_read_b128 v[{vX+8*w+4}:{vX+8*w+7}], v{vXr} offset:{L_X+2304*w+32}")
def cvt_x(e):
    for i in range(4): e(f"v_cvt_pk_bf16_f32 v{vXb+i}, v{vX+2*i}, v{vX+2*i+1}")
def kv_prefetch(e, abort, check):
    if check:
        lp=e.lab("kf"); ok=e.lab("kok")
        if check==2: e(f"v_cmp_ne_u32 vcc, 1, v{vU+12}\ns_cbranch_vccz {ok}")
        e(f"""s_mul_i32 s{S_T0}, s{S_KV}, 1536
s_add_u32 s{S_T0}, s{S_T0}, {F_KV}
{lp}:
buffer_load_dword v{vU+12}, v{vU+11}, {WS}, s{S_T0} offen sc1
s_waitcnt vmcnt(0)
v_cmp_ne_u32 vcc, 1, v{vU+12}
s_cbranch_vccz {ok}
s_sub_u32 s{S_BUD}, s{S_BUD}, 1
s_cbranch_scc0 {lp}
s_branch {abort}
{ok}:""")
    e(f"""s_and_b32 s{S_T1}, s{S_KV}, 1
s_lshl_b32 s{S_T1}, s{S_T1}, 12
s_lshl_b32 s{S_T0}, s{S_KV}, 18
s_add_u32 m0, s{S_T1}, {L_KV}
s_add_u32 s{S_T2}, s{S_T0}, {KB}
buffer_load_dwordx4 v{vU+10}, {WS}, s{S_T2} offen sc1 lds
buffer_load_dwordx4 v{vU+10}, {WS}, s{S_T2} offen offset:1024 sc1 lds
s_add_u32 m0, s{S_T1}, {L_KV+2048}
s_add_u32 s{S_T2}, s{S_T0}, {VB}
buffer_load_dwordx4 v{vU+10}, {WS}, s{S_T2} offen sc1 lds
buffer_load_dwordx4 v{vU+10}, {WS}, s{S_T2} offen offset:1024 sc1 lds""")

def chain_main(e, st, abort, done, check_kv=True, prof=False, NSTEP=64):
    lead=e.lab("lead");
    e(f"s_mov_b32 s{S_STEP}, 0")
    slots(e); zero_acc(e,0,24)
    e(f"s_cmp_eq_u32 s{S_W}, 0\ns_cbranch_scc1 {lead}")
    e(f"""s_lshl_b32 s{S_T0}, s{S_TEAM}, 5
s_add_u32 s{S_T0}, s{S_T0}, s{S_RANK}
s_lshl_b32 s{S_T1}, s{S_T0}, 11
v_lshl_add_u32 v{vU+10}, v{vL}, 4, s{S_T1}
s_lshl_b32 s{S_T1}, s{S_T0}, 2
v_and_b32 v{vU+11}, 1, v{vL}
v_lshl_add_u32 v{vU+11}, v{vU+11}, 9, s{S_T1}
s_lshl_b32 s{S_T1}, s{S_T0}, 9
v_lshlrev_b32 v{vKMw}, 7, v{vT2}
v_lshl_add_u32 v{vKMw}, v{vT}, 4, v{vKMw}
v_subrev_u32 v{vKMw}, 128, v{vKMw}
v_add_u32 v{vKMw}, s{S_T1}, v{vKMw}
v_mov_b32 v{vU+3}, {hex(OOB)}
v_cmp_gt_u32 vcc, 8, v{vT}
v_cndmask_b32 v{vKMw}, v{vKMw}, v{vU+3}, vcc
v_lshl_add_u32 v{vU+13}, v{vL}, 3, s{S_T1}
v_and_b32 v{vVr}, 31, v{vL}
v_lshlrev_b32 v{vVr}, 5, v{vVr}
v_lshrrev_b32 v{vU+3}, 5, v{vL}
v_lshl_add_u32 v{vVr}, v{vU+3}, 4, v{vVr}
s_lshl_b32 s{S_T1}, s{S_T0}, 2
v_mov_b32 v{vU+14}, s{S_T1}
v_mov_b32 v{vU+15}, 1
v_lshlrev_b32 v{vU+7}, 4, v{vL}
s_mov_b32 s{S_KV}, 0""")
    ZA=OPT.get('za',24); OW=OPT.get('ow',0)
    if OW:
        for x in range(1,4): e(f"v_xor_b32 v{219+x}, {x*1024}, v{vPw}")
    def kvflag(add): e(f"s_mul_i32 s{S_T0}, s{S_STEP}, 1536\ns_add_u32 s{S_T0}, s{S_T0}, {F_KV+1536*add}\nbuffer_load_dword v{vU+12}, v{vU+11}, {WS}, s{S_T0} offen sc1")
    def kmflag(d): e(f"s_lshl_b32 s{S_T0}, s{S_STEP}, 9\ns_add_u32 s{S_T0}, s{S_T0}, {F_KM+512*d}\nbuffer_store_dword v{vU+15}, v{vU+14}, {WS}, s{S_T0} offen sc1")
    h0=e.lab("h0")
    e(f"s_cmp_lg_u32 s{S_W}, 2\ns_cbranch_scc1 {h0}")
    kv_prefetch(e, abort, 1); kvflag(1)
    e(f"{h0}:")
    if prof: e(f"v_mov_b32 v250, 0\nds_write_b32 v{vZ}, v250 offset:40000")
    hl=e.lab("hl"); e(f"{hl}:")
    t1=gather2(e, S_MEM, abort, qk_work(e))
    KW=OPT.get('kw',1)
    qk_phase(e)
    if KW==3:
        k3=e.lab("k3"); e(f"s_cmp_lg_u32 s{S_W}, 3\ns_cbranch_scc1 {k3}\ns_cmp_eq_u32 s{S_STEP}, 0\ns_cbranch_scc1 {k3}"); kmflag(-1); e(f"{k3}:")
    v_phase(e)
    b=e.lab("b"); c=e.lab("c"); b3=e.lab("b3")
    e(f"s_cmp_lg_u32 s{S_W}, 1\ns_cbranch_scc1 {b}")
    if KW==3: e(f"s_cmp_lt_u32 s{S_STEP}, {NSTEP-1}\ns_cbranch_scc1 {c}")
    def kmred():
        read_x(e)
        for w in range(4): e(f"ds_read_b128 v[{vVq+4*w}:{vVq+4*w+3}], v{vVr} offset:{L_V+1024*w}")
        e("s_waitcnt lgkmcnt(0)")
        sum4(e, vX, 8, 8); sum4(e, vVq, 4, 4)
        cvt_x(e)
        e(f"""v_cvt_pk_bf16_f32 v{vVm+4}, v{vVq}, v{vVq+1}
v_cvt_pk_bf16_f32 v{vVm+5}, v{vVq+2}, v{vVq+3}""")
    kmred()
    def kmst(): e(f"""s_lshl_b32 s{S_T0}, s{S_STEP}, 16
s_add_u32 s{S_T1}, s{S_T0}, {VM}
s_add_u32 s{S_T0}, s{S_T0}, {KM}
buffer_store_dwordx4 v[{vXb}:{vXb+3}], v{vKMw}, {WS}, s{S_T0} offen sc1
buffer_store_dwordx2 v[{vVm+4}:{vVm+5}], v{vU+13}, {WS}, s{S_T1} offen sc1""")
    def pois():
        e(f"s_add_u32 s{S_T4}, s{S_STEP}, 2\ns_and_b32 s{S_T4}, s{S_T4}, 3"); poison(e, S_T4, st)
    PO=OPT.get('po',2)
    e(f"s_cmp_lt_u32 s{S_STEP}, {NSTEP-1}\ns_cbranch_scc1 {c}")
    KF=OPT.get('kf',1)
    if not KF: kmflag(-1)
    kmst(); e("s_waitcnt vmcnt(0)"); kmflag(0)
    e(f"""s_branch {done}
{b}:
s_cmp_lt_u32 s{S_STEP}, {NSTEP-1}
s_cbranch_scc0 {done}""")
    if PO==1:
        e(f"s_cmp_lg_u32 s{S_W}, 3\ns_cbranch_scc1 {c}"); pois()
    e(f"{c}:"); zero_acc(e,ZA,24-ZA); e("s_barrier")
    zero_acc(e,0,ZA)
    t2=gather2(e, S_O, abort, wo_work(e))
    wo_phase(e)
    f=e.lab("f"); g=e.lab("g"); f3=e.lab("f3"); f0=e.lab("f0")
    LB=OPT.get('lb',0)
    if LB: e("s_barrier")
    e(f"s_cmp_lg_u32 s{S_W}, 1\ns_cbranch_scc1 {f}")
    if not KF: e(f"s_cmp_eq_u32 s{S_STEP}, 0\ns_cbranch_scc1 {f0}"); kmflag(-1); e(f"{f0}:")
    if KW!=3: kmst()
    if PO==2: pois()
    bb="" if LB==1 else "s_barrier\n"
    e(bb)
    if KF and KW!=3: assert PO==2; e("s_waitcnt vmcnt(5)"); kmflag(0)
    lp=e.lab("pp"); ok=e.lab("ppok"); DP=OPT.get('dp',0)
    e(f"s_branch {lp if DP else g}\n{f}:\ns_cmp_lg_u32 s{S_W}, 2\ns_cbranch_scc1 {f3}\ns_add_u32 s{S_KV}, s{S_STEP}, 1")
    if not OPT.get('x1'): kv_prefetch(e, abort, 2); kvflag(2)
    e(f"{bb}s_branch {g}\n{f3}:")
    if LB==2: zero_acc(e,0,8)
    e(bb)
    if LB!=2: zero_acc(e,0,8)
    for i in range(OPT.get('pd',0)): e(f"v_mov_b32 v{vD+i%8}, 0")
    if DP==2: e(f"s_branch {g}")
    def pld():
        for x in range(4):
            if OW and x: e(f"buffer_load_dwordx4 v[{vC+4*x}:{vC+4*x+3}], v{219+x}, {WS}, s{S_PART} offen sc1")
            elif not OW: e(f"buffer_load_dwordx4 v[{vC+4*x}:{vC+4*x+3}], v{vPr}, {WS}, s{S_PART} offen offset:{x*1024} sc1")
    P0=vX if OW else vC
    if OW:
        if OW==2: pld()
        for w in range(4): e(f"ds_read_b128 v[{vX+4*w}:{vX+4*w+3}], v{vWr} offset:{L_WO+2304*w}")
        e("s_waitcnt lgkmcnt(2)")
        sum4(e, vX, 4, 4, "s_waitcnt lgkmcnt(0)")
        if OW==2: e(f"s_branch {lp}_c")
    def pchk(n): e(f"""s_waitcnt vmcnt({2+n})
v_pk_add_f32 v[{vC}:{vC+1}], v[{P0}:{P0+1}], v[{vC+4}:{vC+5}]
v_pk_add_f32 v[{vC+2}:{vC+3}], v[{P0+2}:{P0+3}], v[{vC+6}:{vC+7}]
s_waitcnt vmcnt({n})
v_pk_add_f32 v[{vC+8}:{vC+9}], v[{vC+8}:{vC+9}], v[{vC+12}:{vC+13}]
v_pk_add_f32 v[{vC+10}:{vC+11}], v[{vC+10}:{vC+11}], v[{vC+14}:{vC+15}]
v_pk_add_f32 v[{vC}:{vC+1}], v[{vC}:{vC+1}], v[{vC+8}:{vC+9}]
v_pk_add_f32 v[{vC+2}:{vC+3}], v[{vC+2}:{vC+3}], v[{vC+10}:{vC+11}]
v_cmp_u_f32 vcc, v{vC}, v{vC}
v_cvt_pk_bf16_f32 v{vC+4}, v{vC}, v{vC+1}
v_cvt_pk_bf16_f32 v{vC+5}, v{vC+2}, v{vC+3}
s_cbranch_vccz {ok}""")
    if KW==3: assert KF; kmred(); pld(); kmst(); pchk(2)
    e(f"{lp}:"); pld(); e(f"{lp}_c:"); pchk(0)
    if prof: e(f"v_add_u32 v250, 1, v250\nds_write_b32 v{vZ}, v250 offset:40000")
    e(f"""s_sub_u32 s{S_BUD}, s{S_BUD}, 1
s_cbranch_scc0 {lp}
s_branch {abort}
{ok}:
buffer_store_dwordx2 v[{vC+4}:{vC+5}], v{vMw}, {WS}, s{S_MEMN} offen {st}
{g}:
s_barrier
s_add_u32 s{S_STEP}, s{S_STEP}, 1""")
    slots(e); zero_acc(e,0,8)
    e(f"s_branch {hl}")
    t1(); t2()
    e(f"{lead}:")
    if prof:
        for i in range(20): e(f"v_mov_b32 v{230+i}, 0")
    PF[0]=prof
    ll=e.lab("ll"); e(f"{ll}:")
    tl_get(e); tl_put(e,True,226)
    stamp(e,prof,0)
    t1=gather2(e, S_MEM, abort, qk_work(e), 0, lambda: stamp(e,prof,1))
    qk_phase(e,lambda: stamp(e,prof,2))
    stamp(e,prof,3)
    read_x(e)
    e(f"ds_read_b128 v[{vK}:{vK+3}], v{vKr}\nds_read_b128 v[{vK+4}:{vK+7}], v{vKr} offset:128\ns_waitcnt lgkmcnt(6)")
    sum4(e, vX, 8, 8, "s_waitcnt lgkmcnt(2)")
    cvt_x(e)
    stamp(e,prof,4)
    X=f"v[{vXb}:{vXb+3}]"
    e(f"""v_mfma_f32_16x16x32_bf16 v[{vS}:{vS+3}], {X}, {X}, 0
s_waitcnt lgkmcnt(0)
v_mfma_f32_16x16x32_bf16 v[{vS+4}:{vS+7}], v[{vK}:{vK+3}], {X}, 0
v_mfma_f32_16x16x32_bf16 v[{vS+8}:{vS+11}], v[{vK+4}:{vK+7}], {X}, 0
ds_read_b128 v[{vVV}:{vVV+3}], v{vVk} offset:2048
ds_read_b128 v[{vVV+4}:{vVV+7}], v{vVk} offset:2304
v_xor_b32 v{vKr}, 4096, v{vKr}
v_xor_b32 v{vVk}, 4096, v{vVk}
buffer_store_dwordx4 v[{vS}:{vS+3}], v{vSCw0}, {WS}, s{S_SC} offen {st}
buffer_store_dwordx4 v[{vS+4}:{vS+7}], v{vSCw}, {WS}, s{S_SC} offen {st}
buffer_store_dwordx4 v[{vS+8}:{vS+11}], v{vSCw}, {WS}, s{S_SC} offen offset:512 {st}""")
    stamp(e,prof,5)
    def scl():
        for c_ in range(4):
            e(f"buffer_load_dwordx4 v[{vC+4*c_}:{vC+4*c_+3}], v{vSCr}, {WS}, s{S_SC} offen offset:{c_*1280} sc1")
            e(f"buffer_load_dword v{vC+16+c_}, v{vSCr0}, {WS}, s{S_SC} offen offset:{c_*1280} sc1")
    ES=OPT.get('es',1)
    v_phase(e, scl if ES else None)
    stamp(e,prof,6)
    e(f"s_cmp_lt_u32 s{S_STEP}, {NSTEP-1}\ns_cbranch_scc0 LEADEND_{ll}")
    lp=e.lab("sc"); ok=e.lab("scok")
    for w in range(4): e(f"ds_read_b64 v[{vVq+4*w}:{vVq+4*w+1}], v{vVr} offset:{L_V+1024*w}\nds_read_b64 v[{vVq+4*w+2}:{vVq+4*w+3}], v{vVr} offset:{L_V+1024*w+512}")
    zero_acc(e,ZA,24-ZA)
    e("s_waitcnt lgkmcnt(0)")
    sum4(e, vVq, 4, 4)
    e(f"v_cvt_pk_bf16_f32 v{vVm+4}, v{vVq}, v{vVq+1}\nv_cvt_pk_bf16_f32 v{vVm+6}, v{vVq+2}, v{vVq+3}")
    stamp(e,prof,7)
    sk=e.lab("sk")
    if ES: e(f"s_branch {sk}")
    e(f"{lp}:"); scl(); e(f"{sk}:")
    e(f"""s_waitcnt vmcnt(0)
v_pk_add_f32 v[{vC}:{vC+1}], v[{vC}:{vC+1}], v[{vC+4}:{vC+5}]
v_pk_add_f32 v[{vC+8}:{vC+9}], v[{vC+8}:{vC+9}], v[{vC+12}:{vC+13}]
v_pk_add_f32 v[{vC+16}:{vC+17}], v[{vC+16}:{vC+17}], v[{vC+18}:{vC+19}]
v_pk_add_f32 v[{vC+2}:{vC+3}], v[{vC+2}:{vC+3}], v[{vC+6}:{vC+7}]
v_pk_add_f32 v[{vC+10}:{vC+11}], v[{vC+10}:{vC+11}], v[{vC+14}:{vC+15}]
v_pk_add_f32 v[{vC}:{vC+1}], v[{vC}:{vC+1}], v[{vC+8}:{vC+9}]
v_add_f32 v{vC+4}, v{vC+16}, v{vC+17}
v_pk_add_f32 v[{vC+2}:{vC+3}], v[{vC+2}:{vC+3}], v[{vC+10}:{vC+11}]
v_cmp_u_f32 vcc, v{vC}, v{vC+4}
v_max3_f32 v{vU}, v{vC}, v{vC+1}, v{vC+4}
s_cbranch_vccz {ok}""")
    failc(e,1)
    e(f"""s_sub_u32 s{S_BUD}, s{S_BUD}, 1
s_cbranch_scc0 {lp}
s_branch {abort}
{ok}:""")
    stamp(e,prof,8)
    m=vU; t=vU+1
    e(f"""v_max3_f32 v{m}, v{m}, v{vC+2}, v{vC+3}
v_max_f32_dpp v{m}, v{m}, v{m} row_ror:8 row_mask:0xf bank_mask:0xf
v_mov_b32 v{t}, v{m}
v_permlane16_swap_b32 v{t}, v{m}
v_max_f32 v{m}, v{m}, v{t}
v_mov_b32 v{t}, v{m}
v_permlane32_swap_b32 v{t}, v{m}
v_max_f32 v{m}, v{m}, v{t}
v_mul_f32 v{m}, s{S_FL}, v{m}""")
    for i in [4,0,1,2,3]: e(f"v_fma_f32 v{vC+i}, v{vC+i}, s{S_FL}, -v{m}")
    for i in [4,0,1,2,3]: e(f"v_exp_f32 v{vC+i}, v{vC+i}")
    e(f"""v_mov_b32_dpp v{t}, v{vC+4} row_ror:8 row_mask:0xf bank_mask:0xf
v_cvt_pk_bf16_f32 v{vPb}, v{vC}, v{vC+1}
v_cvt_pk_bf16_f32 v{vPb+1}, v{vC+2}, v{vC+3}
v_cvt_pk_bf16_f32 v{vPb+4}, v{vC+4}, v{t}
v_mov_b32_dpp v{vPb+2}, v{vPb} row_ror:8 row_mask:0xf bank_mask:0xf
v_mov_b32_dpp v{vPb+3}, v{vPb+1} row_ror:8 row_mask:0xf bank_mask:0xf
v_mfma_f32_16x16x16_bf16 v[{vO}:{vO+3}], v[{vVm+4}:{vVm+5}], v[{vPb+4}:{vPb+5}], 0
v_pk_add_f32 v[{vC}:{vC+1}], v[{vC}:{vC+1}], v[{vC+2}:{vC+3}]
v_add_f32 v{m}, v{vC}, v{vC+4}
v_mfma_f32_16x16x16_bf16 v[{vO+4}:{vO+7}], v[{vVm+6}:{vVm+7}], v[{vPb+4}:{vPb+5}], 0
v_add_f32 v{m}, v{m}, v{vC+1}
v_mfma_f32_16x16x32_bf16 v[{vO}:{vO+3}], v[{vVV}:{vVV+3}], v[{vPb}:{vPb+3}], v[{vO}:{vO+3}]
v_add_f32_dpp v{m}, v{m}, v{m} row_ror:8 row_mask:0xf bank_mask:0xf
v_mov_b32 v{t}, v{m}
v_mfma_f32_16x16x32_bf16 v[{vO+4}:{vO+7}], v[{vVV+4}:{vVV+7}], v[{vPb}:{vPb+3}], v[{vO+4}:{vO+7}]
v_permlane16_swap_b32 v{t}, v{m}
v_add_f32 v{m}, v{m}, v{t}
v_mov_b32 v{t}, v{m}
v_permlane32_swap_b32 v{t}, v{m}
v_add_f32 v{m}, v{m}, v{t}
v_rcp_f32 v{m}, v{m}""")
    for i in range(8): e(f"v_mul_f32 v{vO+i}, v{vO+i}, v{m}")
    for i in range(4): e(f"v_cvt_pk_bf16_f32 v{vO+i}, v{vO+2*i}, v{vO+2*i+1}")
    e(f"buffer_store_dwordx4 v[{vO}:{vO+3}], v{vOw}, {WS}, s{S_O} offen {st}\ns_barrier")
    stamp(e,prof,9)
    zero_acc(e,0,ZA)
    t2=gather2(e, S_O, abort, wo_work(e), 2, lambda: stamp(e,prof,10))
    wo_phase(e)
    stamp(e,prof,11)
    lp=e.lab("pp"); ok=e.lab("ppok")
    for w in range(4): e(f"ds_read_b128 v[{vX+4*w}:{vX+4*w+3}], v{vWr} offset:{L_WO+2304*w}")
    e("s_waitcnt lgkmcnt(2)")
    sum4(e, vX, 4, 4, "s_waitcnt lgkmcnt(0)")
    e(f"""buffer_store_dwordx4 v[{vX}:{vX+3}], v{vPw}, {WS}, s{S_PART} offen sc1""")
    stamp(e,prof,12)
    e("s_barrier\ns_barrier")
    if LB==2: e("s_barrier")
    stamp(e,prof,13)
    e(f"s_add_u32 s{S_STEP}, s{S_STEP}, 1")
    slots(e); zero_acc(e,0,8)
    if prof:
        e("s_waitcnt lgkmcnt(0)")
        for i in range(13): e(f"s_sub_u32 s{S_T0}, s{S_PR+2*i+2}, s{S_PR+2*i}\nv_add_u32 v{230+i}, s{S_T0}, v{230+i}")
    e(f"s_branch {ll}"); t1(); t2(); e(f"LEADEND_{ll}:")
    if prof:
        e(f"s_lshl_b32 s{S_T0}, s{S_TEAM}, 5\ns_add_u32 s{S_T0}, s{S_T0}, s{S_RANK}\ns_lshl_b32 s{S_T0}, s{S_T0}, 7\ns_add_u32 s{S_T0}, s{S_T0}, {PROF}")
        e(f"ds_read_b32 v249, v{vZ} offset:40000\ns_waitcnt lgkmcnt(0)")
        for i in range(5): e(f"buffer_store_dwordx4 v[{230+4*i}:{233+4*i}], v{vZ}, {WS}, s{S_T0} offen offset:{16*i}")
    PF[0]=False
    e(f"s_branch {done}")
```

```python
from layout import *
from chain import *
G_SEG=64; G_END=65; G_INB=66; G_FIB=67; G_OUTB=68; G_FOB=69; G_M0=70; G_PEND=73; G_IN=74; G_JOB=75; G_FP=76; G_COL=77; G_TYPE=78; G_X=79; G_NS=80; G_FN=81
gRd=1; gIn=2; gFl=3; gOut=4; gFo=5; gOne=6; gIx=7; gT=8; gF=16; gA0=32; gA1=48; gR=64; gP=96
SA=f"s[{SRD_A}:{SRD_A+3}]"
def wload(e, stride, perm, nrows, h1=None, h2=None):
    vB=gT; vq=gT+1; t=gT+2; t2=gT+3; vc=gT+4; M16=OPT.get('m16',1)
    e(f"""v_lshrrev_b32 v{t}, 2, v0
s_mov_b32 s{S_T0}, {stride}
v_mul_lo_u32 v{vB}, v{t}, s{S_T0}
v_and_b32 v{t2}, 3, v0
v_lshl_add_u32 v{vB}, v{t2}, 4, v{vB}
s_lshl_b32 s{S_T0}, s{S_W}, 6
s_add_u32 s{S_T0}, s{S_T0}, s{G_COL}
v_add_u32 v{vB}, s{S_T0}, v{vB}
s_lshl_b32 s{S_T4}, s{S_W}, 15
v_and_b32 v{t}, 3, v{t}
v_mov_b32 v{vq}, 0""")
    if not M16: e(f"""v_lshrrev_b32 v{vq}, 5, v0
v_lshl_add_u32 v{vq}, v{vq}, {7 if perm=='P' else 2}, v{t}
v_lshlrev_b32 v{vq}, 6, v{vq}
v_lshl_add_u32 v{vq}, v{t2}, 3, v{vq}
v_bfe_u32 v{t}, v0, 4, 1
v_lshl_add_u32 v{vq}, v{t}, 5, v{vq}
v_add_u32 v{vq}, s{S_T4}, v{vq}""")
    else:
        e(f"""v_bfe_u32 v{vq}, v0, 4, 1
v_lshl_add_u32 v{t}, v{vq}, {7 if perm=='P' else 2}, v{t}
v_lshrrev_b32 v{vq}, 5, v0
v_lshl_add_u32 v{t}, v{vq}, {2 if perm=='P' else 4}, v{t}
v_lshlrev_b32 v{vq}, 6, v{t}
v_add_u32 v{vq}, s{S_T4}, v{vq}
v_lshlrev_b32 v{t}, 3, v{t2}
v_and_b32 v{vc}, 2, v{t2}
v_lshl_add_u32 v{vc}, v{vc}, 3, v{t}
s_cmp_eq_u32 s{G_TYPE}, 1
s_cselect_b64 vcc, -1, 0
s_cselect_b32 s{S_T0}, 32, 16
v_cndmask_b32 v{t}, v{vc}, v{t}, vcc
v_add_u32 v{vq}, v{vq}, v{t}
v_add_u32 v{vc}, s{S_T0}, v{vq}""")
    nb=(nrows+255)//256
    cnt=[min(256,nrows-256*b)//16 for b in range(nb)]
    def dma(b):
        for i in range(cnt[b]):
            e(f"s_add_u32 m0, s{S_T4}, {(b%2)*16384+i*1024}\ns_mov_b32 s{S_T0}, {(256*b+16*i)*stride}\nbuffer_load_dwordx4 v{vB}, {SA}, s{S_T0} offen lds")
    def tr(b):
        for k in range(cnt[b]):
            ks=16*b+k
            if M16:
                m=k>>1; c=k&1
                for p in range(2):
                    off=(b%2)*16384+((64*p+8*m) if perm=='P' else (32*m+8*p))*64
                    e(f"ds_read_b64_tr_b16 a[{4*ks+2*p}:{4*ks+2*p+1}], v{vc if c else vq} offset:{off}")
                continue
            for p in range(2):
                off=(b%2)*16384+((64*p+4*k) if perm=='P' else (16*k+8*p))*64
                e(f"ds_read_b64_tr_b16 a[{4*ks+2*p}:{4*ks+2*p+1}], v{vq} offset:{off}")
    dma(0)
    if h1: h1()
    dma(1)
    if h2: h2()
    for b in range(nb):
        e(f"s_waitcnt vmcnt({cnt[b+1] if b+1<nb else 0})"); tr(b); e("s_waitcnt lgkmcnt(0)")
        if b+2<nb: dma(b+2)
def poll4(e, vd, va, sreg, abort, lo=False):
    lp=e.lab("pl"); ok=e.lab("pk")
    e(f"""{lp}:
buffer_load_dwordx4 v[{vd}:{vd+3}], v{va}, {WS}, s{sreg} offen sc1
s_waitcnt vmcnt(0)
v_and_b32 v{vd}, v{vd}, v{vd+1}
v_and_b32 v{vd+2}, v{vd+2}, v{vd+3}
v_and_b32 v{vd}, v{vd}, v{vd+2}
v_cmp_ne_u32 vcc, 1, v{vd}
{f's_cmp_eq_u32 vcc_lo, 0{chr(10)}s_cbranch_scc1' if lo else 's_cbranch_vccz'} {ok}
s_sub_u32 s{S_BUD}, s{S_BUD}, 1
s_cbranch_scc0 {lp}
s_branch {abort}
{ok}:""")
def lane0(e, v, t):
    e(f"v_mov_b32 v{v}, {hex(OOB)}\nv_cmp_eq_u32 vcc, 0, v0\nv_cndmask_b32 v{v}, v{v}, v{t}, vcc")
def bymode(e, r, f):
    if not OPT.get('pl',1): f(" sc1"); return
    a=e.lab("bm"); b=e.lab("bn")
    e(f"s_cmp_eq_u32 s{r}, 0\ns_cbranch_scc0 {a}"); f(""); e(f"s_branch {b}\n{a}:"); f(" sc1"); e(f"{b}:")
GP=[False]
def gst(e,i):
    if GP[0] and not OPT.get('gl'): e(f's_memtime s[{82+2*i}:{83+2*i}]')
def gemm_main(e, swap, epi, KS, in_sh, fi_mul, out_sh, fo_mul, abort, done):
    Q=KS//4; NST=4 if epi=="P" else 2; M16=OPT.get('m16',1)
    grp=[min(4,Q-4*g) for g in range(4)]
    LS=[' sc1','',' nt',' sc1 nt'][OPT.get('ls',0)] if epi=='P' else ' sc1'
    gTo=24; gTx=25; gTd=26; NL=19 if epi=='R' else KS//4; TO=OPT.get('to',1)
    ACC=[32,104]; RD=[[20,21],[22,23]]
    FT=OPT.get('ft',2); D=6; FL=OPT.get('fl',32); PF=min(KS-8,OPT.get('pf2',44)); gOx=27; gFx=28; gOob=29
    e(f"v_lshlrev_b32 v{gRd}, 4, v0")
    if M16:
        e(f"""v_lshrrev_b32 v{gT}, 4, v0
v_and_b32 v{gT+1}, 15, v0
v_lshlrev_b32 v{gT+2}, 4, v{gT+1}
v_lshl_add_u32 v{gT+2}, v{gT}, 9, v{gT+2}""")
        if swap:
            e(f"""v_and_b32 v{gT+3}, 8, v{gT+1}
v_add_u32 v{gT+3}, v{gT+3}, v{gT+1}
v_and_b32 v{gT+1}, 1, v{gT}
v_lshl_add_u32 v{gT+3}, v{gT+1}, 3, v{gT+3}
v_lshlrev_b32 v{gT+3}, 4, v{gT+3}
v_lshl_add_u32 v{RD[0][0]}, v{gT}, 9, v{gT+3}
v_xor_b32 v{RD[0][1]}, 128, v{RD[0][0]}
v_lshrrev_b32 v{gT+3}, 5, v0
v_lshlrev_b32 v{gT+3}, 7, v{gT+3}
v_xor_b32 v{gRd}, v{gT+3}, v{gRd}""")
        else: e(f"v_mov_b32 v{RD[0][0]}, v{gT+2}\nv_add_u32 v{RD[0][1]}, 256, v{gT+2}")
    else: e(f"v_mov_b32 v{RD[0][0]}, v{gRd}\nv_add_u32 v{RD[0][1]}, 1024, v{gRd}")
    e(f"""v_add_u32 v{RD[1][0]}, 0x10000, v{RD[0][0]}
v_add_u32 v{RD[1][1]}, 0x10000, v{RD[0][1]}
s_lshl_b32 s{G_M0}, s{S_W}, 10
v_add_u32 v{gIn}, s{G_M0}, v{gRd}
v_and_b32 v{gFl}, 31, v0
v_min_u32 v{gFl}, s{G_FN}, v{gFl}
v_lshlrev_b32 v{gFl}, 4, v{gFl}
v_lshrrev_b32 v{gTo}, 5, v0
v_mul_u32_u24 v{gTo}, {fi_mul}, v{gTo}
v_add_u32 v{gFl}, v{gFl}, v{gTo}
s_and_b32 s{S_T0}, s{S_RANK}, 7
s_lshl_b32 s{S_T0}, s{S_T0}, 2
s_add_u32 s{S_T0}, s{S_T0}, s{S_W}
s_mul_i32 s{S_T0}, s{S_T0}, {NL}
v_add_u32 v{gTo}, s{S_T0}, v0
v_min_u32 v{gTo}, {KS*8-1}, v{gTo}
v_lshlrev_b32 v{gTo}, 7, v{gTo}
v_mov_b32 v{gTx}, {hex(OOB)}
v_mov_b32 v{gOob}, {hex(OOB)}
v_cmp_gt_u32 vcc, {NL}, v0
v_cndmask_b32 v{gTo}, v{gTx}, v{gTo}, vcc
v_mov_b32 v{gOne}, 0""")
    lane0(e, gFo, gOne)
    e(f"v_mov_b32 v{gOne}, 1")
    if epi=="P":
        e(f"""v_bfe_u32 v{gT+3}, v0, 2, {2 if M16 else 3}
v_lshlrev_b32 v{gOut}, 16, v{gT+3}
v_and_b32 v{gT+3}, 3, v0
v_lshl_add_u32 v{gOut}, v{gT+3}, 4, v{gOut}
v_lshrrev_b32 v{gT+3}, 5, v0
v_lshl_add_u32 v{gOut}, v{gT+3}, {8 if M16 else 6}, v{gOut}
s_lshl_b32 s{S_T0}, s{S_W}, 9
v_add_u32 v{gOut}, s{S_T0}, v{gOut}""")
        if M16: e(f"v_bfe_u32 v{gT+3}, v0, 4, 1\nv_lshl_add_u32 v{gOut}, v{gT+3}, 6, v{gOut}")
    else:
        e(f"s_lshl_b32 s{S_T0}, s{S_W}, 11\nv_add_u32 v{gOut}, s{S_T0}, v{gT+2 if M16 else gRd}")
    def fo(back,va=gFo):
        e(f"s_mul_i32 s{G_FP}, s{G_SEG}, {fo_mul}\ns_add_u32 s{G_FP}, s{G_FP}, s{G_FOB}")
        if back: e(f"s_sub_u32 s{G_FP}, s{G_FP}, {back*fo_mul}")
        f=lambda sc: e(f"buffer_store_dword v{gOne}, v{va}, {WS}, s{G_FP} offen{sc}")
        if epi=="R": bymode(e,S_MODE,f)
        else: f(" sc1")
    def faddr(d, seg, add):
        e(f"s_mul_i32 s{d}, s{seg}, {fi_mul}\ns_add_u32 s{d}, s{d}, s{G_FIB}")
        if add: e(f"s_add_u32 s{d}, s{d}, {add*fi_mul}")
    def fload(s): e(f"buffer_load_dwordx4 v[{gF}:{gF+3}], v{gFl}, {WS}, s{s} offen sc1")
    def rd(b,ks): e(f"ds_read_b128 v[{gR+4*(ks%8)}:{gR+4*(ks%8)+3}], v{RD[b][ks&1]} offset:{(ks>>1)*2048}")
    def mf(b,ks):
        B=f"v[{gR+4*(ks%8)}:{gR+4*(ks%8)+3}]"
        if M16:
            t=ks&1
            for c in range(2):
                acc=ACC[b]+(8*c+4*t if swap else 8*t+4*c); w=8*(ks>>1)+4*c
                A=f"a[{w}:{w+3}]"; X,Y=(B,A) if swap else (A,B)
                e(f"v_mfma_f32_16x16x32_bf16 v[{acc}:{acc+3}], {X}, {Y}, {'0' if ks<2 else f'v[{acc}:{acc+3}]'}")
        else:
            acc=ACC[b]+16*(ks&1); A=f"a[{4*ks}:{4*ks+3}]"; X,Y=(B,A) if swap else (A,B)
            e(f"v_mfma_f32_32x32x16_bf16 v[{acc}:{acc+15}], {X}, {Y}, {'0' if ks<2 else f'v[{acc}:{acc+15}]'}")
    def epi_parts(b,back):
        a=ACC[b]; L=[]
        if not M16:
            for i in range(0,16,2): L.append(f"v_add_f32 v{a+i}, v{a+i}, v{a+16+i}\nv_add_f32 v{a+i+1}, v{a+i+1}, v{a+17+i}")
        if epi=="R":
            for i in range(0,16,2): L.append(f"v_max_f32 v{a+i}, 0, v{a+i}\nv_max_f32 v{a+i+1}, 0, v{a+i+1}")
        if epi!="P":
            for i in range(0,8,2): L.append(f"v_cvt_pk_bf16_f32 v{gP+i}, v{a+2*i}, v{a+2*i+1}\nv_cvt_pk_bf16_f32 v{gP+i+1}, v{a+2*i+2}, v{a+2*i+3}")
        return L
    def saddr(back):
        e(f"s_lshl_b32 s{S_T2}, s{G_SEG}, {out_sh}\ns_add_u32 s{S_T2}, s{S_T2}, s{G_OUTB}")
        if back: e(f"s_sub_u32 s{S_T2}, s{S_T2}, {back<<out_sh}")
        if epi=="P" and M16: e(f"s_add_u32 s{S_T4}, s{S_T2}, {4<<16}")
    def store(b,g,va):
        a=ACC[b]
        if epi=="P":
            if M16: e(f"buffer_store_dwordx4 v[{a+4*g}:{a+4*g+3}], v{va}, {WS}, s{S_T4 if g>>1 else S_T2} offen offset:{(g&1)*128} sc1")
            else: e(f"buffer_store_dwordx4 v[{a+4*g}:{a+4*g+3}], v{va}, {WS}, s{S_T2} offen offset:{g*128} sc1")
        else:
            so=lambda sc: e(f"buffer_store_dwordx4 v[{gP+4*g}:{gP+4*g+3}], v{va}, {WS}, s{S_T2} offen offset:{g*(256 if M16 else 1024)}{sc}")
            if epi=="R": bymode(e,S_MODE,so)
            else: so(" sc1")
    def dma(b,i,va): e(f"s_add_u32 m0, s{G_M0}, {b*65536+i*4096}\ns_add_u32 s{S_T3}, s{G_IN}, {i*4096}\nbuffer_load_dwordx4 v{va}, {WS}, s{S_T3} offen{LS} lds")
    if GP[0]:
        for i in range(93,100): e(f"s_mov_b32 s{i}, 0")
        if OPT.get('gl'): e("s_memtime s[82:83]\ns_memrealtime s[84:85]")
    np_=(len(epi_parts(0,1))+1)//2; p0=3; s0=(p0+np_+3)//4*4
    ops=[(4*i+2,f"d{i}") for i in range(Q)]+[(s0+4*g,f"s{g}") for g in range(NST)]+[(FL,"fl"),(PF,"fo")]
    if TL[0]: ops.append((FL-1,"tl"))
    if TO: ops.append((FL+4,"to"))
    ops.sort(key=lambda x:x[0]); names=[n for k,n in ops]
    def younger(name, ks, prev):
        i=names.index(name); n=len([1 for k,x in ops if k<ks])
        return len(ops)-1-i+n if prev else n-1-i
    loop=[e.lab("gl"),e.lab("gl")]; fetch=[e.lab("gf"),e.lab("gf")]; tail=[e.lab("gt"),e.lab("gt")]
    e(f"s_mov_b32 s{G_NS}, s{G_SEG}\ns_barrier\ns_branch {fetch[0]}")
    for b in range(2):
        e(f"""{loop[b]}:
s_mov_b32 s{G_SEG}, s{G_NS}
s_add_u32 s{G_NS}, s{G_SEG}, 1""")
        tl_get(e); gst(e,0)
        pre=[f"""v_and_b32 v{gF}, v{gF}, v{gF+1}
v_and_b32 v{gF+2}, v{gF+2}, v{gF+3}
s_lshl_b32 s{G_IN}, s{G_NS}, {in_sh}
s_add_u32 s{G_IN}, s{G_IN}, s{G_INB}""",
             f"""v_and_b32 v{gF}, v{gF}, v{gF+2}
v_cmp_ne_u32 vcc, 1, v{gF}
s_cmp_lt_u32 s{G_NS}, s{G_END}
s_cselect_b32 vcc_lo, vcc_lo, -1
s_cmp_eq_u32 vcc_lo, 0
s_cselect_b32 s{S_T0}, 0, {hex(OOB)}
v_add_u32 v{gIx}, s{S_T0}, v{gIn}""",
             f"""s_add_u32 s{S_T0}, s{G_NS}, 1
s_cmp_lt_u32 s{S_T0}, s{G_END}
s_cselect_b32 vcc_hi, vcc_hi, -1
s_cmp_eq_u32 vcc_hi, 0
s_cselect_b32 s{S_T0}, 0, {hex(OOB)}
s_mov_b32 vcc_hi, 0
v_add_u32 v{gTx}, s{S_T0}, v{gTo}""",
             f"v_add_u32 v{gOx}, s{G_PEND}, v{gOut}\nv_add_u32 v{gFx}, s{G_PEND}, v{gFo}"]
        parts=epi_parts(1-b,1)
        for ks in range(KS):
            if ks+D<KS:
                if (ks+D)%16==0:
                    q=(ks+D)//16
                    if q==1: gst(e,1)
                    e(f"s_waitcnt vmcnt({younger(f'd{min(4*q+3,Q-1)}',ks,True)})\ns_barrier")
                    if q==1: gst(e,2)
                rd(b,ks+D)
            else:
                if ks+D==KS:
                    gst(e,3)
                    e(f"s_cbranch_vccnz {tail[b]}\ns_waitcnt vmcnt({younger('d3',ks,False)})\ns_barrier"); gst(e,4)
                rd(1-b,ks+D-KS)
            e(f"s_waitcnt lgkmcnt({D})")
            mf(b,ks)
            if ks<4: e(pre[ks])
            if ks>=p0:
                for x in parts[2*(ks-p0):2*(ks-p0)+2]: e(x)
            for k,n in ops:
                if k!=ks: continue
                if n[0]=="d": dma(1-b,int(n[1:]),gIx)
                elif n[0]=="s":
                    if n=="s0": saddr(1)
                    store(1-b,int(n[1:]),gOx)
                elif n=="tl": tl_put(e,False)
                elif n=="fl":
                    if FT==1:
                        faddr(S_T1, G_NS, 0); e(f"s_cmp_eq_u32 vcc_lo, 0\ns_cselect_b32 s{S_T0}, {fi_mul}, 0\ns_add_u32 s{S_T1}, s{S_T1}, s{S_T0}")
                    else: faddr(S_T1, G_NS, 1)
                    fload(S_T1)
                elif n=="to": e(f"s_add_u32 s{S_T0}, s{G_IN}, {1<<in_sh}\nbuffer_load_dword v{gTd}, v{gTx}, {WS}, s{S_T0} offen sc1")
                elif n=="fo":
                    e(f"s_waitcnt vmcnt({names.index('fo')-names.index(f's{NST-1}')-1})"); fo(1,gFx)
        e(f"s_mov_b32 s{G_PEND}, 0\ns_waitcnt vmcnt({younger('fl',0,True)})")
        if GP[0] and not OPT.get('gl'):
            e("s_waitcnt lgkmcnt(0)")
            for i in range(4): e(f"s_sub_u32 s{S_T0}, s{84+2*i}, s{82+2*i}\ns_add_u32 s{94+i}, s{94+i}, s{S_T0}")
            e(f"s_add_u32 s98, s98, 1\ns_sub_u32 s{S_T0}, s82, s99\ns_mov_b32 s99, s90\ns_cmp_lt_u32 s{S_T0}, 20000\ns_cselect_b32 s{S_T0}, s{S_T0}, 0\ns_add_u32 s93, s93, s{S_T0}")
        if b==1: e(f"s_branch {loop[0]}")
    for b in range(2):
        e(f"{tail[b]}:")
        if FT==2: faddr(S_T1, G_NS, 0); fload(S_T1)
        for ks in range(KS-D,KS):
            e(f"s_waitcnt lgkmcnt({KS-1-ks})"); mf(b,ks)
        fe=f"v_and_b32 v{gF}, v{gF}, v{gF+1}\nv_and_b32 v{gF+2}, v{gF+2}, v{gF+3}\nv_and_b32 v{gF}, v{gF}, v{gF+2}\nv_cmp_ne_u32 vcc, 1, v{gF}"
        fs=e.lab("fs"); fq=e.lab("fq")
        if FT==1: e(f"s_waitcnt vmcnt({younger('fl',KS-D,False)})\n{fe}")
        for x in epi_parts(b,0): e(x)
        saddr(0)
        for g in range(NST): store(b,g,gOut)
        if FT:
            e(f"v_mov_b32 v{gFx}, v{gFo}\ns_cmp_lt_u32 s{G_NS}, s{G_END}\ns_cbranch_scc0 {loop[0]}_y")
            if FT==1: faddr(S_T1, G_NS, 0)
            else: e(f"s_waitcnt vmcnt({NST})\n{fe}")
            e(f"s_cmp_eq_u32 vcc_lo, 0\ns_cbranch_scc1 {fs}")
            fload(S_T1); e("s_waitcnt vmcnt(1)"); fo(0)
            e(f"s_waitcnt vmcnt(1)\n{fe}\ns_cmp_eq_u32 vcc_lo, 0\ns_cbranch_scc1 {fq}\n{fetch[1-b]}:")
            faddr(S_T1, G_NS, 0); poll4(e, gF, gFl, S_T1, abort, True)
            e(f"{fq}:\nv_mov_b32 v{gFx}, v{gOob}\n{fs}:")
        else:
            e("s_waitcnt vmcnt(0)")
            fo(0)
            e(f"s_cmp_lt_u32 s{G_NS}, s{G_END}\ns_cbranch_scc0 {loop[0]}_x\n{fetch[1-b]}:")
            faddr(S_T1, G_NS, 0); poll4(e, gF, gFl, S_T1, abort, True)
        e(f"s_lshl_b32 s{G_IN}, s{G_NS}, {in_sh}\ns_add_u32 s{G_IN}, s{G_IN}, s{G_INB}\ns_add_u32 s{S_T1}, s{S_T1}, {fi_mul}")
        fload(S_T1); n3=0; i7=names.index("d7")
        for j,n in enumerate(names):
            if n[0]=="d": dma(1-b,int(n[1:]),gIn)
            elif FT and n=="fo": continue
            elif j>i7: e(f"buffer_load_dword v{gTd}, v{gOob}, {WS}, 0 offen")
            else: continue
            n3 = 0 if n=="d3" else n3+1
        assert names.index("fl")>i7
        e(f"s_mov_b32 s{G_PEND}, {hex(OOB)}\ns_waitcnt vmcnt({n3})")
        if FT: assert names.index("fo")>i7; fo(0,gFx)
        e("s_barrier")
        for ks in range(D): rd(1-b,ks)
        e(f"s_branch {loop[1-b]}")
    if FT: e(f"{loop[0]}_y:\ns_waitcnt vmcnt(0)"); fo(0)
    e(f"{loop[0]}_x:")
    if GP[0]:
        if OPT.get('gl'): e("s_memtime s[86:87]\ns_memrealtime s[88:89]\ns_waitcnt lgkmcnt(0)\ns_sub_u32 s93, s86, s82\ns_sub_u32 s94, s88, s84\ns_mov_b32 s98, 1")
        for i in range(93,99): e(f"s_mov_b32 s4, s{i}"); tl_put(e,False)
    e(f"""s_barrier
s_branch {done}""")
```

```python
from layout import *
from chain import *
from gemm import *
L_MISC=131072
L_TK=L_MISC; L_MOD=L_MISC+64; L_ST=L_MISC+1024
LOG2E="0x3fb8aa3b"
def rnd(e, a, t):
    e(f"v_cvt_pk_bf16_f32 v{t}, v{a}, v{a+1}\nv_lshlrev_b32 v{a}, 16, v{t}\nv_and_b32 v{a+1}, 0xffff0000, v{t}")
def unpack(e, d, s, n):
    for i in range(n): e(f"v_lshlrev_b32 v{d+2*i}, 16, v{s+i}\nv_and_b32 v{d+2*i+1}, 0xffff0000, v{s+i}")
def pk(op, d, a, b): return f"v_pk_{op}_f32 v[{d}:{d+1}], v[{a}:{a+1}], v[{b}:{b+1}]"
def wred(e, regs, t):
    for r in regs: e(f"v_add_f32_dpp v{r}, v{r}, v{r} row_ror:4 row_mask:0xf bank_mask:0xf")
    for r in regs: e(f"v_add_f32_dpp v{r}, v{r}, v{r} row_ror:8 row_mask:0xf bank_mask:0xf")
    for sw in ("16","32"):
        for i,r in enumerate(regs): e(f"v_mov_b32 v{t+i}, v{r}")
        for i,r in enumerate(regs): e(f"v_permlane{sw}_swap_b32 v{t+i}, v{r}")
        for i,r in enumerate(regs): e(f"v_add_f32 v{r}, v{r}, v{t+i}")
def ln_norm(e, Xs, T, vW, vR, offs):
    n=len(Xs)
    for g,X in enumerate(Xs):
        t=T+28*g
        for i in range(0,8,2): e(pk("add",t+i,X+i,X+8+i))
        e(pk("add",t,t,t+4)); e(pk("add",t+2,t+2,t+6)); e(pk("add",t,t,t+2))
        e(f"v_add_f32 v{t+16}, v{t}, v{t+1}")
    for g in range(n): wred(e,[T+28*g+16],T+28*g+18)
    for g,X in enumerate(Xs):
        t=T+28*g
        e(f"v_mul_f32 v{t+16}, 0x3b800000, v{t+16}\nv_mov_b32 v{t+17}, v{t+16}")
        for i in range(0,16,2): e(f"v_pk_add_f32 v[{t+i}:{t+i+1}], v[{X+i}:{X+i+1}], v[{t+16}:{t+17}] neg_lo:[0,1] neg_hi:[0,1]")
        e(pk("mul",t,t,t))
        for i in range(2,16,2): e(f"v_pk_fma_f32 v[{t}:{t+1}], v[{t+i}:{t+i+1}], v[{t+i}:{t+i+1}], v[{t}:{t+1}]")
        e(f"v_add_f32 v{t+17}, v{t}, v{t+1}")
    for g in range(n): wred(e,[T+28*g+17],T+28*g+18)
    e("s_mov_b64 exec, 15")
    for g in range(n): e(f"ds_write_b64 v{vW}, v[{T+28*g+16}:{T+28*g+17}] offset:{offs[g]}")
    e("s_mov_b64 exec, -1\ns_waitcnt lgkmcnt(0)\ns_barrier")
    for g in range(n):
        t=T+28*g
        e(f"ds_read_b128 v[{t}:{t+3}], v{vR} offset:{offs[g]}\nds_read_b128 v[{t+4}:{t+7}], v{vR} offset:{offs[g]+16}")
    e("s_waitcnt lgkmcnt(0)")
    for g,X in enumerate(Xs):
        t=T+28*g
        e(pk("add",t+8,t,t+2)); e(pk("add",t+10,t+4,t+6)); e(pk("add",t+8,t+8,t+10))
        e(f"v_mul_f32 v{t+8}, 0x3e800000, v{t+8}")
        for k in range(4): e(f"v_sub_f32 v{t+2*k}, v{t+2*k}, v{t+8}")
        e(f"""v_mul_f32 v{t}, v{t}, v{t}
v_fmac_f32 v{t}, v{t+2}, v{t+2}
v_fmac_f32 v{t}, v{t+4}, v{t+4}
v_fmac_f32 v{t}, v{t+6}, v{t+6}
v_mul_f32 v{t+9}, 0x3a800000, v{t+9}
v_fmac_f32 v{t+9}, 0x3e800000, v{t}""")
        rnd(e,t+8,t+10)
        e(f"""v_add_f32 v{t+9}, 0x3727c5ac, v{t+9}
v_cvt_pk_bf16_f32 v{t+9}, v{t+9}, v{t+9}
v_and_b32 v{t+9}, 0xffff0000, v{t+9}
v_sqrt_f32 v{t+9}, v{t+9}
v_cvt_pk_bf16_f32 v{t+9}, v{t+9}, v{t+9}
v_and_b32 v{t+9}, 0xffff0000, v{t+9}
v_rcp_f32 v{t+10}, v{t+9}
v_mov_b32 v{t+9}, v{t+8}
v_mov_b32 v{t+11}, v{t+10}""")
        for i in range(0,16,2): e(f"v_pk_add_f32 v[{X+i}:{X+i+1}], v[{X+i}:{X+i+1}], v[{t+8}:{t+9}] neg_lo:[0,1] neg_hi:[0,1]")
        for i in range(0,16,2): rnd(e,X+i,t+12+(i//2)%4)
        for i in range(0,16,2): e(pk("mul",X+i,X+i,t+10))
def modulate(e, X, OPC, SH, P, t):
    for i in range(0,16,2): rnd(e,X+i,t+(i//2)%4)
    for i in range(0,16,2): e(pk("mul",X+i,X+i,OPC+i))
    for i in range(0,16,2): rnd(e,X+i,t+(i//2)%4)
    for i in range(0,16,2): e(pk("add",X+i,X+i,SH+i))
    for i in range(8): e(f"v_cvt_pk_bf16_f32 v{P+i}, v{X+2*i}, v{X+2*i+1}")
def modload(e, d, vM, chunk):
    e(f"s_mov_b32 s{S_T0}, {MOD+chunk*4096}")
    for i in range(4): e(f"buffer_load_dwordx4 v[{d+4*i}:{d+4*i+3}], v{vM}, {WS}, s{S_T0} offen offset:{i*256} sc1")
def oneplus(e, d, t):
    for i in range(16): e(f"v_add_f32 v{d+i}, 1.0, v{d+i}")
    for i in range(0,16,2): rnd(e,d+i,t+(i//2)%4)
def red_lanes(e, vM, vH, vX, vW, vR, t):
    e(f"""v_lshrrev_b32 v{t}, 2, v0
v_and_b32 v{t+1}, 3, v0
s_lshl_b32 s{S_T0}, s{S_W}, 10
v_lshl_add_u32 v{vM}, v{t}, 4, s{S_T0}
s_lshl_b32 s{S_T0}, s{S_W}, 14
v_lshl_add_u32 v{vH}, v{t}, 10, s{S_T0}
v_lshl_add_u32 v{vH}, v{t+1}, 4, v{vH}
s_lshl_b32 s{S_T0}, s{S_W}, 9
v_lshl_add_u32 v{vX}, v{t}, 3, s{S_T0}
v_lshl_add_u32 v{vX}, v{t+1}, 11, v{vX}
v_lshlrev_b32 v{vR}, 5, v{t+1}
v_add_u32 v{vR}, {L_ST}, v{vR}
s_lshl_b32 s{S_T0}, s{S_W}, 3
v_add_u32 v{vW}, s{S_T0}, v{vR}""")
SB=f"s[{SRD_B}:{SRD_B+3}]"
S_TG=101; pW=176; pC=44; pAcc=60; pT=68; pX=96; pN=240; pM=228; pH=229
def pro_loads(e):
    srd(e, SRD_A, P_WMOD, 1024*12288); srd(e, SRD_B, P_C, 2048)
    e(f"""v_lshrrev_b32 v{pT}, 2, v0
v_and_b32 v{pT+1}, 3, v0
s_lshl_b32 s{S_T0}, s{S_W}, 9
v_lshl_add_u32 v{pT+2}, v{pT}, 1, s{S_T0}""")
    for i in range(16): e(f"buffer_load_ushort v{pC+i}, v{pT+2}, {SB}, 0 offen offset:{i*32}")
    e(f"""s_mul_i32 s{S_T0}, s{S_W}, {256*12288}
s_cmp_lt_u32 s2, 192
s_cselect_b32 s{S_T0}, s{S_T0}, {hex(OOB)}
v_mul_u32_u24 v{pT+3}, 12288, v{pT}
v_lshl_add_u32 v{pT+3}, v{pT+1}, 4, v{pT+3}
v_add_u32 v{pT+3}, s{S_T0}, v{pT+3}
s_lshl_b32 s{S_T0}, s2, 6""")
    for i in range(16):
        e(f"buffer_load_dwordx4 v[{pW+4*i}:{pW+4*i+3}], v{pT+3}, {SA}, s{S_T0} offen")
        if i<15: e(f"s_add_u32 s{S_T0}, s{S_T0}, {16*12288}")
    srd(e, SRD_B, P_X, 2048*2048)
    red_lanes(e, pT+4, pT+5, pT+6, pT+7, pT+8, pT)
    if OPT.get('tm',1): e(f"""s_lshr_b32 s{S_T0}, s2, 3
s_lshl_b32 s{S_T0}, s{S_T0}, 2
s_and_b32 s{S_T1}, s2, 3
s_or_b32 s{S_T0}, s{S_T0}, s{S_T1}
s_andn2_b32 s{S_T1}, 4, s2
s_lshl_b32 s{S_T1}, s{S_T1}, 5
s_or_b32 s{S_TG}, s{S_T0}, s{S_T1}""")
    else: e(f"s_mov_b32 s{S_TG}, s2")
    e(f"s_lshl_b32 s{S_T0}, s{S_TG}, 14\ns_add_u32 s{S_T1}, s{S_T0}, 8192")
    for g in range(2):
        for i in range(4): e(f"buffer_load_dwordx2 v[{pN+8*g+2*i}:{pN+8*g+2*i+1}], v{pT+6}, {SB}, s{S_T0+g} offen offset:{i*128}")
def pro_mod(e,X=0):
    l=e.lab("nomod"); l2=e.lab("nm2")
    e(f"s_cmp_ge_u32 s2, 192\ns_cbranch_scc1 {l}\ns_waitcnt vmcnt({24+X})")
    t=pX
    for i in range(16): e(f"v_lshlrev_b32 v{pC+i}, 16, v{pC+i}\nv_mul_f32 v{t+i}, 0xbfb8aa3b, v{pC+i}")
    for i in range(16): e(f"v_exp_f32 v{t+i}, v{t+i}")
    for i in range(16): e(f"v_add_f32 v{t+i}, 1.0, v{t+i}")
    for i in range(16): e(f"v_rcp_f32 v{t+i}, v{t+i}")
    for i in range(16): e(f"v_mul_f32 v{pC+i}, v{pC+i}, v{t+i}")
    for i in range(0,16,2): rnd(e,pC+i,t+i)
    for i in range(16):
        e(f"s_waitcnt vmcnt({23-i+X})")
        unpack(e,t+8*(i%2),pW+4*i,4)
        for j in range(8):
            if i==0: e(f"v_mul_f32 v{pAcc+j}, v{t+j}, v{pC}")
            else: e(f"v_fmac_f32 v{pAcc+j}, v{t+8*(i%2)+j}, v{pC+i}")
    wred(e,[pAcc+j for j in range(8)],t)
    e(f"""v_lshlrev_b32 v{t}, 5, v0
s_lshl_b32 s{S_T0}, s{S_W}, 7
s_add_u32 s{S_T0}, s{S_T0}, {L_MOD}
v_add_u32 v{t}, s{S_T0}, v{t}
s_mov_b64 exec, 15
ds_write_b128 v{t}, v[{pAcc}:{pAcc+3}]
ds_write_b128 v{t}, v[{pAcc+4}:{pAcc+7}] offset:16
s_mov_b64 exec, -1
s_waitcnt lgkmcnt(0)
s_barrier
s_cmp_lg_u32 s{S_W}, 0
s_cbranch_scc1 {l}
v_and_b32 v{t+1}, 31, v0
v_lshlrev_b32 v{t+1}, 2, v{t+1}
v_add_u32 v{t}, {L_MOD}, v{t+1}""")
    for w in range(4): e(f"ds_read_b32 v{t+2+w}, v{t} offset:{w*128}")
    e(f"""s_lshl_b32 s{S_T0}, s2, 7
s_add_u32 s{S_T0}, s{S_T0}, {MOD}
s_waitcnt lgkmcnt(0)
v_add_f32 v{t+2}, v{t+2}, v{t+3}
v_add_f32 v{t+4}, v{t+4}, v{t+5}
v_add_f32 v{t+2}, v{t+2}, v{t+4}
v_cvt_pk_bf16_f32 v{t+2}, v{t+2}, v{t+2}
v_and_b32 v{t+2}, 0xffff0000, v{t+2}
buffer_store_dword v{t+2}, v{t+1}, {WS}, s{S_T0} offen sc1
{l}:""")
def pro_ln(e,X=0):
    e(f"s_waitcnt vmcnt({X})\nv_mov_b32 v{pM}, v{pT+4}\nv_mov_b32 v{pH}, v{pT+5}")
    unpack(e,pX,pN,16)
    ln_norm(e,[pX,pX+16],pW-8,pT+7,pT+8,[0,128])
    for i in range(16): e(f"v_cvt_pk_bf16_f32 v{pN+i}, v{pX+2*i}, v{pX+2*i+1}")
def pro_fin(e):
    O=172; Sh=188; X=204; t=220
    modload(e,O,pM,1); modload(e,Sh,pM,0)
    e(f"""s_lshr_b32 s{S_T1}, s{S_TG}, 2
s_lshl_b32 s{S_T1}, s{S_T1}, 16
s_and_b32 s{S_T2}, s{S_TG}, 3
s_lshl_b32 s{S_T2}, s{S_T2}, 7
s_add_u32 s{S_T1}, s{S_T1}, s{S_T2}
s_add_u32 s{S_T1}, s{S_T1}, {H1}
s_waitcnt vmcnt(4)""")
    oneplus(e,O,t)
    e("s_waitcnt vmcnt(0)")
    for g in range(2):
        unpack(e,X,pN+8*g,8)
        for i in range(0,16,2): e(pk("mul",X+i,X+i,O+i))
        for i in range(0,16,2): rnd(e,X+i,t+(i//2)%4)
        for i in range(0,16,2): e(pk("add",X+i,X+i,Sh+i))
        for i in range(8): e(f"v_cvt_pk_bf16_f32 v{pN+8*g+i}, v{X+2*i}, v{X+2*i+1}")
        for ab in range(2): e(f"buffer_store_dwordx4 v[{pN+8*g+4*ab}:{pN+8*g+4*ab+3}], v{pH}, {WS}, s{S_T1} offen offset:{ab*512+g*64} sc1")
    e(f"""s_lshl_b32 s{S_T1}, s{S_TG}, 4
s_lshl_b32 s{S_T2}, s{S_W}, 2
s_add_u32 s{S_T1}, s{S_T1}, s{S_T2}
s_add_u32 s{S_T1}, s{S_T1}, {F_H1}
v_mov_b32 v{t+1}, 0""")
    lane0(e,t,t+1)
    e(f"v_mov_b32 v{t+1}, 1\ns_waitcnt vmcnt(0)\nbuffer_store_dword v{t+1}, v{t}, {WS}, s{S_T1} offen sc1")
R_TG=66; R_P=67; R_A=68; R_B=69; R_FP=74
def feval(e,F):
    e(f"v_and_b32 v{F}, v{F}, v{F+1}\nv_and_b32 v{F+2}, v{F+2}, v{F+3}\nv_and_b32 v{F}, v{F}, v{F+2}\nv_cmp_ne_u32 vcc, 1, v{F}")
R_S=[84,85]; R_T=[R_TG,86]; R_M=87; R_END=88
def red(e, first, abort, done):
    STEP=1; vFo2=11; R0=OPT.get('r0',40); assert R0%4==0
    vM=1;vH=2;vX=3;vW=4;vR=5;vP=6;vFl=7;vFo=8;vOne=9;vQ=10;t=12;F=16
    G=20; O=36; Sh=52; PS=[68,132]; XS=[196,204]; X=212; T=228; PK=228; PX=248; R=228
    FP=F_P1 if first else F_P2; NL=20 if first else 18; NS=4+(1 if TL[0] else 0)
    R_LO=82; R_HI=83
    red_lanes(e,vM,vH,vX,vW,vR,t)
    e(f"""s_lshl_b32 s{S_T0}, s{S_W}, 12
v_lshl_add_u32 v{vP}, v0, 4, s{S_T0}
s_lshl_b32 s{S_T0}, s{S_W}, 11
v_lshl_add_u32 v{vQ}, v0, 4, s{S_T0}
v_and_b32 v{vFl}, 31, v0
v_lshlrev_b32 v{vFl}, 4, v{vFl}
v_lshrrev_b32 v{t}, 5, v0
v_lshlrev_b32 v{t}, 9, v{t}
s_sub_u32 s{S_T0}, s{R_S[1]}, s{R_S[0]}
s_sub_u32 s{S_T1}, s{R_M}, s{S_T0}
{'' if first else f's_mov_b32 s{S_T0}, {16-R0//4}{chr(10)}s_mov_b32 s{S_T1}, {16-R0//4}'}
v_mad_u32_u24 v{vFo2}, v{t}, s{S_T1}, v{vFl}
v_mad_u32_u24 v{vFl}, v{t}, s{S_T0}, v{vFl}
s_lshl_b32 s{S_T0}, s{S_W}, 2
v_mov_b32 v{vOne}, s{S_T0}""")
    vFP=[vFl,vFo2]
    def seg(d,n,add,p):
        if add: e(f"s_{'add' if add>0 else 'sub'}_u32 s{d}, s{n}, {abs(add)}\ns_lshr_b32 s{d}, s{d}, 1")
        else: e(f"s_lshr_b32 s{d}, s{n}, 1")
        e(f"s_mul_i32 s{d}, s{d}, s{R_M}\ns_add_u32 s{d}, s{d}, s{R_S[p&1]}")
    lane0(e,vFo,vOne); e(f"v_mov_b32 v{vOne}, 1")
    if first:
        modload(e,G,vM,2); modload(e,O,vM,4); modload(e,Sh,vM,3)
        srd(e, SRD_B, P_X, 2048*2048)
        e("s_waitcnt vmcnt(0)"); oneplus(e,O,t)
    else:
        modload(e,G,vM,5); srd(e, SRD_B, P_OUT, 2048*2048)
    e(f"s_lshl_b32 s{R_T[0]}, s{R_T[0]}, 13\ns_lshl_b32 s{R_T[1]}, s{R_T[1]}, 13\ns_mov_b32 s{G_SEG}, 0\ns_mov_b32 s{G_NS}, 0")
    def loads(k):
        P=PS[k]; XR=XS[k]
        seg(S_T2,G_NS,0,k)
        e(f"""s_lshl_b32 s{S_T2}, s{S_T2}, 16
s_add_u32 s{S_T2}, s{S_T2}, s{R_T[k]}
s_lshl_b32 s{R_P}, s{S_T2}, 3
s_add_u32 s{R_P}, s{R_P}, {P1 if first else P2}""")
        for kc in range(4):
            for i in range(4): e(f"buffer_load_dwordx4 v[{P+16*kc+4*i}:{P+16*kc+4*i+3}], v{vP}, {WS}, s{R_P} offen offset:{i*1024} sc1")
            if kc<3: e(f"s_add_u32 s{R_P}, s{R_P}, 16384")
        if first:
            for i in range(4): e(f"buffer_load_dwordx2 v[{XR+2*i}:{XR+2*i+1}], v{vX}, {SB}, s{S_T2} offen offset:{i*128}")
        else:
            e(f"s_add_u32 s{S_T2}, s{S_T2}, {X1}")
            for ab in range(2): e(f"buffer_load_dwordx4 v[{XR+4*ab}:{XR+4*ab+3}], v{vQ}, {WS}, s{S_T2} offen offset:{ab*1024} sc1")
        e(f"s_add_u32 s{G_NS}, s{G_NS}, {STEP}")
    def fl(n,add,p):
        seg(S_T1,n,add,p)
        if not first and R0: e(f"s_mul_i32 s{S_T1}, s{S_T1}, {64-R0}\ns_lshr_b32 s{S_T1}, s{S_T1}, 6\ns_add_u32 s{S_T1}, s{S_T1}, {R0}")
        e(f"s_lshl_b32 s{S_T1}, s{S_T1}, 9\ns_add_u32 s{S_T1}, s{S_T1}, {FP}\nbuffer_load_dwordx4 v[{F}:{F+3}], v{vFP[p&1]}, {WS}, s{S_T1} offen sc1")
    def flag(back,p):
        seg(S_T0,G_SEG,-back,p); e(f"s_lshl_b32 s{S_T0}, s{S_T0}, 7\ns_lshr_b32 s{S_T3}, s{R_T[p&1]}, 9\ns_add_u32 s{S_T0}, s{S_T0}, s{S_T3}\ns_add_u32 s{S_T0}, s{S_T0}, {F_H2}\nbuffer_store_dword v{vOne}, v{vFo}, {WS}, s{S_T0} offen sc1")
    top=[e.lab("rt"),e.lab("rt")]; fet=[e.lab("rf"),e.lab("rf")]
    for k in range(2):
        P=PS[k]; XR=XS[k]
        ok=e.lab("rk")
        e(f"{fet[k]}:"); fl(G_NS,0,k); e("s_waitcnt vmcnt(0)"); feval(e,F)
        e(f"""s_cmp_eq_u32 vcc_lo, 0
s_cbranch_scc1 {ok}
s_sub_u32 s{S_BUD}, s{S_BUD}, 1
s_cbranch_scc0 {fet[k]}
s_branch {abort}
{ok}:""")
        fl(G_NS,1,k+1); loads(k)
        e(f"s_mov_b32 s{G_PEND}, 0\ns_waitcnt vmcnt(0)\n{top[k]}:")
        feval(e,F)
        RM=OPT.get('rm',1)
        if first and not RM:
            l=e.lab("rp")
            e(f"s_cmp_eq_u32 s{G_PEND}, 2\ns_cbranch_scc0 {l}\ns_mov_b32 s{G_PEND}, 1"); flag(2,k); e(f"{l}:")
        e(f"s_mov_b32 s{R_FP}, s{G_NS}")
        e(f"s_mov_b64 s[{R_LO}:{R_HI}], vcc")
        for i in range(0,16,2): e(pk("add",P+i,P+i,P+16+i))
        for i in range(0,16,2): e(pk("add",P+32+i,P+32+i,P+48+i))
        for i in range(0,16,2): e(pk("add",R+i,P+i,P+32+i))
        unpack(e,X,XR,8)
        fl(G_SEG,2,k)
        la=e.lab("ra"); lb=e.lab("rb")
        seg(R_A,G_SEG,0,k)
        e(f"""s_lshl_b32 s{R_A}, s{R_A}, 16
s_add_u32 s{R_A}, s{R_A}, s{R_T[k]}
s_sub_u32 s{S_T0}, s{G_NS}, s{G_SEG}
s_cmp_eq_u32 s{S_T0}, {STEP}
s_cbranch_scc0 {la}
s_cmp_lt_u32 s{G_NS}, s{R_END}
s_cselect_b32 s{R_LO}, s{R_LO}, 1
s_cmp_eq_u32 s{R_LO}, 0
s_cbranch_scc0 {lb}""")
        loads(1-k)
        e(f"""{la}:
s_cmp_lt_u32 s{G_NS}, s{R_END}
s_cselect_b32 s{R_HI}, s{R_HI}, 1
s_cmp_eq_u32 s{R_HI}, 0
s_cbranch_scc0 {lb}""")
        loads(k); e(f"{lb}:")
        for i in range(0,16,2): rnd(e,R+i,t+(i//2)%4)
        for i in range(0,16,2): e(pk("mul",R+i,R+i,G+i))
        for i in range(0,16,2): rnd(e,R+i,t+(i//2)%4)
        for i in range(0,16,2): e(pk("add",X+i,X+i,R+i))
        for i in range(8): e(f"v_cvt_pk_bf16_f32 v{PX+i}, v{X+2*i}, v{X+2*i+1}")
        if first:
            e(f"s_add_u32 s{R_B}, s{R_A}, {X1}")
            for ab in range(2): e(f"buffer_store_dwordx4 v[{PX+4*ab}:{PX+4*ab+3}], v{vQ}, {WS}, s{R_B} offen offset:{ab*1024} sc1")
            unpack(e,X,PX,8)
            ln_norm(e,[X],T,vW,vR,[0])
            e(f"v_xor_b32 v{vW}, 128, v{vW}\nv_xor_b32 v{vR}, 128, v{vR}")
            modulate(e,X,O,Sh,PK,t)
            if RM:
                l=e.lab("rm"); l1=e.lab("rm"); l2=e.lab("rm")
                e(f"""s_cmp_eq_u32 s{G_PEND}, 0
s_cbranch_scc1 {l}
s_mov_b32 s{G_PEND}, 0
s_sub_u32 s{S_T0}, s{G_NS}, s{R_FP}
s_cmp_gt_u32 s{S_T0}, {STEP}
s_cbranch_scc1 {l2}
s_cmp_eq_u32 s{S_T0}, {STEP}
s_cbranch_scc1 {l1}
s_waitcnt vmcnt(3)
{l1}:
s_waitcnt vmcnt({3+NL})
{l2}:
s_waitcnt vmcnt({3+2*NL})"""); flag(1,k+1); e(f"{l}:")
            e(f"""s_and_b32 s{S_T1}, s{R_A}, 0xffff0000
s_lshr_b32 s{S_T0}, s{R_T[k]}, 7
s_add_u32 s{S_T1}, s{S_T1}, s{S_T0}
s_add_u32 s{S_T1}, s{S_T1}, {H2}""")
            for ab in range(2): e(f"buffer_store_dwordx4 v[{PK+4*ab}:{PK+4*ab+3}], v{vH}, {WS}, s{S_T1} offen offset:{ab*512} sc1")
        else:
            for i in range(4): e(f"buffer_store_dwordx2 v[{PX+2*i}:{PX+2*i+1}], v{vX}, {SB}, s{R_A} offen offset:{i*128}")
        tl(e)
        pb=e.lab("rb"); d3=e.lab("rd")
        e(f"""s_sub_u32 s{S_T0}, s{G_NS}, s{G_SEG}
s_add_u32 s{G_SEG}, s{G_SEG}, {STEP}
s_cmp_eq_u32 s{S_T0}, {STEP}
s_cbranch_scc1 {pb}
s_add_u32 s{G_PEND}, s{G_PEND}, 1
s_cmp_eq_u32 s{S_T0}, {3*STEP}
s_cbranch_scc1 {d3}
s_waitcnt vmcnt({NS})
s_branch {top[1-k]}
{d3}:
s_waitcnt vmcnt({NS+NL})
s_branch {top[1-k]}
{pb}:""")
        if first:
            l=e.lab("rq")
            e(f"s_waitcnt vmcnt(0)\ns_cmp_eq_u32 s{G_PEND}, 0\ns_cbranch_scc1 {l}"); flag(2,k+1); e(f"{l}:"); flag(1,k)
        e(f"s_cmp_lt_u32 s{G_SEG}, s{R_END}\ns_cbranch_scc0 {done}")
        if k==1: e(f"s_branch {fet[0]}")
A_H=65; A_SC=66; A_MK=68; A_FP=100; A_N1=16; A_N2=17; A_END=18
def att(e, abort, done):
    vA=1;vKM=2;vVM=3;vF1=4;vF2=5;vFo=6;vOne=7;t=8;F=16;Pb=20;m=30;F2=96
    KMr=128;VMr=160;S=168;SM=184;O=32
    e(f"""s_lshl_b32 s{S_T0}, s{A_H}, 13
v_lshl_add_u32 v{vA}, v0, 4, s{S_T0}
v_lshrrev_b32 v{t}, 5, v0
v_and_b32 v{t+1}, 7, v0
s_lshl_b32 s{S_T0}, s{A_H}, 11
v_lshl_add_u32 v{vKM}, v{t}, 7, s{S_T0}
v_lshl_add_u32 v{vKM}, v{t+1}, 4, v{vKM}
v_lshl_add_u32 v{vVM}, v0, 3, s{S_T0}
s_lshl_b32 s{S_T0}, s{A_H}, 4
v_mov_b32 v{vF2}, s{S_T0}
v_min_u32 v{vF1}, 2, v0
v_lshl_add_u32 v{vF1}, v{vF1}, 9, s{S_T0}
v_and_b32 v{t+1}, 31, v0
v_lshlrev_b32 v{t}, 2, v{t}
v_sub_u32 v{t}, v{t+1}, v{t}
s_and_b32 s{S_T0}, s{A_H}, 7
s_lshl_b32 s{S_T0}, s{S_T0}, 2
s_lshl_b32 s{S_T1}, s{G_X}, 11
s_add_u32 s{S_T0}, s{S_T0}, s{S_T1}
v_mov_b32 v{vOne}, s{S_T0}
s_mov_b32 s{S_STEP}, 0
s_mov_b32 s3, s{S_MODE}""")
    def oflag():
        l=e.lab("of"); e(f"s_cmp_eq_u32 s{S_STEP}, 0\ns_cbranch_scc1 {l}\ns_mov_b32 s{S_STEP}, 0")
        bymode(e,3,lambda sc: e(f"buffer_store_dword v{vOne}, v{vFo}, {WS}, s{A_FP} offen{sc}")); e(f"{l}:")
    lane0(e,vFo,vOne)
    e(f"v_mov_b32 v{vOne}, 1\ns_mov_b32 s{A_SC}, 0x3db504f3\ns_mov_b32 s{A_SC+1}, 0x3db504f3")
    for r in range(16): e(f"v_cmp_gt_i32 s[{A_MK+2*r}:{A_MK+2*r+1}], {8*(r//4)+r%4}, v{t}")
    AE=OPT.get('ae',16)
    def nxt(d,c): e(f"s_cmp_lt_u32 s{c}, {AE}\ns_cselect_b32 s{S_T0}, 4, 2\ns_add_u32 s{d}, s{c}, s{S_T0}")
    def qkv(k,a,n):
        e(f"s_cmp_lt_u32 s{a}, s{A_END}\ns_cselect_b32 s{S_T3}, s{a}, s{G_SEG}\ns_lshl_b32 s{S_T3}, s{S_T3}, 18")
        for n_,base in enumerate((QB,KB,VB)):
            reg=96*k+32*n_
            for hf in range(2):
                e(f"s_add_u32 s{S_T0}, s{S_T3}, {base+hf*4096}")
                for j in range(4): e(f"buffer_load_dwordx4 a[{reg+16*hf+4*j}:{reg+16*hf+4*j+3}], v{vA}, {WS}, s{S_T0} offen offset:{j*1024} sc1")
        e(f"""s_mul_i32 s{S_T0}, s{n}, 1536
s_add_u32 s{S_T0}, s{S_T0}, {F_KV}
buffer_load_dwordx4 v[{F}:{F+3}], v{vF1}, {WS}, s{S_T0} offen sc1
s_lshl_b32 s{S_T0}, s{a}, 9
s_add_u32 s{S_T0}, s{S_T0}, {F_KM}
buffer_load_dwordx4 v[{F2}:{F2+3}], v{vF2}, {WS}, s{S_T0} offen sc1""")
    e(f"s_mul_i32 s{S_T1}, s{G_SEG}, 1536\ns_add_u32 s{S_T1}, s{S_T1}, {F_KV}")
    nxt(A_N1,G_SEG); nxt(A_N2,A_N1)
    poll4(e,F,vF1,S_T1,abort); qkv(0,G_SEG,A_N1); e("s_waitcnt vmcnt(0)")
    def scale(b,n):
        for i in range(0,n,2): rnd(e,b+i,t+(i//2)%4)
        for i in range(0,n,2): e(f"v_pk_mul_f32 v[{b+i}:{b+i+1}], v[{b+i}:{b+i+1}], s[{A_SC}:{A_SC+1}]")
        for i in range(0,n,2): rnd(e,b+i,t+(i//2)%4)
    lp=e.lab("al"); e(f"{lp}:")
    for st in range(2):
        Q=96*st; K=Q+32; V=Q+64
        for k in range(8): e(f"v_mfma_f32_32x32x16_bf16 v[{S}:{S+15}], a[{K+4*k}:{K+4*k+3}], a[{Q+4*k}:{Q+4*k+3}], {'0' if k==0 else f'v[{S}:{S+15}]'}")
        l1=e.lab("a1"); l2=e.lab("a2")
        feval(e,F2)
        e(f"s_cbranch_vccz {l1}\ns_waitcnt vmcnt(0)"); oflag()
        e(f"s_lshl_b32 s{S_T1}, s{G_SEG}, 9\ns_add_u32 s{S_T1}, s{S_T1}, {F_KM}")
        poll4(e,F2,vF2,S_T1,abort)
        e(f"{l1}:\ns_lshl_b32 s{S_T0}, s{G_SEG}, 16\ns_add_u32 s{S_T1}, s{S_T0}, {VM}\ns_add_u32 s{S_T0}, s{S_T0}, {KM}")
        for k in range(8): e(f"buffer_load_dwordx4 v[{KMr+4*k}:{KMr+4*k+3}], v{vKM}, {WS}, s{S_T0} offen offset:{k*256} sc1")
        for c in range(4): e(f"buffer_load_dwordx2 v[{VMr+2*c}:{VMr+2*c+1}], v{vVM}, {WS}, s{S_T1} offen offset:{c*512} sc1")
        feval(e,F)
        e(f"""s_cbranch_vccz {l2}
s_cmp_ge_u32 s{A_N1}, s{A_END}
s_cbranch_scc1 {l2}
s_mul_i32 s{S_T1}, s{A_N1}, 1536
s_add_u32 s{S_T1}, s{S_T1}, {F_KV}""")
        poll4(e,F,vF1,S_T1,abort)
        e(f"{l2}:"); qkv(1-st,A_N1,A_N2)
        scale(S,16)
        e(f"v_mov_b32 v{m+1}, 0xce6e6b28")
        for r in range(16): e(f"v_cndmask_b32 v{S+r}, v{S+r}, v{m+1}, s[{A_MK+2*r}:{A_MK+2*r+1}]")
        e(f"v_max3_f32 v{m}, v{S}, v{S+1}, v{S+2}")
        for r in range(3,15,2): e(f"v_max3_f32 v{m}, v{m}, v{S+r}, v{S+r+1}")
        e(f"v_max_f32 v{m}, v{m}, v{S+15}")
        for k in range(8):
            e(f"s_waitcnt vmcnt({26+11-k})\nv_mfma_f32_32x32x16_bf16 v[{SM}:{SM+15}], v[{KMr+4*k}:{KMr+4*k+3}], a[{Q+4*k}:{Q+4*k+3}], {'0' if k==0 else f'v[{SM}:{SM+15}]'}")
        e("s_waitcnt vmcnt(26)"); oflag()
        scale(SM,4)
        e(f"""v_max3_f32 v{m}, v{m}, v{SM}, v{SM+1}
v_max3_f32 v{m}, v{m}, v{SM+2}, v{SM+3}
v_mov_b32 v{m+1}, v{m}
v_permlane32_swap_b32 v{m+1}, v{m}
v_max_f32 v{m}, v{m}, v{m+1}
v_mul_f32 v{m}, {LOG2E}, v{m}
s_mov_b32 s{S_T0}, {LOG2E}""")
        for r in range(20): e(f"v_fma_f32 v{S+r}, v{S+r}, s{S_T0}, -v{m}")
        for r in range(20): e(f"v_exp_f32 v{S+r}, v{S+r}")
        e(pk("add",t,S,S+2)); e(pk("add",t+2,S+4,S+6))
        for i in range(8,20,4): e(pk("add",t,t,S+i)); e(pk("add",t+2,t+2,S+i+2))
        e(pk("add",t,t,t+2))
        e(f"""v_add_f32 v{m}, v{t}, v{t+1}
v_mov_b32 v{m+1}, v{m}
v_permlane32_swap_b32 v{m+1}, v{m}
v_add_f32 v{m}, v{m}, v{m+1}
v_rcp_f32 v{m}, v{m}
v_mov_b32 v{m+1}, v{m}""")
        for i in range(0,20,2): e(pk("mul",S+i,S+i,m))
        for i in range(10): e(f"v_cvt_pk_bf16_f32 v{Pb+i}, v{S+2*i}, v{S+2*i+1}")
        for c in range(4): e(f"v_mfma_f32_32x32x8_bf16 v[{O+16*c}:{O+16*c+15}], v[{VMr+2*c}:{VMr+2*c+1}], v[{Pb+8}:{Pb+9}], 0")
        for ab in range(2):
            for c in range(4): e(f"v_mfma_f32_32x32x16_bf16 v[{O+16*c}:{O+16*c+15}], a[{V+8*c+4*ab}:{V+8*c+4*ab+3}], v[{Pb+4*ab}:{Pb+4*ab+3}], v[{O+16*c}:{O+16*c+15}]")
        e(f"s_lshl_b32 s{S_T0}, s{G_SEG}, 18\ns_add_u32 s{S_T0}, s{S_T0}, {OB}\ns_add_u32 s{S_T1}, s{S_T0}, 4096")
        for c in range(4):
            for i in range(8): e(f"v_cvt_pk_bf16_f32 v{KMr+8*c+i}, v{O+16*c+2*i}, v{O+16*c+2*i+1}")
        bymode(e,3,lambda sc: [e(f"buffer_store_dwordx4 v[{KMr+8*c+4*ab}:{KMr+8*c+4*ab+3}], v{vA}, {WS}, s{S_T0+c//2} offen offset:{(c%2)*2048+ab*1024}{sc}") for c in range(4) for ab in range(2)])
        e(f"s_lshl_b32 s{A_FP}, s{G_SEG}, 5\ns_add_u32 s{A_FP}, s{A_FP}, {F_O}\ns_mov_b32 s{S_STEP}, 1")
        tl(e)
        e(f"s_mov_b32 s{G_SEG}, s{A_N1}\ns_mov_b32 s{A_N1}, s{A_N2}"); nxt(A_N2,A_N1)
        e(f"s_waitcnt vmcnt({8+(1 if TL[0] else 0)})")
    e(f"s_cmp_lt_u32 s{G_SEG}, s{A_END}\ns_cbranch_scc1 {lp}\ns_waitcnt vmcnt(0)"); oflag(); e(f"s_branch {done}")
```

```python
import sys
from asmlib import *
from common import *
from roles import *
import chain as CH
KW={a.split("=")[0]:int(a.split("=")[1]) for a in sys.argv[2:] if "=" in a}
SPLIT=KW.get("split",50); OPT.update(KW)
SK=KW.get("sk",SPLIT); SV=KW.get("sv",SPLIT); SQ=KW.get("sq",SPLIT); NJ=3 if SQ<64 else 2; R5=KW.get("r5",1)
prof = "prof" in sys.argv
out=sys.argv[1]
N=KNAME+"_kernel"
e=Asm()
CH.TL[0]="tl" in sys.argv
import gemm as GM; GM.GP[0]="gp" in sys.argv
header(e,N); entry(e,"EXIT"); tl_init(e); tl(e); ticket_issue(e); pro_loads(e); ticket_finish(e,L_TK,41)
T_KQ,T_V,T_WO,T_F1,T_F2,T_CH,T_NONE=range(7)
AW=KW.get("aw",32)
def arr2(vm):
    a=e.lab("am"); b=e.lab("an")
    e(f"s_cmp_eq_u32 s{S_MODE}, 0\ns_cbranch_scc0 {a}"); arrive(e,AW,230,vm); e(f"s_branch {b}\n{a}:"); arrive(e,40,230,vm); e(f"{b}:")
def dummy(n):
    for i in range(n): e(f"buffer_load_dword v30, v31, {WS}, 0 offen")
pro_mod(e); tl(e); pro_ln(e)
if CH.TL[0]: e(f"s_lshl_b32 s4, s{S_TEAM}, 8\ns_add_u32 s4, s4, s{S_RANK}"); tl_put(e,False)
e(f"""ROLE0:
s_mov_b32 s{G_JOB}, 0
s_mov_b32 s{G_TYPE}, {T_NONE}
s_cmp_ge_u32 s{S_RANK}, 32
s_cbranch_scc1 ARR
s_sub_u32 s{G_X}, s{S_TEAM}, 4
s_cbranch_scc0 ARR
s_mov_b32 s{G_TYPE}, {T_CH}""")
chain_pre(e,"sc1")
e("ARR:"); arr2(0)
e(f"""s_cmp_ge_u32 s{S_RANK}, 32
s_cbranch_scc1 HOOK
s_cmp_eq_u32 s{G_TYPE}, {T_CH}
s_cbranch_scc0 JOB""")
load_weights(e)
e("s_branch HOOK")
e(f"""NEXT:
s_add_u32 s{G_JOB}, s{G_JOB}, 1
JOB:
s_lshr_b32 s{S_T0}, s{S_RANK}, 3
s_and_b32 s{S_T1}, s{S_RANK}, 7
s_cmp_eq_u32 s{S_T0}, 3
s_cselect_b32 s{S_T2}, s{G_JOB}, s{S_T0}
s_cmp_eq_u32 s{S_T2}, 1
s_cselect_b32 s{G_END}, {SV}, {SK}
s_cmp_eq_u32 s{S_T2}, 2
s_cselect_b32 s{G_END}, {SQ}, s{G_END}
s_mov_b32 s{G_SEG}, 0
s_cmp_eq_u32 s{S_T0}, 3
s_cbranch_scc0 JNT
s_cmp_eq_u32 s{G_JOB}, {NJ}
s_cbranch_scc1 JMISC
s_mov_b32 s{S_T0}, s{G_JOB}
s_mov_b32 s{G_SEG}, s{G_END}
s_mov_b32 s{G_END}, 64
s_branch JQKV
JNT:
s_cmp_eq_u32 s{G_JOB}, 0
s_cbranch_scc0 JB
JQKV:
s_lshl_b32 s{S_T2}, s{G_X}, 3
s_add_u32 s{S_T1}, s{S_T1}, s{S_T2}
s_lshl_b32 s{G_COL}, s{S_T1}, 8
s_lshl_b32 s{G_OUTB}, s{S_T1}, 13
s_lshl_b32 s{G_FOB}, s{S_T1}, 4
s_lshl_b32 s{S_T2}, s{S_W}, 2
s_add_u32 s{G_FOB}, s{G_FOB}, s{S_T2}
s_lshl_b32 s{S_T2}, s{S_T0}, 9
s_add_u32 s{G_FOB}, s{G_FOB}, s{S_T2}
s_add_u32 s{G_FOB}, s{G_FOB}, {F_KV}
s_mov_b32 s{G_INB}, {H1}
s_mov_b32 s{G_FIB}, {F_H1}
s_mov_b32 s{G_FN}, 3
s_mov_b32 s{G_TYPE}, {T_KQ}
s_cmp_eq_u32 s{S_T0}, 1
s_cbranch_scc1 JV
s_cmp_eq_u32 s{S_T0}, 2
s_cbranch_scc1 JQ
s_add_u32 s{G_OUTB}, s{G_OUTB}, {KB}""")
srd(e,SRD_A,P_WK,0x800000)
e(f"s_branch WLQ\nJV:\ns_add_u32 s{G_OUTB}, s{G_OUTB}, {VB}\ns_mov_b32 s{G_TYPE}, {T_V}")
srd(e,SRD_A,P_WV,0x800000)
e(f"s_branch WLQ\nJQ:\ns_add_u32 s{G_OUTB}, s{G_OUTB}, {QB}")
srd(e,SRD_A,P_WQ,0x800000)
e("WLQ:"); wload(e,8192,'P',1024)
e(f"s_cmp_eq_u32 s{G_JOB}, 0\ns_cbranch_scc0 MAIN\nHOOK:\ns_cmp_eq_u32 s{S_MODE}, 0\ns_cbranch_scc0 HOOK2")
tl(e,226)
wait_all(e,AW,230,"ABORT")
e(f"s_cmp_lg_u64 vcc, 0\ns_cselect_b32 s{S_MODE}, 1, 0")
pro_fin(e)
tl(e,226)
e(f"""s_cmp_eq_u32 s{S_MODE}, 0
s_cbranch_scc1 MAIN
s_lshr_b32 s{S_TEAM}, s2, 5
s_and_b32 s{S_RANK}, s2, 31
s_waitcnt vmcnt(0)
s_barrier
s_branch ROLE0
HOOK2:""")
wait_all(e,40,230,"ABORT")
e(f"""MAIN:
s_cmp_eq_u32 s{G_TYPE}, {T_KQ}
s_cbranch_scc1 M_KQ
s_cmp_eq_u32 s{G_TYPE}, {T_V}
s_cbranch_scc1 M_V
s_cmp_eq_u32 s{G_TYPE}, {T_CH}
s_cbranch_scc0 ABORT
s_cmp_eq_u32 s{S_MODE}, 0
s_cbranch_scc0 M_CS""")
chain_main(e,"","ABORT","JR2",check_kv=True,prof=prof)
e("M_CS:")
chain_main(e,"sc1","ABORT","JR2",check_kv=True)
e("M_KQ:"); gemm_main(e,False,"B",64,16,64,18,1536,"ABORT","NEXT")
e("M_V:");  gemm_main(e,True,"B",64,16,64,18,1536,"ABORT","NEXT")
e(f"""JB:
s_cmp_eq_u32 s{G_JOB}, 1
s_cbranch_scc0 DONE
s_mov_b32 s{G_TYPE}, {T_KQ}
s_mov_b32 s{G_END}, 64
s_lshl_b32 s{S_T2}, s{G_X}, 3
s_add_u32 s{S_T2}, s{S_T2}, s{S_T1}
s_lshl_b32 s{G_FOB}, s{S_T2}, 4
s_lshl_b32 s{S_T2}, s{S_W}, 2
s_add_u32 s{G_FOB}, s{G_FOB}, s{S_T2}
s_lshl_b32 s{G_INB}, s{G_X}, 16
s_lshl_b32 s{G_COL}, s{S_T1}, 8
s_lshl_b32 s{G_OUTB}, s{S_T1}, 11
s_lshl_b32 s{S_T2}, s{G_X}, 14
s_add_u32 s{G_OUTB}, s{G_OUTB}, s{S_T2}
s_cmp_eq_u32 s{S_T0}, 1
s_cbranch_scc1 JF1
s_cmp_eq_u32 s{S_T0}, 2
s_cbranch_scc1 JF2
s_add_u32 s{G_FOB}, s{G_FOB}, {F_P1}
s_add_u32 s{G_INB}, s{G_INB}, {OB}
s_add_u32 s{G_OUTB}, s{G_OUTB}, {P1}
s_lshl_b32 s{S_T2}, s{G_X}, 21
s_add_u32 s{G_COL}, s{G_COL}, s{S_T2}
s_lshl_b32 s{G_FIB}, s{G_X}, 11
s_add_u32 s{G_FIB}, s{G_FIB}, {F_O}
s_mov_b32 s{G_FN}, 1""")
srd(e,SRD_A,P_WO,0x800000); wload(e,2048,'Q',1024)
gemm_main(e,False,"P",64,18,32,19,512,"ABORT","DONE")
e(f"""JF2:
s_add_u32 s{G_FOB}, s{G_FOB}, {F_P2}
s_add_u32 s{G_INB}, s{G_INB}, {FB}
s_add_u32 s{G_OUTB}, s{G_OUTB}, {P2}
s_mul_i32 s{S_T2}, s{G_X}, {896*2048}
s_add_u32 s{G_COL}, s{G_COL}, s{S_T2}
s_lshl_b32 s{G_FIB}, s{G_X}, 7
s_add_u32 s{G_FIB}, s{G_FIB}, {F_F}
s_mov_b32 s{G_FN}, 6""")
srd(e,SRD_A,P_W2,3584*2048); wload(e,2048,'Q',896)
gemm_main(e,False,"P",56,18,512,19,512,"ABORT","DONE")
e(f"""JF1:
s_cmp_eq_u32 s{S_T1}, 7
s_cbranch_scc1 {'JRED5' if R5 else 'DONE'}
s_add_u32 s{G_FOB}, s{G_FOB}, {F_F}
s_lshl_b32 s{G_OUTB}, s{S_T1}, 13
s_add_u32 s{G_OUTB}, s{G_OUTB}, s{G_INB}
s_add_u32 s{G_OUTB}, s{G_OUTB}, {FB}
s_mov_b32 s{G_INB}, {H2}
s_mul_i32 s{S_T2}, s{G_X}, {7*256}
s_add_u32 s{G_COL}, s{G_COL}, s{S_T2}
s_mov_b32 s{G_FIB}, {F_H2}
s_mov_b32 s{G_FN}, 7""")
srd(e,SRD_A,P_W1,1024*7168); wload(e,7168,'P',1024)
gemm_main(e,False,"R",64,16,128,18,512,"ABORT","DONE")
e(f"""JRED1:
s_cmp_eq_u32 s{A_END}, 64
s_cbranch_scc1 DONE
s_barrier
s_sub_u32 s{G_X}, s{S_TEAM}, 4
s_and_b32 s{S_T1}, s{S_RANK}, 7
JRED1B:
s_lshl_b32 s{R_TG}, s{G_X}, 1
s_and_b32 s{S_T2}, s{S_T1}, 1
s_add_u32 s{R_TG}, s{R_TG}, s{S_T2}
s_mov_b32 s{R_T[1]}, s{R_TG}
s_bfe_u32 s{R_S[0]}, s{S_T1}, 0x10001
s_add_u32 s{R_S[1]}, s{R_S[0]}, 2
s_mov_b32 s{R_M}, {5 if R5 else 4}
s_mov_b32 s{R_END}, {26 if R5 else 32}
s_branch JRED1C
JRED5:
s_lshl_b32 s{R_TG}, s{G_X}, 1
s_add_u32 s{R_T[1]}, s{R_TG}, 1
s_mov_b32 s{R_S[0]}, 4
s_mov_b32 s{R_S[1]}, 4
s_mov_b32 s{R_M}, 5
s_mov_b32 s{R_END}, 24
JRED1C:""")
red(e,True,"ABORT","DONE")
e(f"""JR2:
s_and_b32 s{R_TG}, s{S_RANK}, 7
s_mov_b32 s{R_T[1]}, s{R_TG}
s_lshr_b32 s{R_S[0]}, s{S_RANK}, 3
s_lshl_b32 s{S_T0}, s{S_TEAM}, 2
s_add_u32 s{R_S[0]}, s{R_S[0]}, s{S_T0}
s_add_u32 s{R_S[1]}, s{R_S[0]}, 16
s_mov_b32 s{R_M}, 32
s_mov_b32 s{R_END}, 4""")
tl(e); red(e,False,"ABORT","DONE")
AE=OPT.get('ae',16)
e(f"""JMISC:
s_cmp_lt_u32 s{S_T1}, 4
s_cselect_b32 s{A_END}, 64, {AE}""")
if AE==0: e("s_cbranch_scc0 JRED1B")
e(f"""s_lshl_b32 s{S_T1}, s{S_T1}, 2
s_add_u32 s{S_T1}, s{S_T1}, s{S_W}
s_lshr_b32 s{G_SEG}, s{S_T1}, 3
s_and_b32 s{S_T1}, s{S_T1}, 7
s_lshl_b32 s{A_H}, s{G_X}, 3
s_add_u32 s{A_H}, s{A_H}, s{S_T1}""")
att(e,"ABORT","JRED1")
e("DONE:"); tl(e); e("s_waitcnt vmcnt(0)\ns_endpgm")
abort_code(e,"ABORT","EXIT")
ref=open("cdna_kernels/"+KNAME+".s.ref").read()
head=ref[:ref.index("; @launch")]
txt=head+"; @launch grid=(256,1,1) block=(256,1,1) lds=147456\n.amdgcn_target \"amdgcn-amd-amdhsa--gfx950\"\n"+e.finish()+kdesc(N)
open(out,"w").write(txt); print("nops",e.nops,"lines",txt.count("\n"),"bytes",len(txt))
```

```python
import sys
from asmlib import *
from common import *
from roles import *
import chain as CH
KW={a.split("=")[0]:int(a.split("=")[1]) for a in sys.argv[2:] if "=" in a}
SPLIT=KW.get("split",50); OPT.update(KW)
SK=KW.get("sk",SPLIT); SV=KW.get("sv",SPLIT); SQ=KW.get("sq",SPLIT); WQ=KW.get("wq",0) and SQ<64; NJ=3 if SQ<64 and not WQ else 2; R5=KW.get("r5",1)
prof = "prof" in sys.argv
out=sys.argv[1]
N=KNAME+"_kernel"
e=Asm()
CH.TL[0]="tl" in sys.argv
import gemm as GM; GM.GP[0]="gp" in sys.argv
header(e,N); entry(e,"EXIT"); tl_init(e); tl(e); ticket_issue(e); pro_loads(e); ticket_finish(e,L_TK,41)
T_KQ,T_V,T_WO,T_F1,T_F2,T_CH,T_NONE=range(7)
AW=KW.get("aw",32)
def arr2(vm):
    a=e.lab("am"); b=e.lab("an")
    e(f"s_cmp_eq_u32 s{S_MODE}, 0\ns_cbranch_scc0 {a}"); arrive(e,AW,230,vm); e(f"s_branch {b}\n{a}:"); arrive(e,40,230,vm); e(f"{b}:")
def dummy(n):
    for i in range(n): e(f"buffer_load_dword v30, v31, {WS}, 0 offen")
pro_mod(e); tl(e); pro_ln(e)
if CH.TL[0]: e(f"s_lshl_b32 s4, s{S_TEAM}, 8\ns_add_u32 s4, s4, s{S_RANK}"); tl_put(e,False)
e(f"""ROLE0:
s_mov_b32 s{G_JOB}, 0
s_mov_b32 s{G_TYPE}, {T_NONE}
s_cmp_ge_u32 s{S_RANK}, 32
s_cbranch_scc1 ARR
s_sub_u32 s{G_X}, s{S_TEAM}, 4
s_cbranch_scc0 ARR
s_mov_b32 s{G_TYPE}, {T_CH}""")
chain_pre(e,"sc1")
e("ARR:"); arr2(0)
e(f"""s_cmp_ge_u32 s{S_RANK}, 32
s_cbranch_scc1 HOOK
s_cmp_eq_u32 s{G_TYPE}, {T_CH}
s_cbranch_scc0 JOB""")
load_weights(e)
e("s_branch HOOK")
e(f"""NEXT:
s_add_u32 s{G_JOB}, s{G_JOB}, 1
JOB:
s_lshr_b32 s{S_T0}, s{S_RANK}, 3
s_and_b32 s{S_T1}, s{S_RANK}, 7
s_cmp_eq_u32 s{S_T0}, 3
s_cselect_b32 s{S_T2}, s{G_JOB}, s{S_T0}
s_cmp_eq_u32 s{S_T2}, 1
s_cselect_b32 s{G_END}, {SV}, {SK}
s_cmp_eq_u32 s{S_T2}, 2
s_cselect_b32 s{G_END}, {SQ}, s{G_END}
s_mov_b32 s{G_SEG}, 0
s_cmp_eq_u32 s{S_T0}, 3
s_cbranch_scc0 JNT
s_cmp_eq_u32 s{G_JOB}, {NJ}
s_cbranch_scc1 JMISC
s_mov_b32 s{S_T0}, s{G_JOB}
s_mov_b32 s{G_SEG}, s{G_END}
s_mov_b32 s{G_END}, 64
s_branch JQKV
JNT:
s_cmp_eq_u32 s{G_JOB}, 0
s_cbranch_scc1 JQKV
s_lshl_b32 s{S_T2}, s{S_T0}, 2
s_add_u32 s{S_T2}, s{S_T2}, s{G_JOB}
s_cmp_eq_u32 s{S_T2}, {1 if WQ else 64}
s_cbranch_scc0 JB
s_mov_b32 s{S_T0}, 2
s_mov_b32 s{G_SEG}, {SQ}
s_mov_b32 s{G_END}, 64
JQKV:
s_lshl_b32 s{S_T2}, s{G_X}, 3
s_add_u32 s{S_T1}, s{S_T1}, s{S_T2}
s_lshl_b32 s{G_COL}, s{S_T1}, 8
s_lshl_b32 s{G_OUTB}, s{S_T1}, 13
s_lshl_b32 s{G_FOB}, s{S_T1}, 4
s_lshl_b32 s{S_T2}, s{S_W}, 2
s_add_u32 s{G_FOB}, s{G_FOB}, s{S_T2}
s_lshl_b32 s{S_T2}, s{S_T0}, 9
s_add_u32 s{G_FOB}, s{G_FOB}, s{S_T2}
s_add_u32 s{G_FOB}, s{G_FOB}, {F_KV}
s_mov_b32 s{G_INB}, {H1}
s_mov_b32 s{G_FIB}, {F_H1}
s_mov_b32 s{G_FN}, 3
s_mov_b32 s{G_TYPE}, {T_KQ}
s_cmp_eq_u32 s{S_T0}, 1
s_cbranch_scc1 JV
s_cmp_eq_u32 s{S_T0}, 2
s_cbranch_scc1 JQ
s_add_u32 s{G_OUTB}, s{G_OUTB}, {KB}""")
srd(e,SRD_A,P_WK,0x800000)
e(f"s_branch WLQ\nJV:\ns_add_u32 s{G_OUTB}, s{G_OUTB}, {VB}\ns_mov_b32 s{G_TYPE}, {T_V}")
srd(e,SRD_A,P_WV,0x800000)
e(f"s_branch WLQ\nJQ:\ns_add_u32 s{G_OUTB}, s{G_OUTB}, {QB}")
srd(e,SRD_A,P_WQ,0x800000)
e("WLQ:"); wload(e,8192,'P',1024)
e(f"s_cmp_eq_u32 s{G_JOB}, 0\ns_cbranch_scc0 MAIN\nHOOK:\ns_cmp_eq_u32 s{S_MODE}, 0\ns_cbranch_scc0 HOOK2")
tl(e,226)
wait_all(e,AW,230,"ABORT")
e(f"s_cmp_lg_u64 vcc, 0\ns_cselect_b32 s{S_MODE}, 1, 0")
pro_fin(e)
tl(e,226)
e(f"""s_cmp_eq_u32 s{S_MODE}, 0
s_cbranch_scc1 MAIN
s_lshr_b32 s{S_TEAM}, s2, 5
s_and_b32 s{S_RANK}, s2, 31
s_waitcnt vmcnt(0)
s_barrier
s_branch ROLE0
HOOK2:""")
wait_all(e,40,230,"ABORT")
e(f"""MAIN:
s_cmp_eq_u32 s{G_TYPE}, {T_KQ}
s_cbranch_scc1 M_KQ
s_cmp_eq_u32 s{G_TYPE}, {T_V}
s_cbranch_scc1 M_V
s_cmp_eq_u32 s{G_TYPE}, {T_CH}
s_cbranch_scc0 ABORT
s_cmp_eq_u32 s{S_MODE}, 0
s_cbranch_scc0 M_CS""")
chain_main(e,"","ABORT","JR2",check_kv=True,prof=prof)
e("M_CS:")
chain_main(e,"sc1","ABORT","JR2",check_kv=True)
e("M_KQ:"); gemm_main(e,False,"B",64,16,64,18,1536,"ABORT","NEXT")
e("M_V:");  gemm_main(e,True,"B",64,16,64,18,1536,"ABORT","NEXT")
e(f"""JB:
s_mov_b32 s{G_TYPE}, {T_KQ}
s_mov_b32 s{G_END}, 64
s_lshl_b32 s{S_T2}, s{G_X}, 3
s_add_u32 s{S_T2}, s{S_T2}, s{S_T1}
s_lshl_b32 s{G_FOB}, s{S_T2}, 4
s_lshl_b32 s{S_T2}, s{S_W}, 2
s_add_u32 s{G_FOB}, s{G_FOB}, s{S_T2}
s_lshl_b32 s{G_INB}, s{G_X}, 16
s_lshl_b32 s{G_COL}, s{S_T1}, 8
s_lshl_b32 s{G_OUTB}, s{S_T1}, 11
s_lshl_b32 s{S_T2}, s{G_X}, 14
s_add_u32 s{G_OUTB}, s{G_OUTB}, s{S_T2}
s_cmp_eq_u32 s{S_T0}, 1
s_cbranch_scc1 JF1
s_cmp_eq_u32 s{S_T0}, 2
s_cbranch_scc1 JF2
s_add_u32 s{G_FOB}, s{G_FOB}, {F_P1}
s_add_u32 s{G_INB}, s{G_INB}, {OB}
s_add_u32 s{G_OUTB}, s{G_OUTB}, {P1}
s_lshl_b32 s{S_T2}, s{G_X}, 21
s_add_u32 s{G_COL}, s{G_COL}, s{S_T2}
s_lshl_b32 s{G_FIB}, s{G_X}, 11
s_add_u32 s{G_FIB}, s{G_FIB}, {F_O}
s_mov_b32 s{G_FN}, 1""")
srd(e,SRD_A,P_WO,0x800000); wload(e,2048,'Q',1024)
gemm_main(e,False,"P",64,18,32,19,512,"ABORT","DONE")
e(f"""JF2:
s_add_u32 s{G_FOB}, s{G_FOB}, {F_P2}
s_add_u32 s{G_INB}, s{G_INB}, {FB}
s_add_u32 s{G_OUTB}, s{G_OUTB}, {P2}
s_mul_i32 s{S_T2}, s{G_X}, {896*2048}
s_add_u32 s{G_COL}, s{G_COL}, s{S_T2}
s_lshl_b32 s{G_FIB}, s{G_X}, 7
s_add_u32 s{G_FIB}, s{G_FIB}, {F_F}
s_mov_b32 s{G_FN}, 6""")
srd(e,SRD_A,P_W2,3584*2048); wload(e,2048,'Q',896)
gemm_main(e,False,"P",56,18,512,19,512,"ABORT","DONE")
e(f"""JF1:
s_cmp_eq_u32 s{S_T1}, 7
s_cbranch_scc1 {'JRED5' if R5 else 'DONE'}
s_add_u32 s{G_FOB}, s{G_FOB}, {F_F}
s_lshl_b32 s{G_OUTB}, s{S_T1}, 13
s_add_u32 s{G_OUTB}, s{G_OUTB}, s{G_INB}
s_add_u32 s{G_OUTB}, s{G_OUTB}, {FB}
s_mov_b32 s{G_INB}, {H2}
s_mul_i32 s{S_T2}, s{G_X}, {7*256}
s_add_u32 s{G_COL}, s{G_COL}, s{S_T2}
s_mov_b32 s{G_FIB}, {F_H2}
s_mov_b32 s{G_FN}, 7""")
srd(e,SRD_A,P_W1,1024*7168); wload(e,7168,'P',1024)
gemm_main(e,False,"R",64,16,128,18,512,"ABORT","DONE")
e(f"""JRED1:
s_cmp_eq_u32 s{A_END}, 64
s_cbranch_scc1 DONE
s_barrier
s_sub_u32 s{G_X}, s{S_TEAM}, 4
s_and_b32 s{S_T1}, s{S_RANK}, 7
JRED1B:
s_lshl_b32 s{R_TG}, s{G_X}, 1
s_and_b32 s{S_T2}, s{S_T1}, 1
s_add_u32 s{R_TG}, s{R_TG}, s{S_T2}
s_mov_b32 s{R_T[1]}, s{R_TG}
s_bfe_u32 s{R_S[0]}, s{S_T1}, 0x10001
s_add_u32 s{R_S[1]}, s{R_S[0]}, 2
s_mov_b32 s{R_M}, {5 if R5 else 4}
s_mov_b32 s{R_END}, {26 if R5 else 32}
s_branch JRED1C
JRED5:
s_lshl_b32 s{R_TG}, s{G_X}, 1
s_add_u32 s{R_T[1]}, s{R_TG}, 1
s_mov_b32 s{R_S[0]}, 4
s_mov_b32 s{R_S[1]}, 4
s_mov_b32 s{R_M}, 5
s_mov_b32 s{R_END}, 24
JRED1C:""")
red(e,True,"ABORT","DONE")
e(f"""JR2:
s_and_b32 s{R_TG}, s{S_RANK}, 7
s_mov_b32 s{R_T[1]}, s{R_TG}
s_lshr_b32 s{R_S[0]}, s{S_RANK}, 3
s_lshl_b32 s{S_T0}, s{S_TEAM}, 2
s_add_u32 s{R_S[0]}, s{R_S[0]}, s{S_T0}
s_add_u32 s{R_S[1]}, s{R_S[0]}, 16
s_mov_b32 s{R_M}, 32
s_mov_b32 s{R_END}, 4""")
tl(e); red(e,False,"ABORT","DONE")
AE=OPT.get('ae',16)
e(f"""JMISC:
s_cmp_lt_u32 s{S_T1}, 4
s_cselect_b32 s{A_END}, 64, {AE}""")
if AE==0: e("s_cbranch_scc0 JRED1B")
e(f"""s_lshl_b32 s{S_T1}, s{S_T1}, 2
s_add_u32 s{S_T1}, s{S_T1}, s{S_W}
s_lshr_b32 s{G_SEG}, s{S_T1}, 3
s_and_b32 s{S_T1}, s{S_T1}, 7
s_lshl_b32 s{A_H}, s{G_X}, 3
s_add_u32 s{A_H}, s{A_H}, s{S_T1}""")
att(e,"ABORT","JRED1")
e("DONE:"); tl(e); e("s_waitcnt vmcnt(0)\ns_endpgm")
abort_code(e,"ABORT","EXIT")
ref=open("cdna_kernels/"+KNAME+".s.ref").read()
head=ref[:ref.index("; @launch")]
txt=head+"; @launch grid=(256,1,1) block=(256,1,1) lds=147456\n.amdgcn_target \"amdgcn-amd-amdhsa--gfx950\"\n"+e.finish()+kdesc(N)
open(out,"w").write(txt); print("nops",e.nops,"lines",txt.count("\n"),"bytes",len(txt))
```

```python
from layout import *
OPT=dict(sp=2,pf=30)
S_WG=2; S_XCC=3
SRD_WS=8
SRD_A=12
SRD_B=16
SRD_DBG=20
S_P=24
P_X,P_MEM0,P_WQ,P_WK,P_WV,P_WO,P_SEG,P_BX,P_W1,P_W2,P_C,P_WMOD,P_OUT,P_DBG,P_WS = [24+2*i for i in range(15)]
S_W=54; S_TEAM=55; S_RANK=56; S_BUD=57; S_STEP=58
S_T0=59; S_T1=60; S_T2=61; S_T3=62; S_T4=63
S_MEM=64; S_MEMN=65; S_SC=66; S_O=67; S_PART=68; S_KV=69; S_KM=70; S_FL=71; S_MODE=72
S_PR=74
L_X=0
L_WO=9216
L_V=18432
L_KV=24576
L_STAGE=0
def srd(e, d, p, size):
    e(f"s_mov_b32 s{d}, s{p}\ns_mov_b32 s{d+1}, s{p+1}\ns_mov_b32 s{d+2}, {hex(size)}\ns_mov_b32 s{d+3}, 0x00020000")
WS=f"s[{SRD_WS}:{SRD_WS+3}]"
vL=0; vT=1; vT2=2; vT3=3; vG=4; vIdx=5; vXw=6; vVw=7; vXr=8; vVr=9; vWr=10; vKr=11; vVk=12
vSCw=13; vSCw0=14; vSCr=15; vSCr0=16; vOw=17; vPw=18; vPr=19; vMw=20; vPois=21
vZ=22; vKMw=23
vP4=24
vA=28
vD=44
vX=172
vXb=76
vK=80
vVV=88
vS=96
vC=108
vVm=128
vVq=204
vPb=136
vO=144
vU=152
vZ4=168
def lane_setup(e):
    e(f"""v_and_b32 v{vT}, 15, v{vL}
v_lshrrev_b32 v{vT2}, 4, v{vL}
s_lshl_b32 s{S_T0}, s{S_TEAM}, 16
s_lshl_b32 s{S_T1}, s{S_W}, 12
s_add_u32 s{S_T1}, s{S_T1}, s{S_T0}
v_lshlrev_b32 v{vG}, 4, v{vL}
v_add_u32 v{vG}, s{S_T1}, v{vG}
v_mov_b32 v{vIdx}, 0x4444
v_mov_b32 v{vT3}, 0xeeee
v_cmp_le_u32 vcc, 8, v{vT}
v_cndmask_b32 v{vIdx}, v{vIdx}, v{vT3}, vcc
v_and_b32 v{vT3}, 1, v{vT2}
v_mul_u32_u24 v{vXw}, 576, v{vT3}
v_lshl_add_u32 v{vXw}, v{vT}, 2, v{vXw}
v_lshrrev_b32 v{vU}, 1, v{vT2}
v_lshl_add_u32 v{vXw}, v{vU}, 6, v{vXw}
s_mul_i32 s{S_T1}, s{S_W}, 2304
v_add_u32 v{vXw}, s{S_T1}, v{vXw}
v_lshlrev_b32 v{vVw}, 4, v{vT3}
v_lshl_add_u32 v{vVw}, v{vT}, 5, v{vVw}
v_lshl_add_u32 v{vVw}, v{vU}, 9, v{vVw}
s_lshl_b32 s{S_T1}, s{S_W}, 10
v_add_u32 v{vVw}, s{S_T1}, v{vVw}
v_mul_u32_u24 v{vXr}, 144, v{vT}
v_lshl_add_u32 v{vXr}, v{vT3}, 4, v{vXr}
v_lshl_add_u32 v{vXr}, v{vU}, 6, v{vXr}
v_lshlrev_b32 v{vVr}, 5, v{vT}
v_lshl_add_u32 v{vVr}, v{vT2}, 3, v{vVr}
v_bfe_u32 v{vU+1}, v{vL}, 1, 3
v_mul_u32_u24 v{vWr}, 144, v{vU+1}
v_lshl_add_u32 v{vWr}, v{vT2}, 5, v{vWr}
v_and_b32 v{vU+1}, 1, v{vL}
v_lshl_add_u32 v{vWr}, v{vU+1}, 4, v{vWr}
v_lshlrev_b32 v{vVk}, 10, v{vU}
v_lshl_add_u32 v{vVk}, v{vT3}, 9, v{vVk}
v_add_u32 v{vVk}, {L_KV}, v{vVk}
v_lshrrev_b32 v{vU+1}, 3, v{vT}
v_lshl_add_u32 v{vKr}, v{vU+1}, 8, v{vVk}
v_and_b32 v{vU+2}, 7, v{vL}
v_lshl_add_u32 v{vKr}, v{vU+2}, 4, v{vKr}
v_lshl_add_u32 v{vVk}, v{vT}, 4, v{vVk}
s_mul_i32 s{S_T1}, s{S_TEAM}, 163840
s_mul_i32 s{S_T2}, s{S_RANK}, 1280
s_add_u32 s{S_T2}, s{S_T2}, s{S_T1}
v_lshlrev_b32 v{vSCw}, 7, v{vT2}
v_lshl_add_u32 v{vSCw}, v{vT}, 4, v{vSCw}
s_lshl_b32 s{S_T3}, s{S_RANK}, 9
s_add_u32 s{S_T3}, s{S_T3}, s{S_T0}
v_add_u32 v{vOw}, s{S_T3}, v{vSCw}
v_add_u32 v{vSCw}, s{S_T2}, v{vSCw}
v_add_u32 v{vSCw0}, 768, v{vSCw}
v_mov_b32 v{vU+3}, {hex(OOB)}
v_cmp_le_u32 vcc, 8, v{vT}
v_cndmask_b32 v{vSCw}, v{vSCw}, v{vU+3}, vcc
v_cndmask_b32 v{vOw}, v{vOw}, v{vU+3}, vcc
v_cndmask_b32 v{vSCw0}, v{vSCw0}, v{vU+3}, vcc
v_cmp_gt_u32 vcc, 2, v{vT2}
v_cndmask_b32 v{vSCw0}, v{vSCw0}, v{vU+3}, vcc
s_and_b32 s{S_T2}, s{S_RANK}, 28
s_mul_i32 s{S_T2}, s{S_T2}, 1280
s_add_u32 s{S_T2}, s{S_T2}, s{S_T1}
v_lshlrev_b32 v{vSCr}, 9, v{vU+1}
v_lshl_add_u32 v{vSCr}, v{vT2}, 7, v{vSCr}
v_lshl_add_u32 v{vSCr}, v{vU+2}, 4, v{vSCr}
v_add_u32 v{vSCr}, s{S_T2}, v{vSCr}
v_lshrrev_b32 v{vSCr0}, 5, v{vL}
v_lshlrev_b32 v{vSCr0}, 7, v{vSCr0}
v_lshl_add_u32 v{vSCr0}, v{vU+2}, 4, v{vSCr0}
v_bfe_u32 v{vU+4}, v{vL}, 3, 2
v_lshl_add_u32 v{vSCr0}, v{vU+4}, 2, v{vSCr0}
s_add_u32 s{S_T2}, s{S_T2}, 1024
v_add_u32 v{vSCr0}, s{S_T2}, v{vSCr0}
s_lshl_b32 s{S_T2}, s{S_RANK}, 12
v_lshlrev_b32 v{vPr}, 4, v{vL}
v_add_u32 v{vPr}, s{S_T2}, v{vPr}
s_lshl_b32 s{S_T2}, s{S_TEAM}, 10
v_add_u32 v{vPw}, s{S_T2}, v{vPr}
v_lshlrev_b32 v{vMw}, 3, v{vL}
v_add_u32 v{vMw}, s{S_T3}, v{vMw}
v_mov_b32 v{vZ}, 0""")
    for i in range(4): e(f"v_mov_b32 v{vP4+i}, -1\nv_mov_b32 v{vZ4+i}, 0")
    e(f"v_mov_b32 v{vPb+5}, 0\nv_mov_b32 v{vVm+5}, 0\nv_mov_b32 v{vVm+7}, 0")

def poison(e, slotreg, st, m=vP4):
    e(f"""s_lshl_b32 s{S_T0}, s{slotreg}, 14
s_add_u32 s{S_T1}, s{S_T0}, {CH_O}""")
    if m is not None: e(f"buffer_store_dwordx2 v[{m}:{m+1}], v{vMw}, {WS}, s{S_T0} offen {st}")
    e(f"""buffer_store_dwordx2 v[{vP4}:{vP4+1}], v{vMw}, {WS}, s{S_T1} offen {st}
s_mul_i32 s{S_T0}, s{slotreg}, 40960
s_add_u32 s{S_T0}, s{S_T0}, {CH_SC}
s_lshl_b32 s{S_T1}, s{slotreg}, 17
s_add_u32 s{S_T1}, s{S_T1}, {CH_PART}
buffer_store_dwordx4 v[{vP4}:{vP4+3}], v{vU+8}, {WS}, s{S_T0} offen {st}
buffer_store_dword v{vP4}, v{vU+9}, {WS}, s{S_T0} offen {st}
buffer_store_dwordx4 v[{vP4}:{vP4+3}], v{vPw}, {WS}, s{S_T1} offen sc1""")

def load_weights(e, h1=None):
    vR=vU; vB1=vU+1; vB2=vU+2; vAd=vU+3
    e(f"""v_lshrrev_b32 v{vR}, 2, v{vL}
v_and_b32 v{vT3}, 3, v{vL}
v_lshlrev_b32 v{vT3}, 4, v{vT3}
s_lshl_b32 s{S_T0}, s{S_W}, 8
v_add_u32 v{vR}, s{S_T0}, v{vR}
s_lshl_b32 s{S_T1}, s{S_TEAM}, 11
s_lshl_b32 s{S_T2}, s{S_RANK}, 6
s_add_u32 s{S_T1}, s{S_T1}, s{S_T2}
v_lshl_add_u32 v{vB1}, v{vR}, 13, v{vT3}
v_add_u32 v{vB1}, s{S_T1}, v{vB1}
s_lshl_b32 s{S_T1}, s{S_TEAM}, 21
s_add_u32 s{S_T1}, s{S_T1}, s{S_T2}
v_lshl_add_u32 v{vB2}, v{vR}, 11, v{vT3}
v_add_u32 v{vB2}, s{S_T1}, v{vB2}
s_lshl_b32 s{S_T4}, s{S_W}, 15
s_add_u32 s{S_T4}, s{S_T4}, {L_STAGE}""")
    vq=vU+4; vo=vU+5; t=vU+6; t2=vU+7
    e(f"""v_lshrrev_b32 v{t}, 1, v{vT2}
v_and_b32 v{t2}, 1, v{vT2}
v_lshlrev_b32 v{vq}, 4, v{t}
v_lshl_add_u32 v{vq}, v{t2}, 2, v{vq}
v_lshlrev_b32 v{vo}, 3, v{t}
v_lshl_add_u32 v{vo}, v{t2}, 4, v{vo}
v_bfe_u32 v{t}, v{vL}, 3, 1
v_lshl_add_u32 v{vq}, v{t}, 3, v{vq}
v_lshl_add_u32 v{vo}, v{t}, 2, v{vo}
v_bfe_u32 v{t}, v{vL}, 2, 1
v_add_u32 v{vq}, v{vq}, v{t}
v_add_u32 v{vo}, v{vo}, v{t}
v_and_b32 v{t}, 3, v{vL}
v_lshlrev_b32 v{t}, 3, v{t}
v_add_u32 v{t}, s{S_T4}, v{t}
v_lshl_add_u32 v{vq}, v{vq}, 6, v{t}
v_lshl_add_u32 v{vo}, v{vo}, 6, v{t}""")
    def dma(blk):
        p=[P_WQ,P_WK,P_WV,P_WO][blk]
        sr = SRD_A if blk%2==0 else SRD_B
        srd(e, sr, p, 0x800000)
        for i in range(16):
            e(f"s_add_u32 m0, s{S_T4}, {(blk%2)*16384+i*1024}")
            step = i*16*(8192 if blk<3 else 2048)
            e(f"s_mov_b32 s{S_T0}, {step}")
            e(f"buffer_load_dwordx4 v{vB1 if blk<3 else vB2}, s[{sr}:{sr+3}], s{S_T0} offen lds")
    def tr(blk):
        for tile in range(2):
            for t_ in range(4):
                base = (blk*2+tile)*32 + t_*8 if blk<3 else 192 + tile*32 + t_*8
                for p in range(4):
                    off=(blk%2)*16384 + (64*t_+32*(p>>1)+2*(p&1))*64 + tile*32
                    e(f"ds_read_b64_tr_b16 a[{base+2*p}:{base+2*p+1}], v{vq if blk<3 else vo} offset:{off}")
    W=OPT.get('wt',0)
    def st():
        if W: tl(e,226)
    if h1: h1(dma)
    else: dma(0); dma(1)
    e("s_waitcnt vmcnt(16)"); tr(0); e("s_waitcnt lgkmcnt(0)"); st(); dma(2)
    e(f"s_waitcnt vmcnt({16+W})"); tr(1); e("s_waitcnt lgkmcnt(0)"); st(); dma(3)
    e(f"s_waitcnt vmcnt({16+W})"); tr(2); st()
    e("s_waitcnt vmcnt(0)"); tr(3); e("s_waitcnt lgkmcnt(0)")

def chain_init(e, st):
    chain_pre(e, st); load_weights(e)
def chain_pre(e, st):
    chain_pre1(e)
    poison(e, S_W, st, None)
    l=e.lab("ci"); l2=e.lab("cj")
    e(f"""s_lshl_b32 s{S_T0}, s{S_W}, 14
s_cmp_lg_u32 s{S_W}, 0
s_cbranch_scc1 {l}
s_waitcnt vmcnt(4)
buffer_store_dwordx2 v[{vU+14}:{vU+15}], v{vMw}, {WS}, s{S_T0} offen {st}
s_branch {l2}
{l}:
buffer_store_dwordx2 v[{vP4}:{vP4+1}], v{vMw}, {WS}, s{S_T0} offen {st}
{l2}:""")
def chain_pre1(e):
    lane_setup(e)
    e(f"""s_mul_i32 s{S_T1}, s{S_TEAM}, 163840
s_mul_i32 s{S_T2}, s{S_RANK}, 1280
s_add_u32 s{S_T2}, s{S_T2}, s{S_T1}
v_lshl_add_u32 v{vU+8}, v{vL}, 4, s{S_T2}
s_add_u32 s{S_T2}, s{S_T2}, 1024
v_lshl_add_u32 v{vU+9}, v{vL}, 2, s{S_T2}""")
    srd(e, SRD_A, P_MEM0, 16384)
    e(f"""v_bfe_u32 v{vU}, v{vL}, 1, 3
v_lshlrev_b32 v{vU}, 11, v{vU}
v_lshl_add_u32 v{vU}, v{vT2}, 4, v{vU}
v_and_b32 v{vU+1}, 1, v{vL}
v_lshl_add_u32 v{vU}, v{vU+1}, 3, v{vU}
s_lshl_b32 s{S_T0}, s{S_RANK}, 6
buffer_load_dwordx2 v[{vU+14}:{vU+15}], v{vU}, s[{SRD_A}:{SRD_A+3}], s{S_T0} offen""")
def chain_pre2(e, st):
    for i in range(4): e(f"v_mov_b32 v{vZ4+i}, 0")
    l=e.lab("ci"); l2=e.lab("cj")
    e(f"s_cmp_lg_u32 s{S_W}, 0\ns_cbranch_scc1 {l}")
    poison(e, S_W, st, vU+14)
    e(f"s_branch {l2}\n{l}:")
    poison(e, S_W, st)
    e(f"{l2}:")

TL=[False]
def tl_init(e):
    if TL[0]: e(f"s_lshl_b32 s6, s2, 10\ns_add_u32 s6, s6, {PROF+0x10000}\ns_cmp_eq_u32 s{S_W}, 0\ns_cselect_b32 s7, 0, {hex(OOB)}")
def tl_get(e):
    if TL[0]: e("s_memrealtime s[4:5]")
def tl_put(e, wait=True, v=14):
    if TL[0]:
        if wait: e("s_waitcnt lgkmcnt(0)")
        e(f"v_mov_b32 v{v}, s4\nv_mov_b32 v{v+1}, s7\nbuffer_store_dword v{v}, v{v+1}, {WS}, s6 offen\ns_add_u32 s6, s6, 4")
def tl(e,v=14):
    tl_get(e); tl_put(e,True,v)
def stamp(e, prof, i):
    if prof: e(f"s_memtime s[{S_PR+2*i}:{S_PR+2*i+1}]")

PF=[None]
def failc(e,i):
    if PF[0]: e(f'v_add_u32 v{246+i}, 1, v{246+i}')
def gather(e, sreg, abort, pre=None, fc=None):
    lp=e.lab("g"); ok=e.lab("gok")
    e(f"{lp}:")
    for t in range(4): e(f"buffer_load_dwordx4 v[{vA+4*t}:{vA+4*t+3}], v{vG}, {WS}, s{sreg} offen offset:{t*1024} sc1")
    if pre: pre()
    e(f"""s_waitcnt vmcnt(0)
v_max3_u32 v{vU}, v{vA}, v{vA+2}, v{vA+4}
v_max3_u32 v{vU+1}, v{vA+6}, v{vA+8}, v{vA+10}
v_max3_u32 v{vU}, v{vU}, v{vA+12}, v{vA+14}
v_max_u32 v{vU}, v{vU}, v{vU+1}
v_cmp_eq_u32 vcc, -1, v{vU}
s_cbranch_vccz {ok}""")
    if fc is not None: failc(e,fc)
    e(f"""s_sub_u32 s{S_BUD}, s{S_BUD}, 1
s_cbranch_scc0 {lp}
s_branch {abort}
{ok}:""")
def gather2(e, sreg, abort, work, fc=None, st=None):
    C=[e.lab("gc") for _ in range(4)]; R=[e.lab("gr") for _ in range(4)]
    ld=lambda t: e(f"buffer_load_dwordx4 v[{vA+4*t}:{vA+4*t+3}], v{vG}, {WS}, s{sreg} offen offset:{t*1024} sc1")
    for t in range(4): ld(t)
    for t in range(4):
        e(f"""{C[t]}:
s_waitcnt vmcnt({3-t})
v_max_u32 v{vU}, v{vA+4*t}, v{vA+4*t+2}
v_cmp_eq_u32 vcc, -1, v{vU}
s_cbranch_vccnz {R[t]}""")
        if t==3 and st: st()
        work(t)
    def tail():
        for t in range(4):
            e(f"{R[t]}:")
            for u in range(t,4): ld(u)
            if fc is not None: failc(e,fc)
            e(f"s_sub_u32 s{S_BUD}, s{S_BUD}, 1\ns_cbranch_scc0 {C[t]}\ns_branch {abort}")
    return tail
def smf(e, d, t, a): e(f"v_smfmac_f32_16x16x64_bf16 v[{d}:{d+3}], v[{vA+4*t}:{vA+4*t+3}], a[{a}:{a+7}], v{vIdx}")
def fold(e, d):
    for i in range(4): e(f"v_permlane32_swap_b32 v{d+i}, v{d+4+i}")
    e(f"v_pk_add_f32 v[{d}:{d+1}], v[{d}:{d+1}], v[{d+4}:{d+5}]\nv_pk_add_f32 v[{d+2}:{d+3}], v[{d+2}:{d+3}], v[{d+6}:{d+7}]")
def qk_phase(e,st=None):
    for p in range(2):
        fold(e, vD+8*p)
        for i in range(4): e(f"ds_write_b32 v{vXw}, v{vD+8*p+i} offset:{L_X+p*1152+i*144}")
    if st: st()
    e("s_waitcnt lgkmcnt(0)\ns_barrier")
def v_phase(e,pre=None):
    for t in range(4):
        for tile in range(2): smf(e, vD+16+4*tile, t, (4+tile)*32+t*8)
    fold(e, vD+16)
    e(f"ds_write_b128 v{vVw}, v[{vD+16}:{vD+19}] offset:{L_V}")
    if pre: pre()
    e("s_waitcnt lgkmcnt(0)\ns_barrier")
def qk_work(e): return lambda t: [smf(e, vD+4*tile, t, tile*32+t*8) for tile in range(4)]
def wo_work(e): return lambda t: [smf(e, vD+4*tile, t, 192+tile*32+t*8) for tile in range(2)]
def wo_phase(e):
    fold(e, vD)
    for i in range(4): e(f"ds_write_b32 v{vXw}, v{vD+i} offset:{L_WO+i*144}")
    e("s_waitcnt lgkmcnt(0)\ns_barrier")
def sum4(e, b, n, stride, waits=None):
    for k in range(0,n,2): e(f"v_pk_add_f32 v[{b+k}:{b+k+1}], v[{b+k}:{b+k+1}], v[{b+stride+k}:{b+stride+k+1}]")
    if waits: e(waits)
    for k in range(0,n,2): e(f"v_pk_add_f32 v[{b+2*stride+k}:{b+2*stride+k+1}], v[{b+2*stride+k}:{b+2*stride+k+1}], v[{b+3*stride+k}:{b+3*stride+k+1}]")
    for k in range(0,n,2): e(f"v_pk_add_f32 v[{b+k}:{b+k+1}], v[{b+k}:{b+k+1}], v[{b+2*stride+k}:{b+2*stride+k+1}]")
def zero_acc(e, lo, n):
    for i in range(n): e(f"v_mov_b32 v{vD+lo+i}, 0")
def slots(e):
    e(f"""s_and_b32 s{S_T0}, s{S_STEP}, 3
s_lshl_b32 s{S_MEM}, s{S_T0}, 14
s_add_u32 s{S_O}, s{S_MEM}, {CH_O}
s_mul_i32 s{S_SC}, s{S_T0}, 40960
s_add_u32 s{S_SC}, s{S_SC}, {CH_SC}
s_lshl_b32 s{S_PART}, s{S_T0}, 17
s_add_u32 s{S_PART}, s{S_PART}, {CH_PART}
s_add_u32 s{S_MEMN}, s{S_MEM}, 16384
s_and_b32 s{S_MEMN}, s{S_MEMN}, 0xffff""")
def read_x(e):
    for w in range(4): e(f"ds_read_b128 v[{vX+8*w}:{vX+8*w+3}], v{vXr} offset:{L_X+2304*w}\nds_read_b128 v[{vX+8*w+4}:{vX+8*w+7}], v{vXr} offset:{L_X+2304*w+32}")
def cvt_x(e):
    for i in range(4): e(f"v_cvt_pk_bf16_f32 v{vXb+i}, v{vX+2*i}, v{vX+2*i+1}")
def kv_prefetch(e, abort, check):
    if check:
        lp=e.lab("kf"); ok=e.lab("kok")
        if check==2: e(f"v_cmp_ne_u32 vcc, 1, v{vU+12}\ns_cbranch_vccz {ok}")
        e(f"""s_mul_i32 s{S_T0}, s{S_KV}, 1536
s_add_u32 s{S_T0}, s{S_T0}, {F_KV}
{lp}:
buffer_load_dword v{vU+12}, v{vU+11}, {WS}, s{S_T0} offen sc1
s_waitcnt vmcnt(0)
v_cmp_ne_u32 vcc, 1, v{vU+12}
s_cbranch_vccz {ok}
s_sub_u32 s{S_BUD}, s{S_BUD}, 1
s_cbranch_scc0 {lp}
s_branch {abort}
{ok}:""")
    e(f"""s_and_b32 s{S_T1}, s{S_KV}, 1
s_lshl_b32 s{S_T1}, s{S_T1}, 12
s_lshl_b32 s{S_T0}, s{S_KV}, 18
s_add_u32 m0, s{S_T1}, {L_KV}
s_add_u32 s{S_T2}, s{S_T0}, {KB}
buffer_load_dwordx4 v{vU+10}, {WS}, s{S_T2} offen sc1 lds
buffer_load_dwordx4 v{vU+10}, {WS}, s{S_T2} offen offset:1024 sc1 lds
s_add_u32 m0, s{S_T1}, {L_KV+2048}
s_add_u32 s{S_T2}, s{S_T0}, {VB}
buffer_load_dwordx4 v{vU+10}, {WS}, s{S_T2} offen sc1 lds
buffer_load_dwordx4 v{vU+10}, {WS}, s{S_T2} offen offset:1024 sc1 lds""")

def chain_main(e, st, abort, done, check_kv=True, prof=False, NSTEP=64):
    lead=e.lab("lead");
    e(f"s_mov_b32 s{S_STEP}, 0")
    slots(e); zero_acc(e,0,24)
    e(f"s_cmp_eq_u32 s{S_W}, 0\ns_cbranch_scc1 {lead}")
    e(f"""s_lshl_b32 s{S_T0}, s{S_TEAM}, 5
s_add_u32 s{S_T0}, s{S_T0}, s{S_RANK}
s_lshl_b32 s{S_T1}, s{S_T0}, 11
v_lshl_add_u32 v{vU+10}, v{vL}, 4, s{S_T1}
s_lshl_b32 s{S_T1}, s{S_T0}, 2
v_and_b32 v{vU+11}, 1, v{vL}
v_lshl_add_u32 v{vU+11}, v{vU+11}, 9, s{S_T1}
s_lshl_b32 s{S_T1}, s{S_T0}, 9
v_lshlrev_b32 v{vKMw}, 7, v{vT2}
v_lshl_add_u32 v{vKMw}, v{vT}, 4, v{vKMw}
v_subrev_u32 v{vKMw}, 128, v{vKMw}
v_add_u32 v{vKMw}, s{S_T1}, v{vKMw}
v_mov_b32 v{vU+3}, {hex(OOB)}
v_cmp_gt_u32 vcc, 8, v{vT}
v_cndmask_b32 v{vKMw}, v{vKMw}, v{vU+3}, vcc
v_lshl_add_u32 v{vU+13}, v{vL}, 3, s{S_T1}
v_and_b32 v{vVr}, 31, v{vL}
v_lshlrev_b32 v{vVr}, 5, v{vVr}
v_lshrrev_b32 v{vU+3}, 5, v{vL}
v_lshl_add_u32 v{vVr}, v{vU+3}, 4, v{vVr}
s_lshl_b32 s{S_T1}, s{S_T0}, 2
v_mov_b32 v{vU+14}, s{S_T1}
v_mov_b32 v{vU+15}, 1
v_lshlrev_b32 v{vU+7}, 4, v{vL}
s_mov_b32 s{S_KV}, 0""")
    ZA=OPT.get('za',24); OW=OPT.get('ow',0)
    if OW:
        for x in range(1,4): e(f"v_xor_b32 v{219+x}, {x*1024}, v{vPw}")
    def kvflag(add): e(f"s_mul_i32 s{S_T0}, s{S_STEP}, 1536\ns_add_u32 s{S_T0}, s{S_T0}, {F_KV+1536*add}\nbuffer_load_dword v{vU+12}, v{vU+11}, {WS}, s{S_T0} offen sc1")
    def kmflag(d): e(f"s_lshl_b32 s{S_T0}, s{S_STEP}, 9\ns_add_u32 s{S_T0}, s{S_T0}, {F_KM+512*d}\nbuffer_store_dword v{vU+15}, v{vU+14}, {WS}, s{S_T0} offen sc1")
    h0=e.lab("h0")
    e(f"s_cmp_lg_u32 s{S_W}, 2\ns_cbranch_scc1 {h0}")
    kv_prefetch(e, abort, 1); kvflag(1)
    e(f"{h0}:")
    if prof: e(f"v_mov_b32 v250, 0\nds_write_b32 v{vZ}, v250 offset:40000")
    hl=e.lab("hl"); e(f"{hl}:")
    t1=gather2(e, S_MEM, abort, qk_work(e))
    KW=OPT.get('kw',1)
    qk_phase(e)
    if KW==3:
        k3=e.lab("k3"); e(f"s_cmp_lg_u32 s{S_W}, 3\ns_cbranch_scc1 {k3}\ns_cmp_eq_u32 s{S_STEP}, 0\ns_cbranch_scc1 {k3}"); kmflag(-1); e(f"{k3}:")
    v_phase(e)
    b=e.lab("b"); c=e.lab("c"); b3=e.lab("b3")
    e(f"s_cmp_lg_u32 s{S_W}, 1\ns_cbranch_scc1 {b}")
    if KW==3: e(f"s_cmp_lt_u32 s{S_STEP}, {NSTEP-1}\ns_cbranch_scc1 {c}")
    def kmred():
        read_x(e)
        for w in range(4): e(f"ds_read_b128 v[{vVq+4*w}:{vVq+4*w+3}], v{vVr} offset:{L_V+1024*w}")
        e("s_waitcnt lgkmcnt(0)")
        sum4(e, vX, 8, 8); sum4(e, vVq, 4, 4)
        cvt_x(e)
        e(f"""v_cvt_pk_bf16_f32 v{vVm+4}, v{vVq}, v{vVq+1}
v_cvt_pk_bf16_f32 v{vVm+5}, v{vVq+2}, v{vVq+3}""")
    kmred()
    def kmst(): e(f"""s_lshl_b32 s{S_T0}, s{S_STEP}, 16
s_add_u32 s{S_T1}, s{S_T0}, {VM}
s_add_u32 s{S_T0}, s{S_T0}, {KM}
buffer_store_dwordx4 v[{vXb}:{vXb+3}], v{vKMw}, {WS}, s{S_T0} offen sc1
buffer_store_dwordx2 v[{vVm+4}:{vVm+5}], v{vU+13}, {WS}, s{S_T1} offen sc1""")
    def pois():
        e(f"s_add_u32 s{S_T4}, s{S_STEP}, 2\ns_and_b32 s{S_T4}, s{S_T4}, 3"); poison(e, S_T4, st)
    PO=OPT.get('po',2)
    e(f"s_cmp_lt_u32 s{S_STEP}, {NSTEP-1}\ns_cbranch_scc1 {c}")
    KF=OPT.get('kf',1)
    if not KF: kmflag(-1)
    kmst(); e("s_waitcnt vmcnt(0)"); kmflag(0)
    e(f"""s_branch {done}
{b}:
s_cmp_lt_u32 s{S_STEP}, {NSTEP-1}
s_cbranch_scc0 {done}""")
    if PO==1:
        e(f"s_cmp_lg_u32 s{S_W}, 3\ns_cbranch_scc1 {c}"); pois()
    e(f"{c}:"); zero_acc(e,ZA,24-ZA); e("s_barrier")
    zero_acc(e,0,ZA)
    t2=gather2(e, S_O, abort, wo_work(e))
    wo_phase(e)
    f=e.lab("f"); g=e.lab("g"); f3=e.lab("f3"); f0=e.lab("f0")
    LB=OPT.get('lb',0)
    if LB: e("s_barrier")
    e(f"s_cmp_lg_u32 s{S_W}, 1\ns_cbranch_scc1 {f}")
    if not KF: e(f"s_cmp_eq_u32 s{S_STEP}, 0\ns_cbranch_scc1 {f0}"); kmflag(-1); e(f"{f0}:")
    if KW!=3: kmst()
    if PO==2: pois()
    bb="" if LB==1 else "s_barrier\n"
    e(bb)
    if KF and KW!=3: assert PO==2; e("s_waitcnt vmcnt(5)"); kmflag(0)
    lp=e.lab("pp"); ok=e.lab("ppok"); DP=OPT.get('dp',0)
    e(f"s_branch {lp if DP else g}\n{f}:\ns_cmp_lg_u32 s{S_W}, 2\ns_cbranch_scc1 {f3}\ns_add_u32 s{S_KV}, s{S_STEP}, 1")
    if not OPT.get('x1'): kv_prefetch(e, abort, 2); kvflag(2)
    e(f"{bb}s_branch {g}\n{f3}:")
    if LB==2: zero_acc(e,0,8)
    e(bb)
    if LB!=2: zero_acc(e,0,8)
    for i in range(OPT.get('pd',0)): e(f"v_mov_b32 v{vD+i%8}, 0")
    if DP==2: e(f"s_branch {g}")
    def pld():
        for x in range(4):
            if OW and x: e(f"buffer_load_dwordx4 v[{vC+4*x}:{vC+4*x+3}], v{219+x}, {WS}, s{S_PART} offen sc1")
            elif not OW: e(f"buffer_load_dwordx4 v[{vC+4*x}:{vC+4*x+3}], v{vPr}, {WS}, s{S_PART} offen offset:{x*1024} sc1")
    P0=vX if OW else vC
    if OW:
        if OW==2: pld()
        for w in range(4): e(f"ds_read_b128 v[{vX+4*w}:{vX+4*w+3}], v{vWr} offset:{L_WO+2304*w}")
        e("s_waitcnt lgkmcnt(2)")
        sum4(e, vX, 4, 4, "s_waitcnt lgkmcnt(0)")
        if OW==2: e(f"s_branch {lp}_c")
    def pchk(n): e(f"""s_waitcnt vmcnt({2+n})
v_pk_add_f32 v[{vC}:{vC+1}], v[{P0}:{P0+1}], v[{vC+4}:{vC+5}]
v_pk_add_f32 v[{vC+2}:{vC+3}], v[{P0+2}:{P0+3}], v[{vC+6}:{vC+7}]
s_waitcnt vmcnt({n})
v_pk_add_f32 v[{vC+8}:{vC+9}], v[{vC+8}:{vC+9}], v[{vC+12}:{vC+13}]
v_pk_add_f32 v[{vC+10}:{vC+11}], v[{vC+10}:{vC+11}], v[{vC+14}:{vC+15}]
v_pk_add_f32 v[{vC}:{vC+1}], v[{vC}:{vC+1}], v[{vC+8}:{vC+9}]
v_pk_add_f32 v[{vC+2}:{vC+3}], v[{vC+2}:{vC+3}], v[{vC+10}:{vC+11}]
v_cmp_u_f32 vcc, v{vC}, v{vC}
v_cvt_pk_bf16_f32 v{vC+4}, v{vC}, v{vC+1}
v_cvt_pk_bf16_f32 v{vC+5}, v{vC+2}, v{vC+3}
s_cbranch_vccz {ok}""")
    if KW==3: assert KF; kmred(); pld(); kmst(); pchk(2)
    e(f"{lp}:"); pld(); e(f"{lp}_c:"); pchk(0)
    if prof: e(f"v_add_u32 v250, 1, v250\nds_write_b32 v{vZ}, v250 offset:40000")
    e(f"""s_sub_u32 s{S_BUD}, s{S_BUD}, 1
s_cbranch_scc0 {lp}
s_branch {abort}
{ok}:
buffer_store_dwordx2 v[{vC+4}:{vC+5}], v{vMw}, {WS}, s{S_MEMN} offen {st}
{g}:
s_barrier
s_add_u32 s{S_STEP}, s{S_STEP}, 1""")
    slots(e); zero_acc(e,0,8)
    e(f"s_branch {hl}")
    t1(); t2()
    e(f"{lead}:")
    if prof:
        for i in range(20): e(f"v_mov_b32 v{230+i}, 0")
    PF[0]=prof
    ll=e.lab("ll"); e(f"{ll}:")
    tl_get(e); tl_put(e,True,226)
    stamp(e,prof,0)
    t1=gather2(e, S_MEM, abort, qk_work(e), 0, lambda: stamp(e,prof,1))
    qk_phase(e,lambda: stamp(e,prof,2))
    stamp(e,prof,3)
    read_x(e)
    e(f"ds_read_b128 v[{vK}:{vK+3}], v{vKr}\nds_read_b128 v[{vK+4}:{vK+7}], v{vKr} offset:128\ns_waitcnt lgkmcnt(6)")
    sum4(e, vX, 8, 8, "s_waitcnt lgkmcnt(2)")
    cvt_x(e)
    stamp(e,prof,4)
    X=f"v[{vXb}:{vXb+3}]"
    e(f"""v_mfma_f32_16x16x32_bf16 v[{vS}:{vS+3}], {X}, {X}, 0
s_waitcnt lgkmcnt(0)
v_mfma_f32_16x16x32_bf16 v[{vS+4}:{vS+7}], v[{vK}:{vK+3}], {X}, 0
v_mfma_f32_16x16x32_bf16 v[{vS+8}:{vS+11}], v[{vK+4}:{vK+7}], {X}, 0
ds_read_b128 v[{vVV}:{vVV+3}], v{vVk} offset:2048
ds_read_b128 v[{vVV+4}:{vVV+7}], v{vVk} offset:2304
v_xor_b32 v{vKr}, 4096, v{vKr}
v_xor_b32 v{vVk}, 4096, v{vVk}
buffer_store_dwordx4 v[{vS}:{vS+3}], v{vSCw0}, {WS}, s{S_SC} offen {st}
buffer_store_dwordx4 v[{vS+4}:{vS+7}], v{vSCw}, {WS}, s{S_SC} offen {st}
buffer_store_dwordx4 v[{vS+8}:{vS+11}], v{vSCw}, {WS}, s{S_SC} offen offset:512 {st}""")
    stamp(e,prof,5)
    def scl():
        for c_ in range(4):
            e(f"buffer_load_dwordx4 v[{vC+4*c_}:{vC+4*c_+3}], v{vSCr}, {WS}, s{S_SC} offen offset:{c_*1280} sc1")
            e(f"buffer_load_dword v{vC+16+c_}, v{vSCr0}, {WS}, s{S_SC} offen offset:{c_*1280} sc1")
    ES=OPT.get('es',1)
    v_phase(e, scl if ES else None)
    stamp(e,prof,6)
    e(f"s_cmp_lt_u32 s{S_STEP}, {NSTEP-1}\ns_cbranch_scc0 LEADEND_{ll}")
    lp=e.lab("sc"); ok=e.lab("scok")
    for w in range(4): e(f"ds_read_b64 v[{vVq+4*w}:{vVq+4*w+1}], v{vVr} offset:{L_V+1024*w}\nds_read_b64 v[{vVq+4*w+2}:{vVq+4*w+3}], v{vVr} offset:{L_V+1024*w+512}")
    zero_acc(e,ZA,24-ZA)
    e("s_waitcnt lgkmcnt(0)")
    sum4(e, vVq, 4, 4)
    e(f"v_cvt_pk_bf16_f32 v{vVm+4}, v{vVq}, v{vVq+1}\nv_cvt_pk_bf16_f32 v{vVm+6}, v{vVq+2}, v{vVq+3}")
    stamp(e,prof,7)
    sk=e.lab("sk")
    if ES: e(f"s_branch {sk}")
    e(f"{lp}:"); scl(); e(f"{sk}:")
    e(f"""s_waitcnt vmcnt(0)
v_pk_add_f32 v[{vC}:{vC+1}], v[{vC}:{vC+1}], v[{vC+4}:{vC+5}]
v_pk_add_f32 v[{vC+8}:{vC+9}], v[{vC+8}:{vC+9}], v[{vC+12}:{vC+13}]
v_pk_add_f32 v[{vC+16}:{vC+17}], v[{vC+16}:{vC+17}], v[{vC+18}:{vC+19}]
v_pk_add_f32 v[{vC+2}:{vC+3}], v[{vC+2}:{vC+3}], v[{vC+6}:{vC+7}]
v_pk_add_f32 v[{vC+10}:{vC+11}], v[{vC+10}:{vC+11}], v[{vC+14}:{vC+15}]
v_pk_add_f32 v[{vC}:{vC+1}], v[{vC}:{vC+1}], v[{vC+8}:{vC+9}]
v_add_f32 v{vC+4}, v{vC+16}, v{vC+17}
v_pk_add_f32 v[{vC+2}:{vC+3}], v[{vC+2}:{vC+3}], v[{vC+10}:{vC+11}]
v_cmp_u_f32 vcc, v{vC}, v{vC+4}
v_max3_f32 v{vU}, v{vC}, v{vC+1}, v{vC+4}
s_cbranch_vccz {ok}""")
    failc(e,1)
    e(f"""s_sub_u32 s{S_BUD}, s{S_BUD}, 1
s_cbranch_scc0 {lp}
s_branch {abort}
{ok}:""")
    stamp(e,prof,8)
    m=vU; t=vU+1
    e(f"""v_max3_f32 v{m}, v{m}, v{vC+2}, v{vC+3}
v_max_f32_dpp v{m}, v{m}, v{m} row_ror:8 row_mask:0xf bank_mask:0xf
v_mov_b32 v{t}, v{m}
v_permlane16_swap_b32 v{t}, v{m}
v_max_f32 v{m}, v{m}, v{t}
v_mov_b32 v{t}, v{m}
v_permlane32_swap_b32 v{t}, v{m}
v_max_f32 v{m}, v{m}, v{t}
v_mul_f32 v{m}, s{S_FL}, v{m}""")
    for i in [4,0,1,2,3]: e(f"v_fma_f32 v{vC+i}, v{vC+i}, s{S_FL}, -v{m}")
    for i in [4,0,1,2,3]: e(f"v_exp_f32 v{vC+i}, v{vC+i}")
    e(f"""v_mov_b32_dpp v{t}, v{vC+4} row_ror:8 row_mask:0xf bank_mask:0xf
v_cvt_pk_bf16_f32 v{vPb}, v{vC}, v{vC+1}
v_cvt_pk_bf16_f32 v{vPb+1}, v{vC+2}, v{vC+3}
v_cvt_pk_bf16_f32 v{vPb+4}, v{vC+4}, v{t}
v_mov_b32_dpp v{vPb+2}, v{vPb} row_ror:8 row_mask:0xf bank_mask:0xf
v_mov_b32_dpp v{vPb+3}, v{vPb+1} row_ror:8 row_mask:0xf bank_mask:0xf
v_mfma_f32_16x16x16_bf16 v[{vO}:{vO+3}], v[{vVm+4}:{vVm+5}], v[{vPb+4}:{vPb+5}], 0
v_pk_add_f32 v[{vC}:{vC+1}], v[{vC}:{vC+1}], v[{vC+2}:{vC+3}]
v_add_f32 v{m}, v{vC}, v{vC+4}
v_mfma_f32_16x16x16_bf16 v[{vO+4}:{vO+7}], v[{vVm+6}:{vVm+7}], v[{vPb+4}:{vPb+5}], 0
v_add_f32 v{m}, v{m}, v{vC+1}
v_mfma_f32_16x16x32_bf16 v[{vO}:{vO+3}], v[{vVV}:{vVV+3}], v[{vPb}:{vPb+3}], v[{vO}:{vO+3}]
v_add_f32_dpp v{m}, v{m}, v{m} row_ror:8 row_mask:0xf bank_mask:0xf
v_mov_b32 v{t}, v{m}
v_mfma_f32_16x16x32_bf16 v[{vO+4}:{vO+7}], v[{vVV+4}:{vVV+7}], v[{vPb}:{vPb+3}], v[{vO+4}:{vO+7}]
v_permlane16_swap_b32 v{t}, v{m}
v_add_f32 v{m}, v{m}, v{t}
v_mov_b32 v{t}, v{m}
v_permlane32_swap_b32 v{t}, v{m}
v_add_f32 v{m}, v{m}, v{t}
v_rcp_f32 v{m}, v{m}""")
    for i in range(8): e(f"v_mul_f32 v{vO+i}, v{vO+i}, v{m}")
    for i in range(4): e(f"v_cvt_pk_bf16_f32 v{vO+i}, v{vO+2*i}, v{vO+2*i+1}")
    e(f"buffer_store_dwordx4 v[{vO}:{vO+3}], v{vOw}, {WS}, s{S_O} offen {st}\ns_barrier")
    stamp(e,prof,9)
    zero_acc(e,0,ZA)
    t2=gather2(e, S_O, abort, wo_work(e), 2, lambda: stamp(e,prof,10))
    wo_phase(e)
    stamp(e,prof,11)
    lp=e.lab("pp"); ok=e.lab("ppok")
    for w in range(4): e(f"ds_read_b128 v[{vX+4*w}:{vX+4*w+3}], v{vWr} offset:{L_WO+2304*w}")
    e("s_waitcnt lgkmcnt(2)")
    sum4(e, vX, 4, 4, "s_waitcnt lgkmcnt(0)")
    e(f"""buffer_store_dwordx4 v[{vX}:{vX+3}], v{vPw}, {WS}, s{S_PART} offen sc1""")
    stamp(e,prof,12)
    e("s_barrier\ns_barrier")
    if LB==2: e("s_barrier")
    stamp(e,prof,13)
    e(f"s_add_u32 s{S_STEP}, s{S_STEP}, 1")
    slots(e); zero_acc(e,0,8)
    if prof:
        e("s_waitcnt lgkmcnt(0)")
        for i in range(13): e(f"s_sub_u32 s{S_T0}, s{S_PR+2*i+2}, s{S_PR+2*i}\nv_add_u32 v{230+i}, s{S_T0}, v{230+i}")
    e(f"s_branch {ll}"); t1(); t2(); e(f"LEADEND_{ll}:")
    if prof:
        e(f"s_lshl_b32 s{S_T0}, s{S_TEAM}, 5\ns_add_u32 s{S_T0}, s{S_T0}, s{S_RANK}\ns_lshl_b32 s{S_T0}, s{S_T0}, 7\ns_add_u32 s{S_T0}, s{S_T0}, {PROF}")
        e(f"ds_read_b32 v249, v{vZ} offset:40000\ns_waitcnt lgkmcnt(0)")
        for i in range(5): e(f"buffer_store_dwordx4 v[{230+4*i}:{233+4*i}], v{vZ}, {WS}, s{S_T0} offen offset:{16*i}")
    PF[0]=False
    e(f"s_branch {done}")
```

```python
from layout import *
from chain import *
G_SEG=64; G_END=65; G_INB=66; G_FIB=67; G_OUTB=68; G_FOB=69; G_M0=70; G_PF=71; G_PEND=73; G_IN=74; G_JOB=75; G_FP=76; G_COL=77; G_TYPE=78; G_X=79; G_NS=80; G_FN=81
gRd=1; gIn=2; gFl=3; gOut=4; gFo=5; gOne=6; gIx=7; gT=8; gF=16; gA0=32; gA1=48; gR=64; gP=96
SA=f"s[{SRD_A}:{SRD_A+3}]"
def wload(e, stride, perm, nrows, h1=None):
    vB=gT; vq=gT+1; t=gT+2; t2=gT+3; vc=gT+4; M16=OPT.get('m16',1)
    e(f"""v_lshrrev_b32 v{t}, 2, v0
s_mov_b32 s{S_T0}, {stride}
v_mul_lo_u32 v{vB}, v{t}, s{S_T0}
v_and_b32 v{t2}, 3, v0
v_lshl_add_u32 v{vB}, v{t2}, 4, v{vB}
s_lshl_b32 s{S_T0}, s{S_W}, 6
s_add_u32 s{S_T0}, s{S_T0}, s{G_COL}
v_add_u32 v{vB}, s{S_T0}, v{vB}
s_lshl_b32 s{S_T4}, s{S_W}, 15
v_and_b32 v{t}, 3, v{t}
v_mov_b32 v{vq}, 0""")
    if not M16: e(f"""v_lshrrev_b32 v{vq}, 5, v0
v_lshl_add_u32 v{vq}, v{vq}, {7 if perm=='P' else 2}, v{t}
v_lshlrev_b32 v{vq}, 6, v{vq}
v_lshl_add_u32 v{vq}, v{t2}, 3, v{vq}
v_bfe_u32 v{t}, v0, 4, 1
v_lshl_add_u32 v{vq}, v{t}, 5, v{vq}
v_add_u32 v{vq}, s{S_T4}, v{vq}""")
    else:
        e(f"""v_bfe_u32 v{vq}, v0, 4, 1
v_lshl_add_u32 v{t}, v{vq}, {7 if perm=='P' else 2}, v{t}
v_lshrrev_b32 v{vq}, 5, v0
v_lshl_add_u32 v{t}, v{vq}, {2 if perm=='P' else 4}, v{t}
v_lshlrev_b32 v{vq}, 6, v{t}
v_add_u32 v{vq}, s{S_T4}, v{vq}
v_lshlrev_b32 v{t}, 3, v{t2}
v_and_b32 v{vc}, 2, v{t2}
v_lshl_add_u32 v{vc}, v{vc}, 3, v{t}
s_cmp_eq_u32 s{G_TYPE}, 1
s_cselect_b64 vcc, -1, 0
s_cselect_b32 s{S_T0}, 32, 16
v_cndmask_b32 v{t}, v{vc}, v{t}, vcc
v_add_u32 v{vq}, v{vq}, v{t}
v_add_u32 v{vc}, s{S_T0}, v{vq}""")
    nb=(nrows+255)//256
    cnt=[min(256,nrows-256*b)//16 for b in range(nb)]
    def dma(b):
        for i in range(cnt[b]):
            e(f"s_add_u32 m0, s{S_T4}, {(b%2)*16384+i*1024}\ns_mov_b32 s{S_T0}, {(256*b+16*i)*stride}\nbuffer_load_dwordx4 v{vB}, {SA}, s{S_T0} offen lds")
    def tr(b):
        for k in range(cnt[b]):
            ks=16*b+k
            if M16:
                m=k>>1; c=k&1
                for p in range(2):
                    off=(b%2)*16384+((64*p+8*m) if perm=='P' else (32*m+8*p))*64
                    e(f"ds_read_b64_tr_b16 a[{4*ks+2*p}:{4*ks+2*p+1}], v{vc if c else vq} offset:{off}")
                continue
            for p in range(2):
                off=(b%2)*16384+((64*p+4*k) if perm=='P' else (16*k+8*p))*64
                e(f"ds_read_b64_tr_b16 a[{4*ks+2*p}:{4*ks+2*p+1}], v{vq} offset:{off}")
    if h1: h1(dma)
    else: dma(0); dma(1)
    for b in range(nb):
        e(f"s_waitcnt vmcnt({cnt[b+1] if b+1<nb else 0})"); tr(b); e("s_waitcnt lgkmcnt(0)")
        if b+2<nb: dma(b+2)
def poll4(e, vd, va, sreg, abort, lo=False):
    lp=e.lab("pl"); ok=e.lab("pk")
    e(f"""{lp}:
buffer_load_dwordx4 v[{vd}:{vd+3}], v{va}, {WS}, s{sreg} offen sc1
s_waitcnt vmcnt(0)
v_and_b32 v{vd}, v{vd}, v{vd+1}
v_and_b32 v{vd+2}, v{vd+2}, v{vd+3}
v_and_b32 v{vd}, v{vd}, v{vd+2}
v_cmp_ne_u32 vcc, 1, v{vd}
{f's_cmp_eq_u32 vcc_lo, 0{chr(10)}s_cbranch_scc1' if lo else 's_cbranch_vccz'} {ok}
s_sub_u32 s{S_BUD}, s{S_BUD}, 1
s_cbranch_scc0 {lp}
s_branch {abort}
{ok}:""")
def lane0(e, v, t):
    e(f"v_mov_b32 v{v}, {hex(OOB)}\nv_cmp_eq_u32 vcc, 0, v0\nv_cndmask_b32 v{v}, v{v}, v{t}, vcc")
def bymode(e, r, f):
    if not OPT.get('pl',1): f(" sc1"); return
    a=e.lab("bm"); b=e.lab("bn")
    e(f"s_cmp_eq_u32 s{r}, 0\ns_cbranch_scc0 {a}"); f(""); e(f"s_branch {b}\n{a}:"); f(" sc1"); e(f"{b}:")
GP=[False]
def gst(e,i):
    if GP[0] and not OPT.get('gl'): e(f's_memtime s[{82+2*i}:{83+2*i}]')
def gemm_main(e, swap, epi, KS, in_sh, fi_mul, out_sh, fo_mul, abort, done):
    Q=KS//4; NST=4 if epi=="P" else 2; M16=OPT.get('m16',1)
    grp=[min(4,Q-4*g) for g in range(4)]
    LS=[' sc1','',' nt',' sc1 nt'][OPT.get('ls',0)] if epi=='P' else ' sc1'
    gTo=24; gTx=25; gTd=26; NL=19 if epi=='R' else KS//4; TO=OPT.get('to',1)
    ACC=[32,104]; RD=[[20,21],[22,23]]
    FT=OPT.get('ft',2) if epi!='B' else OPT.get('fta',2); D=6; FL=OPT.get('fl',32); PF=min(KS-8,OPT.get('pf2',44)); gOx=27; gFx=28; gOob=29
    e(f"v_lshlrev_b32 v{gRd}, 4, v0")
    if M16:
        e(f"""v_lshrrev_b32 v{gT}, 4, v0
v_and_b32 v{gT+1}, 15, v0
v_lshlrev_b32 v{gT+2}, 4, v{gT+1}
v_lshl_add_u32 v{gT+2}, v{gT}, 9, v{gT+2}""")
        if swap:
            e(f"""v_and_b32 v{gT+3}, 8, v{gT+1}
v_add_u32 v{gT+3}, v{gT+3}, v{gT+1}
v_and_b32 v{gT+1}, 1, v{gT}
v_lshl_add_u32 v{gT+3}, v{gT+1}, 3, v{gT+3}
v_lshlrev_b32 v{gT+3}, 4, v{gT+3}
v_lshl_add_u32 v{RD[0][0]}, v{gT}, 9, v{gT+3}
v_xor_b32 v{RD[0][1]}, 128, v{RD[0][0]}
v_lshrrev_b32 v{gT+3}, 5, v0
v_lshlrev_b32 v{gT+3}, 7, v{gT+3}
v_xor_b32 v{gRd}, v{gT+3}, v{gRd}""")
        else: e(f"v_mov_b32 v{RD[0][0]}, v{gT+2}\nv_add_u32 v{RD[0][1]}, 256, v{gT+2}")
    else: e(f"v_mov_b32 v{RD[0][0]}, v{gRd}\nv_add_u32 v{RD[0][1]}, 1024, v{gRd}")
    e(f"""v_add_u32 v{RD[1][0]}, 0x10000, v{RD[0][0]}
v_add_u32 v{RD[1][1]}, 0x10000, v{RD[0][1]}
s_lshl_b32 s{G_M0}, s{S_W}, 10
v_add_u32 v{gIn}, s{G_M0}, v{gRd}
v_and_b32 v{gFl}, 31, v0
v_min_u32 v{gFl}, s{G_FN}, v{gFl}
v_lshlrev_b32 v{gFl}, 4, v{gFl}
v_lshrrev_b32 v{gTo}, 5, v0
v_mul_u32_u24 v{gTo}, {fi_mul}, v{gTo}
v_add_u32 v{gFl}, v{gFl}, v{gTo}
s_and_b32 s{S_T0}, s{S_RANK}, 7
s_lshl_b32 s{S_T0}, s{S_T0}, 2
s_add_u32 s{S_T0}, s{S_T0}, s{S_W}
s_mul_i32 s{S_T0}, s{S_T0}, {NL}
v_add_u32 v{gTo}, s{S_T0}, v0
v_min_u32 v{gTo}, {KS*8-1}, v{gTo}
v_lshlrev_b32 v{gTo}, 7, v{gTo}
v_mov_b32 v{gTx}, {hex(OOB)}
v_mov_b32 v{gOob}, {hex(OOB)}
v_cmp_gt_u32 vcc, {NL}, v0
v_cndmask_b32 v{gTo}, v{gTx}, v{gTo}, vcc
v_mov_b32 v{gOne}, 0""")
    lane0(e, gFo, gOne)
    e(f"v_mov_b32 v{gOne}, 1")
    if epi=="P":
        e(f"""v_bfe_u32 v{gT+3}, v0, 2, {2 if M16 else 3}
v_lshlrev_b32 v{gOut}, 16, v{gT+3}
v_and_b32 v{gT+3}, 3, v0
v_lshl_add_u32 v{gOut}, v{gT+3}, 4, v{gOut}
v_lshrrev_b32 v{gT+3}, 5, v0
v_lshl_add_u32 v{gOut}, v{gT+3}, {8 if M16 else 6}, v{gOut}
s_lshl_b32 s{S_T0}, s{S_W}, 9
v_add_u32 v{gOut}, s{S_T0}, v{gOut}""")
        if M16: e(f"v_bfe_u32 v{gT+3}, v0, 4, 1\nv_lshl_add_u32 v{gOut}, v{gT+3}, 6, v{gOut}")
    else:
        e(f"s_lshl_b32 s{S_T0}, s{S_W}, 11\nv_add_u32 v{gOut}, s{S_T0}, v{gT+2 if M16 else gRd}")
    def fo(back,va=gFo):
        e(f"s_mul_i32 s{G_FP}, s{G_SEG}, {fo_mul}\ns_add_u32 s{G_FP}, s{G_FP}, s{G_FOB}")
        if back: e(f"s_sub_u32 s{G_FP}, s{G_FP}, {back*fo_mul}")
        f=lambda sc: e(f"buffer_store_dword v{gOne}, v{va}, {WS}, s{G_FP} offen{sc}")
        if epi=="R": bymode(e,S_MODE,f)
        else: f(" sc1")
    def faddr(d, seg, add):
        e(f"s_mul_i32 s{d}, s{seg}, {fi_mul}\ns_add_u32 s{d}, s{d}, s{G_FIB}")
        if add: e(f"s_add_u32 s{d}, s{d}, {add*fi_mul}")
    def fload(s): e(f"buffer_load_dwordx4 v[{gF}:{gF+3}], v{gFl}, {WS}, s{s} offen sc1")
    def rd(b,ks): e(f"ds_read_b128 v[{gR+4*(ks%8)}:{gR+4*(ks%8)+3}], v{RD[b][ks&1]} offset:{(ks>>1)*2048}")
    def mf(b,ks):
        B=f"v[{gR+4*(ks%8)}:{gR+4*(ks%8)+3}]"
        if M16:
            t=ks&1
            for c in range(2):
                acc=ACC[b]+(8*c+4*t if swap else 8*t+4*c); w=8*(ks>>1)+4*c
                A=f"a[{w}:{w+3}]"; X,Y=(B,A) if swap else (A,B)
                e(f"v_mfma_f32_16x16x32_bf16 v[{acc}:{acc+3}], {X}, {Y}, {'0' if ks<2 else f'v[{acc}:{acc+3}]'}")
        else:
            acc=ACC[b]+16*(ks&1); A=f"a[{4*ks}:{4*ks+3}]"; X,Y=(B,A) if swap else (A,B)
            e(f"v_mfma_f32_32x32x16_bf16 v[{acc}:{acc+15}], {X}, {Y}, {'0' if ks<2 else f'v[{acc}:{acc+15}]'}")
    def epi_parts(b,back):
        a=ACC[b]; L=[]
        if not M16:
            for i in range(0,16,2): L.append(f"v_add_f32 v{a+i}, v{a+i}, v{a+16+i}\nv_add_f32 v{a+i+1}, v{a+i+1}, v{a+17+i}")
        if epi=="R":
            for i in range(0,16,2): L.append(f"v_max_f32 v{a+i}, 0, v{a+i}\nv_max_f32 v{a+i+1}, 0, v{a+i+1}")
        if epi!="P":
            for i in range(0,8,2): L.append(f"v_cvt_pk_bf16_f32 v{gP+i}, v{a+2*i}, v{a+2*i+1}\nv_cvt_pk_bf16_f32 v{gP+i+1}, v{a+2*i+2}, v{a+2*i+3}")
        return L
    def saddr(back):
        e(f"s_lshl_b32 s{S_T2}, s{G_SEG}, {out_sh}\ns_add_u32 s{S_T2}, s{S_T2}, s{G_OUTB}")
        if back: e(f"s_sub_u32 s{S_T2}, s{S_T2}, {back<<out_sh}")
        if epi=="P" and M16: e(f"s_add_u32 s{S_T4}, s{S_T2}, {4<<16}")
    def store(b,g,va):
        a=ACC[b]
        if epi=="P":
            if M16: e(f"buffer_store_dwordx4 v[{a+4*g}:{a+4*g+3}], v{va}, {WS}, s{S_T4 if g>>1 else S_T2} offen offset:{(g&1)*128} sc1")
            else: e(f"buffer_store_dwordx4 v[{a+4*g}:{a+4*g+3}], v{va}, {WS}, s{S_T2} offen offset:{g*128} sc1")
        else:
            so=lambda sc: e(f"buffer_store_dwordx4 v[{gP+4*g}:{gP+4*g+3}], v{va}, {WS}, s{S_T2} offen offset:{g*(256 if M16 else 1024)}{sc}")
            if epi=="R": bymode(e,S_MODE,so)
            else: so(" sc1")
    def dma(b,i,va): e(f"s_add_u32 m0, s{G_M0}, {b*65536+i*4096}\ns_add_u32 s{S_T3}, s{G_IN}, {i*4096}\nbuffer_load_dwordx4 v{va}, {WS}, s{S_T3} offen{LS} lds")
    if GP[0]:
        for i in range(93,100): e(f"s_mov_b32 s{i}, 0")
        if OPT.get('gl'): e("s_memtime s[82:83]\ns_memrealtime s[84:85]")
    np_=(len(epi_parts(0,1))+1)//2; p0=3; s0=(p0+np_+3)//4*4
    ops=[(4*i+2,f"d{i}") for i in range(Q)]+[(s0+4*g,f"s{g}") for g in range(NST)]+[(FL,"fl"),(PF,"fo")]
    if TL[0]: ops.append((FL-1,"tl"))
    if TO: ops.append((FL+4,"to"))
    ops.sort(key=lambda x:x[0]); names=[n for k,n in ops]
    def younger(name, ks, prev):
        i=names.index(name); n=len([1 for k,x in ops if k<ks])
        return len(ops)-1-i+n if prev else n-1-i
    loop=[e.lab("gl"),e.lab("gl")]; fetch=[e.lab("gf"),e.lab("gf")]; tail=[e.lab("gt"),e.lab("gt")]
    e(f"s_mov_b32 s{G_NS}, s{G_SEG}\ns_barrier\ns_branch {fetch[0]}")
    for b in range(2):
        e(f"""{loop[b]}:
s_mov_b32 s{G_SEG}, s{G_NS}
s_add_u32 s{G_NS}, s{G_SEG}, 1""")
        tl_get(e); gst(e,0)
        pre=[f"""v_and_b32 v{gF}, v{gF}, v{gF+1}
v_and_b32 v{gF+2}, v{gF+2}, v{gF+3}
s_lshl_b32 s{G_IN}, s{G_NS}, {in_sh}
s_add_u32 s{G_IN}, s{G_IN}, s{G_INB}""",
             f"""v_and_b32 v{gF}, v{gF}, v{gF+2}
v_cmp_ne_u32 vcc, 1, v{gF}
s_cmp_lt_u32 s{G_NS}, s{G_END}
s_cselect_b32 vcc_lo, vcc_lo, -1
s_cmp_eq_u32 vcc_lo, 0
s_cselect_b32 s{S_T0}, 0, {hex(OOB)}
v_add_u32 v{gIx}, s{S_T0}, v{gIn}""",
             f"""s_add_u32 s{S_T0}, s{G_NS}, 1
s_cmp_lt_u32 s{S_T0}, s{G_END}
s_cselect_b32 vcc_hi, vcc_hi, -1
s_cmp_eq_u32 vcc_hi, 0
s_cselect_b32 s{S_T0}, 0, {hex(OOB)}
s_mov_b32 vcc_hi, 0
v_add_u32 v{gTx}, s{S_T0}, v{gTo}""",
             f"v_add_u32 v{gOx}, s{G_PEND}, v{gOut}\nv_add_u32 v{gFx}, s{G_PF}, v{gFo}"]
        parts=epi_parts(1-b,1)
        for ks in range(KS):
            if ks+D<KS:
                if (ks+D)%16==0:
                    q=(ks+D)//16
                    if q==1: gst(e,1)
                    e(f"s_waitcnt vmcnt({younger(f'd{min(4*q+3,Q-1)}',ks,True)})\ns_barrier")
                    if q==1: gst(e,2)
                rd(b,ks+D)
            else:
                if ks+D==KS:
                    gst(e,3)
                    e(f"s_cbranch_vccnz {tail[b]}\ns_waitcnt vmcnt({younger('d3',ks,False)})\ns_barrier"); gst(e,4)
                rd(1-b,ks+D-KS)
            e(f"s_waitcnt lgkmcnt({D})")
            mf(b,ks)
            if ks<4: e(pre[ks])
            if ks>=p0:
                for x in parts[2*(ks-p0):2*(ks-p0)+2]: e(x)
            for k,n in ops:
                if k!=ks: continue
                if n[0]=="d": dma(1-b,int(n[1:]),gIx)
                elif n[0]=="s":
                    if n=="s0": saddr(1)
                    store(1-b,int(n[1:]),gOx)
                elif n=="tl": tl_put(e,False)
                elif n=="fl":
                    if FT&1:
                        faddr(S_T1, G_NS, 0); e(f"s_cmp_eq_u32 vcc_lo, 0\ns_cselect_b32 s{S_T0}, {fi_mul}, 0\ns_add_u32 s{S_T1}, s{S_T1}, s{S_T0}")
                    else: faddr(S_T1, G_NS, 1)
                    fload(S_T1)
                elif n=="to": e(f"s_add_u32 s{S_T0}, s{G_IN}, {1<<in_sh}\nbuffer_load_dword v{gTd}, v{gTx}, {WS}, s{S_T0} offen sc1")
                elif n=="fo":
                    e(f"s_waitcnt vmcnt({names.index('fo')-names.index(f's{NST-1}')-1})"); fo(1,gFx)
        e(f"s_mov_b32 s{G_PEND}, 0\ns_mov_b32 s{G_PF}, 0\ns_waitcnt vmcnt({younger('fl',0,True)})")
        if GP[0] and not OPT.get('gl'):
            e("s_waitcnt lgkmcnt(0)")
            for i in range(4): e(f"s_sub_u32 s{S_T0}, s{84+2*i}, s{82+2*i}\ns_add_u32 s{94+i}, s{94+i}, s{S_T0}")
            e(f"s_add_u32 s98, s98, 1\ns_sub_u32 s{S_T0}, s82, s99\ns_mov_b32 s99, s90\ns_cmp_lt_u32 s{S_T0}, 20000\ns_cselect_b32 s{S_T0}, s{S_T0}, 0\ns_add_u32 s93, s93, s{S_T0}")
        if b==1: e(f"s_branch {loop[0]}")
    for b in range(2):
        e(f"{tail[b]}:")
        fe=f"v_and_b32 v{gF}, v{gF}, v{gF+1}\nv_and_b32 v{gF+2}, v{gF+2}, v{gF+3}\nv_and_b32 v{gF}, v{gF}, v{gF+2}\nv_cmp_ne_u32 vcc, 1, v{gF}"
        def drain():
            for ks in range(KS-D,KS):
                e(f"s_waitcnt lgkmcnt({KS-1-ks})"); mf(b,ks)
        if FT>=3:
            nl=e.lab("nl"); go=e.lab("go"); i7=names.index("d7"); X=max(0,len([n for n in names[i7:] if n[0]!="d"])-NST)
            assert all(n[0]!="s" for n in names[i7:])
            okc=f"s_cmp_lt_u32 s{G_NS}, s{G_END}\ns_cselect_b32 vcc_lo, vcc_lo, -1\ns_cmp_eq_u32 vcc_lo, 0"
            if FT&1: e(f"s_waitcnt vmcnt({younger('fl',KS-D,False)})\n{fe}\n{okc}\ns_cbranch_scc0 {nl}"); drain(); e(f"s_branch {go}\n{nl}:")
            faddr(S_T1, G_NS, 0); fload(S_T1); drain()
            nm=e.lab("nm")
            if FT==3: e(f"s_branch {nm}")
            else: e(f"s_cmp_lt_u32 s{G_NS}, s{G_END}\ns_cbranch_scc0 {nm}\ns_waitcnt vmcnt(0)\n{fe}\ns_cmp_eq_u32 vcc_lo, 0\ns_cbranch_scc0 {nm}")
            e(f"{go}:")
            faddr(S_T1, G_NS, 1); fload(S_T1)
            for i in range(Q): dma(1-b,i,gIn)
            for x in epi_parts(b,0): e(x)
            saddr(0)
            for g in range(NST): store(b,g,gOut)
            for i in range(X): e(f"buffer_load_dword v{gTd}, v{gOob}, {WS}, 0 offen")
            e(f"s_mov_b32 s{G_PEND}, {hex(OOB)}\ns_mov_b32 s{G_PF}, 0\ns_waitcnt vmcnt({Q-4+NST+X})\ns_barrier")
            for ks in range(D): rd(1-b,ks)
            e(f"s_branch {loop[1-b]}\n{nm}:\ns_nop 7\ns_nop {1 if M16 else 7}")
        else:
            if FT==2: faddr(S_T1, G_NS, 0); fload(S_T1)
            drain()
        fe=f"v_and_b32 v{gF}, v{gF}, v{gF+1}\nv_and_b32 v{gF+2}, v{gF+2}, v{gF+3}\nv_and_b32 v{gF}, v{gF}, v{gF+2}\nv_cmp_ne_u32 vcc, 1, v{gF}"
        fs=e.lab("fs"); fq=e.lab("fq")
        if FT==1: e(f"s_waitcnt vmcnt({younger('fl',KS-D,False)})\n{fe}")
        for x in epi_parts(b,0): e(x)
        saddr(0)
        for g in range(NST): store(b,g,gOut)
        if FT:
            e(f"v_mov_b32 v{gFx}, v{gFo}\ns_cmp_lt_u32 s{G_NS}, s{G_END}\ns_cbranch_scc0 {loop[0]}_y")
            if FT==1: faddr(S_T1, G_NS, 0)
            else: e(f"s_waitcnt vmcnt({NST})\n{fe}")
            e(f"s_cmp_eq_u32 vcc_lo, 0\ns_cbranch_scc1 {fs}")
            fload(S_T1); e("s_waitcnt vmcnt(1)"); fo(0)
            e(f"s_waitcnt vmcnt(1)\n{fe}\ns_cmp_eq_u32 vcc_lo, 0\ns_cbranch_scc1 {fq}\n{fetch[1-b]}:")
            faddr(S_T1, G_NS, 0); poll4(e, gF, gFl, S_T1, abort, True)
            e(f"{fq}:\nv_mov_b32 v{gFx}, v{gOob}\n{fs}:")
        else:
            e("s_waitcnt vmcnt(0)")
            fo(0)
            e(f"s_cmp_lt_u32 s{G_NS}, s{G_END}\ns_cbranch_scc0 {loop[0]}_x\n{fetch[1-b]}:")
            faddr(S_T1, G_NS, 0); poll4(e, gF, gFl, S_T1, abort, True)
        e(f"s_lshl_b32 s{G_IN}, s{G_NS}, {in_sh}\ns_add_u32 s{G_IN}, s{G_IN}, s{G_INB}\ns_add_u32 s{S_T1}, s{S_T1}, {fi_mul}")
        fload(S_T1); n3=0; i7=names.index("d7")
        for j,n in enumerate(names):
            if n[0]=="d": dma(1-b,int(n[1:]),gIn)
            elif FT and n=="fo": continue
            elif j>i7: e(f"buffer_load_dword v{gTd}, v{gOob}, {WS}, 0 offen")
            else: continue
            n3 = 0 if n=="d3" else n3+1
        assert names.index("fl")>i7
        e(f"s_mov_b32 s{G_PEND}, {hex(OOB)}\ns_mov_b32 s{G_PF}, {hex(OOB)}\ns_waitcnt vmcnt({n3})")
        if FT: assert names.index("fo")>i7; fo(0,gFx)
        e("s_barrier")
        for ks in range(D): rd(1-b,ks)
        e(f"s_branch {loop[1-b]}")
    if FT: e(f"{loop[0]}_y:\ns_waitcnt vmcnt(0)"); fo(0)
    e(f"{loop[0]}_x:")
    if GP[0]:
        if OPT.get('gl'): e("s_memtime s[86:87]\ns_memrealtime s[88:89]\ns_waitcnt lgkmcnt(0)\ns_sub_u32 s93, s86, s82\ns_sub_u32 s94, s88, s84\ns_mov_b32 s98, 1")
        for i in range(93,99): e(f"s_mov_b32 s4, s{i}"); tl_put(e,False)
    e(f"""s_barrier
s_branch {done}""")
```

```python
from layout import *
from chain import *
from gemm import *
L_MISC=131072
L_TK=L_MISC; L_MOD=L_MISC+64; L_ST=L_MISC+1024
LOG2E="0x3fb8aa3b"
def rnd(e, a, t):
    e(f"v_cvt_pk_bf16_f32 v{t}, v{a}, v{a+1}\nv_lshlrev_b32 v{a}, 16, v{t}\nv_and_b32 v{a+1}, 0xffff0000, v{t}")
def unpack(e, d, s, n):
    for i in range(n): e(f"v_lshlrev_b32 v{d+2*i}, 16, v{s+i}\nv_and_b32 v{d+2*i+1}, 0xffff0000, v{s+i}")
def pk(op, d, a, b): return f"v_pk_{op}_f32 v[{d}:{d+1}], v[{a}:{a+1}], v[{b}:{b+1}]"
def wred(e, regs, t):
    for r in regs: e(f"v_add_f32_dpp v{r}, v{r}, v{r} row_ror:4 row_mask:0xf bank_mask:0xf")
    for r in regs: e(f"v_add_f32_dpp v{r}, v{r}, v{r} row_ror:8 row_mask:0xf bank_mask:0xf")
    for sw in ("16","32"):
        for i,r in enumerate(regs): e(f"v_mov_b32 v{t+i}, v{r}")
        for i,r in enumerate(regs): e(f"v_permlane{sw}_swap_b32 v{t+i}, v{r}")
        for i,r in enumerate(regs): e(f"v_add_f32 v{r}, v{r}, v{t+i}")
def ln_norm(e, Xs, T, vW, vR, offs):
    n=len(Xs)
    for g,X in enumerate(Xs):
        t=T+28*g
        for i in range(0,8,2): e(pk("add",t+i,X+i,X+8+i))
        e(pk("add",t,t,t+4)); e(pk("add",t+2,t+2,t+6)); e(pk("add",t,t,t+2))
        e(f"v_add_f32 v{t+16}, v{t}, v{t+1}")
    for g in range(n): wred(e,[T+28*g+16],T+28*g+18)
    for g,X in enumerate(Xs):
        t=T+28*g
        e(f"v_mul_f32 v{t+16}, 0x3b800000, v{t+16}\nv_mov_b32 v{t+17}, v{t+16}")
        for i in range(0,16,2): e(f"v_pk_add_f32 v[{t+i}:{t+i+1}], v[{X+i}:{X+i+1}], v[{t+16}:{t+17}] neg_lo:[0,1] neg_hi:[0,1]")
        e(pk("mul",t,t,t))
        for i in range(2,16,2): e(f"v_pk_fma_f32 v[{t}:{t+1}], v[{t+i}:{t+i+1}], v[{t+i}:{t+i+1}], v[{t}:{t+1}]")
        e(f"v_add_f32 v{t+17}, v{t}, v{t+1}")
    for g in range(n): wred(e,[T+28*g+17],T+28*g+18)
    e("s_mov_b64 exec, 15")
    for g in range(n): e(f"ds_write_b64 v{vW}, v[{T+28*g+16}:{T+28*g+17}] offset:{offs[g]}")
    e("s_mov_b64 exec, -1\ns_waitcnt lgkmcnt(0)\ns_barrier")
    for g in range(n):
        t=T+28*g
        e(f"ds_read_b128 v[{t}:{t+3}], v{vR} offset:{offs[g]}\nds_read_b128 v[{t+4}:{t+7}], v{vR} offset:{offs[g]+16}")
    e("s_waitcnt lgkmcnt(0)")
    for g,X in enumerate(Xs):
        t=T+28*g
        e(pk("add",t+8,t,t+2)); e(pk("add",t+10,t+4,t+6)); e(pk("add",t+8,t+8,t+10))
        e(f"v_mul_f32 v{t+8}, 0x3e800000, v{t+8}")
        for k in range(4): e(f"v_sub_f32 v{t+2*k}, v{t+2*k}, v{t+8}")
        e(f"""v_mul_f32 v{t}, v{t}, v{t}
v_fmac_f32 v{t}, v{t+2}, v{t+2}
v_fmac_f32 v{t}, v{t+4}, v{t+4}
v_fmac_f32 v{t}, v{t+6}, v{t+6}
v_mul_f32 v{t+9}, 0x3a800000, v{t+9}
v_fmac_f32 v{t+9}, 0x3e800000, v{t}""")
        rnd(e,t+8,t+10)
        e(f"""v_add_f32 v{t+9}, 0x3727c5ac, v{t+9}
v_cvt_pk_bf16_f32 v{t+9}, v{t+9}, v{t+9}
v_and_b32 v{t+9}, 0xffff0000, v{t+9}
v_sqrt_f32 v{t+9}, v{t+9}
v_cvt_pk_bf16_f32 v{t+9}, v{t+9}, v{t+9}
v_and_b32 v{t+9}, 0xffff0000, v{t+9}
v_rcp_f32 v{t+10}, v{t+9}
v_mov_b32 v{t+9}, v{t+8}
v_mov_b32 v{t+11}, v{t+10}""")
        for i in range(0,16,2): e(f"v_pk_add_f32 v[{X+i}:{X+i+1}], v[{X+i}:{X+i+1}], v[{t+8}:{t+9}] neg_lo:[0,1] neg_hi:[0,1]")
        for i in range(0,16,2): rnd(e,X+i,t+12+(i//2)%4)
        for i in range(0,16,2): e(pk("mul",X+i,X+i,t+10))
def modulate(e, X, OPC, SH, P, t):
    for i in range(0,16,2): rnd(e,X+i,t+(i//2)%4)
    for i in range(0,16,2): e(pk("mul",X+i,X+i,OPC+i))
    for i in range(0,16,2): rnd(e,X+i,t+(i//2)%4)
    for i in range(0,16,2): e(pk("add",X+i,X+i,SH+i))
    for i in range(8): e(f"v_cvt_pk_bf16_f32 v{P+i}, v{X+2*i}, v{X+2*i+1}")
def modload(e, d, vM, chunk):
    e(f"s_mov_b32 s{S_T0}, {MOD+chunk*4096}")
    for i in range(4): e(f"buffer_load_dwordx4 v[{d+4*i}:{d+4*i+3}], v{vM}, {WS}, s{S_T0} offen offset:{i*256} sc1")
def oneplus(e, d, t):
    for i in range(16): e(f"v_add_f32 v{d+i}, 1.0, v{d+i}")
    for i in range(0,16,2): rnd(e,d+i,t+(i//2)%4)
def red_lanes(e, vM, vH, vX, vW, vR, t):
    e(f"""v_lshrrev_b32 v{t}, 2, v0
v_and_b32 v{t+1}, 3, v0
s_lshl_b32 s{S_T0}, s{S_W}, 10
v_lshl_add_u32 v{vM}, v{t}, 4, s{S_T0}
s_lshl_b32 s{S_T0}, s{S_W}, 14
v_lshl_add_u32 v{vH}, v{t}, 10, s{S_T0}
v_lshl_add_u32 v{vH}, v{t+1}, 4, v{vH}
s_lshl_b32 s{S_T0}, s{S_W}, 9
v_lshl_add_u32 v{vX}, v{t}, 3, s{S_T0}
v_lshl_add_u32 v{vX}, v{t+1}, 11, v{vX}
v_lshlrev_b32 v{vR}, 5, v{t+1}
v_add_u32 v{vR}, {L_ST}, v{vR}
s_lshl_b32 s{S_T0}, s{S_W}, 3
v_add_u32 v{vW}, s{S_T0}, v{vR}""")
SB=f"s[{SRD_B}:{SRD_B+3}]"
S_TG=101; pW=176; pC=44; pAcc=60; pT=68; pX=96; pN=240; pM=228; pH=229
def pro_loads(e):
    srd(e, SRD_A, P_WMOD, 1024*12288); srd(e, SRD_B, P_C, 2048)
    e(f"""v_lshrrev_b32 v{pT}, 2, v0
v_and_b32 v{pT+1}, 3, v0
s_lshl_b32 s{S_T0}, s{S_W}, 9
v_lshl_add_u32 v{pT+2}, v{pT}, 1, s{S_T0}""")
    for i in range(16): e(f"buffer_load_ushort v{pC+i}, v{pT+2}, {SB}, 0 offen offset:{i*32}")
    e(f"""s_mul_i32 s{S_T0}, s{S_W}, {256*12288}
s_cmp_lt_u32 s2, 192
s_cselect_b32 s{S_T0}, s{S_T0}, {hex(OOB)}
v_mul_u32_u24 v{pT+3}, 12288, v{pT}
v_lshl_add_u32 v{pT+3}, v{pT+1}, 4, v{pT+3}
v_add_u32 v{pT+3}, s{S_T0}, v{pT+3}
s_lshl_b32 s{S_T0}, s2, 6""")
    for i in range(16):
        e(f"buffer_load_dwordx4 v[{pW+4*i}:{pW+4*i+3}], v{pT+3}, {SA}, s{S_T0} offen")
        if i<15: e(f"s_add_u32 s{S_T0}, s{S_T0}, {16*12288}")
    srd(e, SRD_B, P_X, 2048*2048)
    red_lanes(e, pT+4, pT+5, pT+6, pT+7, pT+8, pT)
    if OPT.get('tm',1): e(f"""s_lshr_b32 s{S_T0}, s2, 3
s_xor_b32 s{S_T0}, s{S_T0}, {OPT.get('tx',16)}
s_lshl_b32 s{S_T0}, s{S_T0}, 2
s_and_b32 s{S_T1}, s2, 3
s_or_b32 s{S_T0}, s{S_T0}, s{S_T1}
s_andn2_b32 s{S_T1}, 4, s2
s_lshl_b32 s{S_T1}, s{S_T1}, 5
s_or_b32 s{S_TG}, s{S_T0}, s{S_T1}""")
    else: e(f"s_mov_b32 s{S_TG}, s2")
    e(f"s_lshl_b32 s{S_T0}, s{S_TG}, 14\ns_add_u32 s{S_T1}, s{S_T0}, 8192")
    for g in range(2):
        for i in range(4): e(f"buffer_load_dwordx2 v[{pN+8*g+2*i}:{pN+8*g+2*i+1}], v{pT+6}, {SB}, s{S_T0+g} offen offset:{i*128}")
def pro_mod(e,X=0):
    l=e.lab("nomod"); l2=e.lab("nm2")
    e(f"s_cmp_ge_u32 s2, 192\ns_cbranch_scc1 {l}\ns_waitcnt vmcnt({24+X})")
    t=pX
    for i in range(16): e(f"v_lshlrev_b32 v{pC+i}, 16, v{pC+i}\nv_mul_f32 v{t+i}, 0xbfb8aa3b, v{pC+i}")
    for i in range(16): e(f"v_exp_f32 v{t+i}, v{t+i}")
    for i in range(16): e(f"v_add_f32 v{t+i}, 1.0, v{t+i}")
    for i in range(16): e(f"v_rcp_f32 v{t+i}, v{t+i}")
    for i in range(16): e(f"v_mul_f32 v{pC+i}, v{pC+i}, v{t+i}")
    for i in range(0,16,2): rnd(e,pC+i,t+i)
    for i in range(16):
        e(f"s_waitcnt vmcnt({23-i+X})")
        unpack(e,t+8*(i%2),pW+4*i,4)
        for j in range(8):
            if i==0: e(f"v_mul_f32 v{pAcc+j}, v{t+j}, v{pC}")
            else: e(f"v_fmac_f32 v{pAcc+j}, v{t+8*(i%2)+j}, v{pC+i}")
    wred(e,[pAcc+j for j in range(8)],t)
    e(f"""v_lshlrev_b32 v{t}, 5, v0
s_lshl_b32 s{S_T0}, s{S_W}, 7
s_add_u32 s{S_T0}, s{S_T0}, {L_MOD}
v_add_u32 v{t}, s{S_T0}, v{t}
s_mov_b64 exec, 15
ds_write_b128 v{t}, v[{pAcc}:{pAcc+3}]
ds_write_b128 v{t}, v[{pAcc+4}:{pAcc+7}] offset:16
s_mov_b64 exec, -1
s_waitcnt lgkmcnt(0)
s_barrier
s_cmp_lg_u32 s{S_W}, 0
s_cbranch_scc1 {l}
v_and_b32 v{t+1}, 31, v0
v_lshlrev_b32 v{t+1}, 2, v{t+1}
v_add_u32 v{t}, {L_MOD}, v{t+1}""")
    for w in range(4): e(f"ds_read_b32 v{t+2+w}, v{t} offset:{w*128}")
    e(f"""s_lshl_b32 s{S_T0}, s2, 7
s_add_u32 s{S_T0}, s{S_T0}, {MOD}
s_waitcnt lgkmcnt(0)
v_add_f32 v{t+2}, v{t+2}, v{t+3}
v_add_f32 v{t+4}, v{t+4}, v{t+5}
v_add_f32 v{t+2}, v{t+2}, v{t+4}
v_cvt_pk_bf16_f32 v{t+2}, v{t+2}, v{t+2}
v_and_b32 v{t+2}, 0xffff0000, v{t+2}
buffer_store_dword v{t+2}, v{t+1}, {WS}, s{S_T0} offen sc1
{l}:""")
def pro_ln(e,X=0):
    e(f"s_waitcnt vmcnt({X})\nv_mov_b32 v{pM}, v{pT+4}\nv_mov_b32 v{pH}, v{pT+5}")
    unpack(e,pX,pN,16)
    ln_norm(e,[pX,pX+16],pW-8,pT+7,pT+8,[0,128])
    for i in range(16): e(f"v_cvt_pk_bf16_f32 v{pN+i}, v{pX+2*i}, v{pX+2*i+1}")
def pro_fin(e):
    O=172; Sh=188; X=204; t=220
    modload(e,O,pM,1); modload(e,Sh,pM,0)
    e(f"""s_lshr_b32 s{S_T1}, s{S_TG}, 2
s_lshl_b32 s{S_T1}, s{S_T1}, 16
s_and_b32 s{S_T2}, s{S_TG}, 3
s_lshl_b32 s{S_T2}, s{S_T2}, 7
s_add_u32 s{S_T1}, s{S_T1}, s{S_T2}
s_add_u32 s{S_T1}, s{S_T1}, {H1}
s_waitcnt vmcnt(4)""")
    oneplus(e,O,t)
    e("s_waitcnt vmcnt(0)")
    for g in range(2):
        unpack(e,X,pN+8*g,8)
        for i in range(0,16,2): e(pk("mul",X+i,X+i,O+i))
        for i in range(0,16,2): rnd(e,X+i,t+(i//2)%4)
        for i in range(0,16,2): e(pk("add",X+i,X+i,Sh+i))
        for i in range(8): e(f"v_cvt_pk_bf16_f32 v{pN+8*g+i}, v{X+2*i}, v{X+2*i+1}")
        for ab in range(2): e(f"buffer_store_dwordx4 v[{pN+8*g+4*ab}:{pN+8*g+4*ab+3}], v{pH}, {WS}, s{S_T1} offen offset:{ab*512+g*64} sc1")
    e(f"""s_lshl_b32 s{S_T1}, s{S_TG}, 4
s_lshl_b32 s{S_T2}, s{S_W}, 2
s_add_u32 s{S_T1}, s{S_T1}, s{S_T2}
s_add_u32 s{S_T1}, s{S_T1}, {F_H1}
v_mov_b32 v{t+1}, 0""")
    lane0(e,t,t+1)
    e(f"v_mov_b32 v{t+1}, 1\ns_waitcnt vmcnt(0)\nbuffer_store_dword v{t+1}, v{t}, {WS}, s{S_T1} offen sc1")
R_TG=66; R_P=67; R_A=68; R_B=69; R_FP=74
def feval(e,F):
    e(f"v_and_b32 v{F}, v{F}, v{F+1}\nv_and_b32 v{F+2}, v{F+2}, v{F+3}\nv_and_b32 v{F}, v{F}, v{F+2}\nv_cmp_ne_u32 vcc, 1, v{F}")
R_S=[84,85]; R_T=[R_TG,86]; R_M=87; R_END=88
def red(e, first, abort, done):
    STEP=1; vFo2=11; R0=OPT.get('r0',40); assert R0%4==0
    vM=1;vH=2;vX=3;vW=4;vR=5;vP=6;vFl=7;vFo=8;vOne=9;vQ=10;t=12;F=16
    G=20; O=36; Sh=52; PS=[68,132]; XS=[196,204]; X=212; T=228; PK=228; PX=248; R=228
    FP=F_P1 if first else F_P2; NL=20 if first else 18; NS=4+(1 if TL[0] else 0)
    R_LO=82; R_HI=83
    red_lanes(e,vM,vH,vX,vW,vR,t)
    e(f"""s_lshl_b32 s{S_T0}, s{S_W}, 12
v_lshl_add_u32 v{vP}, v0, 4, s{S_T0}
s_lshl_b32 s{S_T0}, s{S_W}, 11
v_lshl_add_u32 v{vQ}, v0, 4, s{S_T0}
v_and_b32 v{vFl}, 31, v0
v_lshlrev_b32 v{vFl}, 4, v{vFl}
v_lshrrev_b32 v{t}, 5, v0
v_lshlrev_b32 v{t}, 9, v{t}
s_sub_u32 s{S_T0}, s{R_S[1]}, s{R_S[0]}
s_sub_u32 s{S_T1}, s{R_M}, s{S_T0}
{'' if first else f's_mov_b32 s{S_T0}, {16-R0//4}{chr(10)}s_mov_b32 s{S_T1}, {16-R0//4}'}
v_mad_u32_u24 v{vFo2}, v{t}, s{S_T1}, v{vFl}
v_mad_u32_u24 v{vFl}, v{t}, s{S_T0}, v{vFl}
s_lshl_b32 s{S_T0}, s{S_W}, 2
v_mov_b32 v{vOne}, s{S_T0}""")
    vFP=[vFl,vFo2]
    def seg(d,n,add,p):
        if add: e(f"s_{'add' if add>0 else 'sub'}_u32 s{d}, s{n}, {abs(add)}\ns_lshr_b32 s{d}, s{d}, 1")
        else: e(f"s_lshr_b32 s{d}, s{n}, 1")
        e(f"s_mul_i32 s{d}, s{d}, s{R_M}\ns_add_u32 s{d}, s{d}, s{R_S[p&1]}")
    lane0(e,vFo,vOne); e(f"v_mov_b32 v{vOne}, 1")
    if first:
        modload(e,G,vM,2); modload(e,O,vM,4); modload(e,Sh,vM,3)
        srd(e, SRD_B, P_X, 2048*2048)
        e("s_waitcnt vmcnt(0)"); oneplus(e,O,t)
    else:
        modload(e,G,vM,5); srd(e, SRD_B, P_OUT, 2048*2048)
    e(f"s_lshl_b32 s{R_T[0]}, s{R_T[0]}, 13\ns_lshl_b32 s{R_T[1]}, s{R_T[1]}, 13\ns_mov_b32 s{G_SEG}, 0\ns_mov_b32 s{G_NS}, 0")
    def loads(k):
        P=PS[k]; XR=XS[k]
        seg(S_T2,G_NS,0,k)
        e(f"""s_lshl_b32 s{S_T2}, s{S_T2}, 16
s_add_u32 s{S_T2}, s{S_T2}, s{R_T[k]}
s_lshl_b32 s{R_P}, s{S_T2}, 3
s_add_u32 s{R_P}, s{R_P}, {P1 if first else P2}""")
        for kc in range(4):
            for i in range(4): e(f"buffer_load_dwordx4 v[{P+16*kc+4*i}:{P+16*kc+4*i+3}], v{vP}, {WS}, s{R_P} offen offset:{i*1024} sc1")
            if kc<3: e(f"s_add_u32 s{R_P}, s{R_P}, 16384")
        if first:
            for i in range(4): e(f"buffer_load_dwordx2 v[{XR+2*i}:{XR+2*i+1}], v{vX}, {SB}, s{S_T2} offen offset:{i*128}")
        else:
            e(f"s_add_u32 s{S_T2}, s{S_T2}, {X1}")
            for ab in range(2): e(f"buffer_load_dwordx4 v[{XR+4*ab}:{XR+4*ab+3}], v{vQ}, {WS}, s{S_T2} offen offset:{ab*1024} sc1")
        e(f"s_add_u32 s{G_NS}, s{G_NS}, {STEP}")
    def fl(n,add,p):
        seg(S_T1,n,add,p)
        if not first and R0: e(f"s_mul_i32 s{S_T1}, s{S_T1}, {64-R0}\ns_lshr_b32 s{S_T1}, s{S_T1}, 6\ns_add_u32 s{S_T1}, s{S_T1}, {R0}")
        e(f"s_lshl_b32 s{S_T1}, s{S_T1}, 9\ns_add_u32 s{S_T1}, s{S_T1}, {FP}\nbuffer_load_dwordx4 v[{F}:{F+3}], v{vFP[p&1]}, {WS}, s{S_T1} offen sc1")
    def flag(back,p):
        seg(S_T0,G_SEG,-back,p); e(f"s_lshl_b32 s{S_T0}, s{S_T0}, 7\ns_lshr_b32 s{S_T3}, s{R_T[p&1]}, 9\ns_add_u32 s{S_T0}, s{S_T0}, s{S_T3}\ns_add_u32 s{S_T0}, s{S_T0}, {F_H2}\nbuffer_store_dword v{vOne}, v{vFo}, {WS}, s{S_T0} offen sc1")
    top=[e.lab("rt"),e.lab("rt")]; fet=[e.lab("rf"),e.lab("rf")]
    for k in range(2):
        P=PS[k]; XR=XS[k]
        ok=e.lab("rk")
        e(f"{fet[k]}:"); fl(G_NS,0,k); e("s_waitcnt vmcnt(0)"); feval(e,F)
        e(f"""s_cmp_eq_u32 vcc_lo, 0
s_cbranch_scc1 {ok}
s_sub_u32 s{S_BUD}, s{S_BUD}, 1
s_cbranch_scc0 {fet[k]}
s_branch {abort}
{ok}:""")
        fl(G_NS,1,k+1); loads(k)
        e(f"s_mov_b32 s{G_PEND}, 0\ns_waitcnt vmcnt(0)\n{top[k]}:")
        feval(e,F)
        RM=OPT.get('rm',1)
        if first and not RM:
            l=e.lab("rp")
            e(f"s_cmp_eq_u32 s{G_PEND}, 2\ns_cbranch_scc0 {l}\ns_mov_b32 s{G_PEND}, 1"); flag(2,k); e(f"{l}:")
        e(f"s_mov_b32 s{R_FP}, s{G_NS}")
        e(f"s_mov_b64 s[{R_LO}:{R_HI}], vcc")
        for i in range(0,16,2): e(pk("add",P+i,P+i,P+16+i))
        for i in range(0,16,2): e(pk("add",P+32+i,P+32+i,P+48+i))
        for i in range(0,16,2): e(pk("add",R+i,P+i,P+32+i))
        unpack(e,X,XR,8)
        fl(G_SEG,2,k)
        la=e.lab("ra"); lb=e.lab("rb")
        seg(R_A,G_SEG,0,k)
        e(f"""s_lshl_b32 s{R_A}, s{R_A}, 16
s_add_u32 s{R_A}, s{R_A}, s{R_T[k]}
s_sub_u32 s{S_T0}, s{G_NS}, s{G_SEG}
s_cmp_eq_u32 s{S_T0}, {STEP}
s_cbranch_scc0 {la}
s_cmp_lt_u32 s{G_NS}, s{R_END}
s_cselect_b32 s{R_LO}, s{R_LO}, 1
s_cmp_eq_u32 s{R_LO}, 0
s_cbranch_scc0 {lb}""")
        loads(1-k)
        e(f"""{la}:
s_cmp_lt_u32 s{G_NS}, s{R_END}
s_cselect_b32 s{R_HI}, s{R_HI}, 1
s_cmp_eq_u32 s{R_HI}, 0
s_cbranch_scc0 {lb}""")
        loads(k); e(f"{lb}:")
        for i in range(0,16,2): rnd(e,R+i,t+(i//2)%4)
        for i in range(0,16,2): e(pk("mul",R+i,R+i,G+i))
        for i in range(0,16,2): rnd(e,R+i,t+(i//2)%4)
        for i in range(0,16,2): e(pk("add",X+i,X+i,R+i))
        for i in range(8): e(f"v_cvt_pk_bf16_f32 v{PX+i}, v{X+2*i}, v{X+2*i+1}")
        if first:
            e(f"s_add_u32 s{R_B}, s{R_A}, {X1}")
            for ab in range(2): e(f"buffer_store_dwordx4 v[{PX+4*ab}:{PX+4*ab+3}], v{vQ}, {WS}, s{R_B} offen offset:{ab*1024} sc1")
            unpack(e,X,PX,8)
            ln_norm(e,[X],T,vW,vR,[0])
            e(f"v_xor_b32 v{vW}, 128, v{vW}\nv_xor_b32 v{vR}, 128, v{vR}")
            modulate(e,X,O,Sh,PK,t)
            if RM:
                l=e.lab("rm"); l1=e.lab("rm"); l2=e.lab("rm")
                e(f"""s_cmp_eq_u32 s{G_PEND}, 0
s_cbranch_scc1 {l}
s_mov_b32 s{G_PEND}, 0
s_sub_u32 s{S_T0}, s{G_NS}, s{R_FP}
s_cmp_gt_u32 s{S_T0}, {STEP}
s_cbranch_scc1 {l2}
s_cmp_eq_u32 s{S_T0}, {STEP}
s_cbranch_scc1 {l1}
s_waitcnt vmcnt(3)
{l1}:
s_waitcnt vmcnt({3+NL})
{l2}:
s_waitcnt vmcnt({3+2*NL})"""); flag(1,k+1); e(f"{l}:")
            e(f"""s_and_b32 s{S_T1}, s{R_A}, 0xffff0000
s_lshr_b32 s{S_T0}, s{R_T[k]}, 7
s_add_u32 s{S_T1}, s{S_T1}, s{S_T0}
s_add_u32 s{S_T1}, s{S_T1}, {H2}""")
            for ab in range(2): e(f"buffer_store_dwordx4 v[{PK+4*ab}:{PK+4*ab+3}], v{vH}, {WS}, s{S_T1} offen offset:{ab*512} sc1")
        else:
            for i in range(4): e(f"buffer_store_dwordx2 v[{PX+2*i}:{PX+2*i+1}], v{vX}, {SB}, s{R_A} offen offset:{i*128}")
        tl(e)
        pb=e.lab("rb"); d3=e.lab("rd")
        e(f"""s_sub_u32 s{S_T0}, s{G_NS}, s{G_SEG}
s_add_u32 s{G_SEG}, s{G_SEG}, {STEP}
s_cmp_eq_u32 s{S_T0}, {STEP}
s_cbranch_scc1 {pb}
s_add_u32 s{G_PEND}, s{G_PEND}, 1
s_cmp_eq_u32 s{S_T0}, {3*STEP}
s_cbranch_scc1 {d3}
s_waitcnt vmcnt({NS})
s_branch {top[1-k]}
{d3}:
s_waitcnt vmcnt({NS+NL})
s_branch {top[1-k]}
{pb}:""")
        if first:
            l=e.lab("rq")
            e(f"s_waitcnt vmcnt(0)\ns_cmp_eq_u32 s{G_PEND}, 0\ns_cbranch_scc1 {l}"); flag(2,k+1); e(f"{l}:"); flag(1,k)
        e(f"s_cmp_lt_u32 s{G_SEG}, s{R_END}\ns_cbranch_scc0 {done}")
        if k==1: e(f"s_branch {fet[0]}")
A_H=65; A_SC=66; A_MK=68; A_FP=100; A_N1=16; A_N2=17; A_END=18
def att(e, abort, done):
    vA=1;vKM=2;vVM=3;vF1=4;vF2=5;vFo=6;vOne=7;t=8;F=16;Pb=20;m=30;F2=96
    KMr=128;VMr=160;S=168;SM=184;O=32
    e(f"""s_lshl_b32 s{S_T0}, s{A_H}, 13
v_lshl_add_u32 v{vA}, v0, 4, s{S_T0}
v_lshrrev_b32 v{t}, 5, v0
v_and_b32 v{t+1}, 7, v0
s_lshl_b32 s{S_T0}, s{A_H}, 11
v_lshl_add_u32 v{vKM}, v{t}, 7, s{S_T0}
v_lshl_add_u32 v{vKM}, v{t+1}, 4, v{vKM}
v_lshl_add_u32 v{vVM}, v0, 3, s{S_T0}
s_lshl_b32 s{S_T0}, s{A_H}, 4
v_mov_b32 v{vF2}, s{S_T0}
v_min_u32 v{vF1}, 2, v0
v_lshl_add_u32 v{vF1}, v{vF1}, 9, s{S_T0}
v_and_b32 v{t+1}, 31, v0
v_lshlrev_b32 v{t}, 2, v{t}
v_sub_u32 v{t}, v{t+1}, v{t}
s_and_b32 s{S_T0}, s{A_H}, 7
s_lshl_b32 s{S_T0}, s{S_T0}, 2
s_lshl_b32 s{S_T1}, s{G_X}, 11
s_add_u32 s{S_T0}, s{S_T0}, s{S_T1}
v_mov_b32 v{vOne}, s{S_T0}
s_mov_b32 s{S_STEP}, 0
s_mov_b32 s3, s{S_MODE}""")
    def oflag():
        l=e.lab("of"); e(f"s_cmp_eq_u32 s{S_STEP}, 0\ns_cbranch_scc1 {l}\ns_mov_b32 s{S_STEP}, 0")
        bymode(e,3,lambda sc: e(f"buffer_store_dword v{vOne}, v{vFo}, {WS}, s{A_FP} offen{sc}")); e(f"{l}:")
    lane0(e,vFo,vOne)
    e(f"v_mov_b32 v{vOne}, 1\ns_mov_b32 s{A_SC}, 0x3db504f3\ns_mov_b32 s{A_SC+1}, 0x3db504f3")
    for r in range(16): e(f"v_cmp_gt_i32 s[{A_MK+2*r}:{A_MK+2*r+1}], {8*(r//4)+r%4}, v{t}")
    AE=OPT.get('ae',16)
    def nxt(d,c): e(f"s_cmp_lt_u32 s{c}, {AE}\ns_cselect_b32 s{S_T0}, 4, 2\ns_add_u32 s{d}, s{c}, s{S_T0}")
    AD=OPT.get('ad',1); A_SL=S_TG
    def qkv(k,a,n,skip=False):
        e(f"s_cmp_lt_u32 s{a}, s{A_END}\ns_cselect_b32 s{S_T3}, s{a}, s{G_SEG}\ns_cselect_b32 s{S_T0}, 0, {hex(OOB) if OPT.get('ao',1) else 0}\n{f's_or_b32 s{S_T0}, s{S_T0}, s{A_SL}' if skip else ''}\nv_add_u32 v13, s{S_T0}, v{vA}\ns_lshl_b32 s{S_T3}, s{S_T3}, 18")
        for n_,base in enumerate((QB,KB,VB)):
            reg=96*k+32*n_
            for hf in range(2):
                e(f"s_add_u32 s{S_T0}, s{S_T3}, {base+hf*4096}")
                for j in range(4): e(f"buffer_load_dwordx4 a[{reg+16*hf+4*j}:{reg+16*hf+4*j+3}], v13, {WS}, s{S_T0} offen offset:{j*1024} sc1")
        e(f"""s_mul_i32 s{S_T0}, s{n}, 1536
s_add_u32 s{S_T0}, s{S_T0}, {F_KV}
buffer_load_dwordx4 v[{F}:{F+3}], v{vF1}, {WS}, s{S_T0} offen sc1
s_lshl_b32 s{S_T0}, s{a}, 9
s_add_u32 s{S_T0}, s{S_T0}, {F_KM}
buffer_load_dwordx4 v[{F2}:{F2+3}], v{vF2}, {WS}, s{S_T0} offen sc1""")
    e(f"s_mul_i32 s{S_T1}, s{G_SEG}, 1536\ns_add_u32 s{S_T1}, s{S_T1}, {F_KV}")
    nxt(A_N1,G_SEG); nxt(A_N2,A_N1)
    poll4(e,F,vF1,S_T1,abort); qkv(0,G_SEG,A_N1); e("s_waitcnt vmcnt(0)")
    def scale(b,n):
        for i in range(0,n,2): rnd(e,b+i,t+(i//2)%4)
        for i in range(0,n,2): e(f"v_pk_mul_f32 v[{b+i}:{b+i+1}], v[{b+i}:{b+i+1}], s[{A_SC}:{A_SC+1}]")
        for i in range(0,n,2): rnd(e,b+i,t+(i//2)%4)
    lp=e.lab("al"); e(f"{lp}:")
    for st in range(2):
        Q=96*st; K=Q+32; V=Q+64
        for k in range(8): e(f"v_mfma_f32_32x32x16_bf16 v[{S}:{S+15}], a[{K+4*k}:{K+4*k+3}], a[{Q+4*k}:{Q+4*k+3}], {'0' if k==0 else f'v[{S}:{S+15}]'}")
        l1=e.lab("a1"); l2=e.lab("a2")
        feval(e,F2)
        e(f"s_mov_b32 s{A_SL}, 0\ns_cbranch_vccz {l1}\ns_mov_b32 s{A_SL}, {hex(OOB) if AD else 0}\ns_waitcnt vmcnt(0)"); oflag()
        e(f"s_lshl_b32 s{S_T1}, s{G_SEG}, 9\ns_add_u32 s{S_T1}, s{S_T1}, {F_KM}")
        poll4(e,F2,vF2,S_T1,abort)
        e(f"{l1}:\ns_lshl_b32 s{S_T0}, s{G_SEG}, 16\ns_add_u32 s{S_T1}, s{S_T0}, {VM}\ns_add_u32 s{S_T0}, s{S_T0}, {KM}")
        for k in range(8): e(f"buffer_load_dwordx4 v[{KMr+4*k}:{KMr+4*k+3}], v{vKM}, {WS}, s{S_T0} offen offset:{k*256} sc1")
        for c in range(4): e(f"buffer_load_dwordx2 v[{VMr+2*c}:{VMr+2*c+1}], v{vVM}, {WS}, s{S_T1} offen offset:{c*512} sc1")
        feval(e,F)
        e(f"""s_cbranch_vccz {l2}
s_cmp_ge_u32 s{A_N1}, s{A_END}
s_cbranch_scc1 {l2}
s_mul_i32 s{S_T1}, s{A_N1}, 1536
s_add_u32 s{S_T1}, s{S_T1}, {F_KV}""")
        poll4(e,F,vF1,S_T1,abort)
        e(f"{l2}:"); qkv(1-st,A_N1,A_N2,AD)
        scale(S,16)
        e(f"v_mov_b32 v{m+1}, 0xce6e6b28")
        for r in range(16): e(f"v_cndmask_b32 v{S+r}, v{S+r}, v{m+1}, s[{A_MK+2*r}:{A_MK+2*r+1}]")
        e(f"v_max3_f32 v{m}, v{S}, v{S+1}, v{S+2}")
        for r in range(3,15,2): e(f"v_max3_f32 v{m}, v{m}, v{S+r}, v{S+r+1}")
        e(f"v_max_f32 v{m}, v{m}, v{S+15}")
        for k in range(8):
            e(f"s_waitcnt vmcnt({26+11-k})\nv_mfma_f32_32x32x16_bf16 v[{SM}:{SM+15}], v[{KMr+4*k}:{KMr+4*k+3}], a[{Q+4*k}:{Q+4*k+3}], {'0' if k==0 else f'v[{SM}:{SM+15}]'}")
        e("s_waitcnt vmcnt(26)"); oflag()
        scale(SM,4)
        e(f"""v_max3_f32 v{m}, v{m}, v{SM}, v{SM+1}
v_max3_f32 v{m}, v{m}, v{SM+2}, v{SM+3}
v_mov_b32 v{m+1}, v{m}
v_permlane32_swap_b32 v{m+1}, v{m}
v_max_f32 v{m}, v{m}, v{m+1}
v_mul_f32 v{m}, {LOG2E}, v{m}
s_mov_b32 s{S_T0}, {LOG2E}""")
        for r in range(20): e(f"v_fma_f32 v{S+r}, v{S+r}, s{S_T0}, -v{m}")
        for r in range(20): e(f"v_exp_f32 v{S+r}, v{S+r}")
        e(pk("add",t,S,S+2)); e(pk("add",t+2,S+4,S+6))
        for i in range(8,20,4): e(pk("add",t,t,S+i)); e(pk("add",t+2,t+2,S+i+2))
        e(pk("add",t,t,t+2))
        e(f"""v_add_f32 v{m}, v{t}, v{t+1}
v_mov_b32 v{m+1}, v{m}
v_permlane32_swap_b32 v{m+1}, v{m}
v_add_f32 v{m}, v{m}, v{m+1}
v_rcp_f32 v{m}, v{m}
v_mov_b32 v{m+1}, v{m}""")
        for i in range(0,20,2): e(pk("mul",S+i,S+i,m))
        for i in range(10): e(f"v_cvt_pk_bf16_f32 v{Pb+i}, v{S+2*i}, v{S+2*i+1}")
        for c in range(4): e(f"v_mfma_f32_32x32x8_bf16 v[{O+16*c}:{O+16*c+15}], v[{VMr+2*c}:{VMr+2*c+1}], v[{Pb+8}:{Pb+9}], 0")
        for ab in range(2):
            for c in range(4): e(f"v_mfma_f32_32x32x16_bf16 v[{O+16*c}:{O+16*c+15}], a[{V+8*c+4*ab}:{V+8*c+4*ab+3}], v[{Pb+4*ab}:{Pb+4*ab+3}], v[{O+16*c}:{O+16*c+15}]")
        e(f"s_lshl_b32 s{S_T0}, s{G_SEG}, 18\ns_add_u32 s{S_T0}, s{S_T0}, {OB}\ns_add_u32 s{S_T1}, s{S_T0}, 4096")
        for c in range(4):
            for i in range(8): e(f"v_cvt_pk_bf16_f32 v{KMr+8*c+i}, v{O+16*c+2*i}, v{O+16*c+2*i+1}")
        bymode(e,3,lambda sc: [e(f"buffer_store_dwordx4 v[{KMr+8*c+4*ab}:{KMr+8*c+4*ab+3}], v{vA}, {WS}, s{S_T0+c//2} offen offset:{(c%2)*2048+ab*1024}{sc}") for c in range(4) for ab in range(2)])
        e(f"s_lshl_b32 s{A_FP}, s{G_SEG}, 5\ns_add_u32 s{A_FP}, s{A_FP}, {F_O}\ns_mov_b32 s{S_STEP}, 1")
        tl(e)
        e(f"s_mov_b32 s{G_SEG}, s{A_N1}\ns_mov_b32 s{A_N1}, s{A_N2}"); nxt(A_N2,A_N1)
        e(f"s_waitcnt vmcnt({8+(1 if TL[0] else 0)})")
        if AD:
            assert OPT.get('ao',1); l3=e.lab("a3")
            e(f"s_cmp_eq_u32 s{A_SL}, 0\ns_cbranch_scc1 {l3}\ns_waitcnt vmcnt(0)"); oflag(); qkv(1-st,G_SEG,A_N1); e(f"s_waitcnt vmcnt(0)\n{l3}:")
    e(f"s_cmp_lt_u32 s{G_SEG}, s{A_END}\ns_cbranch_scc1 {lp}\ns_waitcnt vmcnt(0)"); oflag(); e(f"s_branch {done}")
```

```python
import sys
from asmlib import *
from common import *
from roles import *
import chain as CH
KW={a.split("=")[0]:int(a.split("=")[1]) for a in sys.argv[2:] if "=" in a}
SPLIT=KW.get("split",50); OPT.update(KW)
SK=KW.get("sk",SPLIT); SV=KW.get("sv",SPLIT); SQ=KW.get("sq",SPLIT); WQ=KW.get("wq",0) and SQ<64; NJ=3 if SQ<64 and not WQ else 2; R5=KW.get("r5",1)
prof = "prof" in sys.argv
out=sys.argv[1]
N=KNAME+"_kernel"
e=Asm()
CH.TL[0]="tl" in sys.argv
import gemm as GM; GM.GP[0]="gp" in sys.argv
header(e,N); entry(e,"EXIT"); tl_init(e); tl(e); ticket_issue(e); pro_loads(e); ticket_finish(e,L_TK,41)
T_KQ,T_V,T_WO,T_F1,T_F2,T_CH,T_NONE=range(7)
AW=KW.get("aw",32)
def arr2(vm):
    a=e.lab("am"); b=e.lab("an")
    e(f"s_cmp_eq_u32 s{S_MODE}, 0\ns_cbranch_scc0 {a}"); arrive(e,AW,230,vm); e(f"s_branch {b}\n{a}:"); arrive(e,40,230,vm); e(f"{b}:")
def dummy(n):
    for i in range(n): e(f"buffer_load_dword v30, v31, {WS}, 0 offen")
EH=KW.get("eh",0); EA=KW.get("ea",1); S_HD=R_M; S_EA=R_END
def first(h1,gem):
    def f(dma):
        l1,l2,l3,l4,l5=[e.lab("ea") for i in range(5)]
        e(f"s_cmp_eq_u32 s{S_EA}, 0\ns_cbranch_scc1 {l1}"); dma(0); e(f"s_branch {l2}\n{l1}:"); dummy(16); e(f"{l2}:")
        h1()
        e(f"s_cmp_eq_u32 s{S_EA}, 0\ns_cbranch_scc0 {l3}"); arr2(0); dma(0); dma(1); e(f"s_branch {l4}\n{l3}:"); dma(1)
        if gem: e(f"s_or_b32 s{S_T0}, s{G_JOB}, s{S_HD}\ns_cbranch_scc1 {l4}")
        arr2(16); e(f"{l4}:")
    return f
e(f"""ROLE0:
s_mov_b32 s{G_JOB}, 0
s_mov_b32 s{S_HD}, 0
s_mov_b32 s{S_EA}, 0
s_mov_b32 s{G_TYPE}, {T_NONE}
v_mov_b32 v31, {hex(OOB)}
s_cmp_lt_u32 s{S_RANK}, 32
s_cbranch_scc1 ROLE1
C0:""")
dummy(17)
e(f"""C1:
s_cmp_eq_u32 s{S_MODE}, 0
s_cbranch_scc0 C2""")
pro_mod(e,17); tl(e,226); pro_ln(e,16)
if CH.TL[0]: e(f"s_lshl_b32 s4, s{S_TEAM}, 8\ns_add_u32 s4, s4, s{S_RANK}"); tl_put(e,False,226)
e(f"""C2:
s_waitcnt vmcnt(16)
s_cmp_eq_u32 s{G_TYPE}, {T_CH}
s_cbranch_scc1 CH1
s_cmp_eq_u32 s{G_TYPE}, {T_NONE}
s_cbranch_scc0 WL1""")
arr2(0)
e(f"""s_branch HOOK
ROLE1:
s_sub_u32 s{G_X}, s{S_TEAM}, 4
s_cbranch_scc0 JOB0
s_mov_b32 s{G_TYPE}, {T_CH}
s_and_b32 s{S_T0}, s{S_RANK}, 14
s_cmp_eq_u32 s{S_T0}, 6
s_cselect_b32 s{S_EA}, {1 if EA else 0}, {KW.get('ec',0)}""")
chain_pre1(e)
load_weights(e,first(lambda: (e("s_branch C1\nCH1:"),chain_pre2(e,"sc1")),False))
e(f"""s_branch HOOK
JOB0:
s_and_b32 s{S_T0}, s{S_RANK}, {19 if EA==2 else 3}
s_cmp_eq_u32 s{S_T0}, 1
s_cselect_b32 s{S_EA}, {1 if EA>1 else 0}, 0
s_cmp_lt_u32 s{S_TG}, {EH}
s_cbranch_scc0 JOB
s_cmp_lt_u32 s{S_RANK}, 16
s_cbranch_scc1 JOB
s_mov_b32 s{S_HD}, 1
s_mov_b32 s{S_EA}, 1
s_branch C0""")
e(f"""NEXT:
s_add_u32 s{G_JOB}, s{G_JOB}, 1
s_mov_b32 s{S_EA}, 1
JOB:
s_lshr_b32 s{S_T0}, s{S_RANK}, 3
s_and_b32 s{S_T1}, s{S_RANK}, 7
s_cmp_eq_u32 s{S_T0}, 3
s_cselect_b32 s{S_T2}, s{G_JOB}, s{S_T0}
s_cmp_eq_u32 s{S_T2}, 1
s_cselect_b32 s{G_END}, {SV}, {SK}
s_cmp_eq_u32 s{S_T2}, 2
s_cselect_b32 s{G_END}, {SQ}, s{G_END}
s_mov_b32 s{G_SEG}, 0
s_cmp_eq_u32 s{S_T0}, 3
s_cbranch_scc0 JNT
s_cmp_eq_u32 s{G_JOB}, {NJ}
s_cbranch_scc1 JMISC
s_mov_b32 s{S_T0}, s{G_JOB}
s_mov_b32 s{G_SEG}, s{G_END}
s_mov_b32 s{G_END}, 64
s_branch JQKV
JNT:
s_cmp_eq_u32 s{G_JOB}, 0
s_cbranch_scc1 JQKV
s_lshl_b32 s{S_T2}, s{S_T0}, 2
s_add_u32 s{S_T2}, s{S_T2}, s{G_JOB}
s_cmp_eq_u32 s{S_T2}, {1 if WQ else 64}
s_cbranch_scc0 JB
s_mov_b32 s{S_T0}, 2
s_mov_b32 s{G_SEG}, {SQ}
s_mov_b32 s{G_END}, 64
JQKV:
s_lshl_b32 s{S_T2}, s{G_X}, 3
s_add_u32 s{S_T1}, s{S_T1}, s{S_T2}
s_lshl_b32 s{G_COL}, s{S_T1}, 8
s_lshl_b32 s{G_OUTB}, s{S_T1}, 13
s_lshl_b32 s{G_FOB}, s{S_T1}, 4
s_lshl_b32 s{S_T2}, s{S_W}, 2
s_add_u32 s{G_FOB}, s{G_FOB}, s{S_T2}
s_lshl_b32 s{S_T2}, s{S_T0}, 9
s_add_u32 s{G_FOB}, s{G_FOB}, s{S_T2}
s_add_u32 s{G_FOB}, s{G_FOB}, {F_KV}
s_mov_b32 s{G_INB}, {H1}
s_mov_b32 s{G_FIB}, {F_H1}
s_mov_b32 s{G_FN}, 3
s_mov_b32 s{G_TYPE}, {T_KQ}
s_cmp_eq_u32 s{S_T0}, 1
s_cbranch_scc1 JV
s_cmp_eq_u32 s{S_T0}, 2
s_cbranch_scc1 JQ
s_add_u32 s{G_OUTB}, s{G_OUTB}, {KB}""")
srd(e,SRD_A,P_WK,0x800000)
e(f"s_branch WLQ\nJV:\ns_add_u32 s{G_OUTB}, s{G_OUTB}, {VB}\ns_mov_b32 s{G_TYPE}, {T_V}")
srd(e,SRD_A,P_WV,0x800000)
e(f"s_branch WLQ\nJQ:\ns_add_u32 s{G_OUTB}, s{G_OUTB}, {QB}")
srd(e,SRD_A,P_WQ,0x800000)
e("WLQ:"); dummy(1)
wload(e,8192,'P',1024,first(lambda: e(f"s_or_b32 s{S_T0}, s{G_JOB}, s{S_HD}\ns_cbranch_scc0 C1\nWL1:"),True))
e(f"s_or_b32 s{S_T0}, s{G_JOB}, s{S_HD}\ns_cbranch_scc1 MAIN2\nHOOK:\ns_cmp_eq_u32 s{S_MODE}, 0\ns_cbranch_scc0 HOOK2")
tl(e,226)
wait_all(e,AW,230,"ABORT")
e(f"s_cmp_lg_u64 vcc, 0\ns_cselect_b32 s{S_MODE}, 1, 0")
pro_fin(e)
tl(e,226)
e(f"""s_cmp_eq_u32 s{S_MODE}, 0
s_cbranch_scc1 MAIN
s_lshr_b32 s{S_TEAM}, s2, 5
s_and_b32 s{S_RANK}, s2, 31
s_waitcnt vmcnt(0)
s_barrier
s_branch ROLE0
HOOK2:""")
wait_all(e,40,230,"ABORT")
e(f"""MAIN:
s_cmp_eq_u32 s{S_HD}, 1
s_cbranch_scc1 JOB
MAIN2:
s_cmp_eq_u32 s{G_TYPE}, {T_KQ}
s_cbranch_scc1 M_KQ
s_cmp_eq_u32 s{G_TYPE}, {T_V}
s_cbranch_scc1 M_V
s_cmp_eq_u32 s{G_TYPE}, {T_CH}
s_cbranch_scc0 ABORT
s_cmp_eq_u32 s{S_MODE}, 0
s_cbranch_scc0 M_CS""")
chain_main(e,"","ABORT","JR2",check_kv=True,prof=prof)
e("M_CS:")
chain_main(e,"sc1","ABORT","JR2",check_kv=True)
e("M_KQ:"); gemm_main(e,False,"B",64,16,64,18,1536,"ABORT","NEXT")
e("M_V:");  gemm_main(e,True,"B",64,16,64,18,1536,"ABORT","NEXT")
e(f"""JB:
s_mov_b32 s{G_TYPE}, {T_KQ}
s_mov_b32 s{G_END}, 64
s_lshl_b32 s{S_T2}, s{G_X}, 3
s_add_u32 s{S_T2}, s{S_T2}, s{S_T1}
s_lshl_b32 s{G_FOB}, s{S_T2}, 4
s_lshl_b32 s{S_T2}, s{S_W}, 2
s_add_u32 s{G_FOB}, s{G_FOB}, s{S_T2}
s_lshl_b32 s{G_INB}, s{G_X}, 16
s_lshl_b32 s{G_COL}, s{S_T1}, 8
s_lshl_b32 s{G_OUTB}, s{S_T1}, 11
s_lshl_b32 s{S_T2}, s{G_X}, 14
s_add_u32 s{G_OUTB}, s{G_OUTB}, s{S_T2}
s_cmp_eq_u32 s{S_T0}, 1
s_cbranch_scc1 JF1
s_cmp_eq_u32 s{S_T0}, 2
s_cbranch_scc1 JF2
s_add_u32 s{G_FOB}, s{G_FOB}, {F_P1}
s_add_u32 s{G_INB}, s{G_INB}, {OB}
s_add_u32 s{G_OUTB}, s{G_OUTB}, {P1}
s_lshl_b32 s{S_T2}, s{G_X}, 21
s_add_u32 s{G_COL}, s{G_COL}, s{S_T2}
s_lshl_b32 s{G_FIB}, s{G_X}, 11
s_add_u32 s{G_FIB}, s{G_FIB}, {F_O}
s_mov_b32 s{G_FN}, 1""")
srd(e,SRD_A,P_WO,0x800000); wload(e,2048,'Q',1024)
gemm_main(e,False,"P",64,18,32,19,512,"ABORT","DONE")
e(f"""JF2:
s_add_u32 s{G_FOB}, s{G_FOB}, {F_P2}
s_add_u32 s{G_INB}, s{G_INB}, {FB}
s_add_u32 s{G_OUTB}, s{G_OUTB}, {P2}
s_mul_i32 s{S_T2}, s{G_X}, {896*2048}
s_add_u32 s{G_COL}, s{G_COL}, s{S_T2}
s_lshl_b32 s{G_FIB}, s{G_X}, 7
s_add_u32 s{G_FIB}, s{G_FIB}, {F_F}
s_mov_b32 s{G_FN}, 6""")
srd(e,SRD_A,P_W2,3584*2048); wload(e,2048,'Q',896)
gemm_main(e,False,"P",56,18,512,19,512,"ABORT","DONE")
e(f"""JF1:
s_cmp_eq_u32 s{S_T1}, 7
s_cbranch_scc1 {'JRED5' if R5 else 'DONE'}
s_add_u32 s{G_FOB}, s{G_FOB}, {F_F}
s_lshl_b32 s{G_OUTB}, s{S_T1}, 13
s_add_u32 s{G_OUTB}, s{G_OUTB}, s{G_INB}
s_add_u32 s{G_OUTB}, s{G_OUTB}, {FB}
s_mov_b32 s{G_INB}, {H2}
s_mul_i32 s{S_T2}, s{G_X}, {7*256}
s_add_u32 s{G_COL}, s{G_COL}, s{S_T2}
s_mov_b32 s{G_FIB}, {F_H2}
s_mov_b32 s{G_FN}, 7""")
srd(e,SRD_A,P_W1,1024*7168); wload(e,7168,'P',1024)
gemm_main(e,False,"R",64,16,128,18,512,"ABORT","DONE")
e(f"""JRED1:
s_cmp_eq_u32 s{A_END}, 64
s_cbranch_scc1 DONE
s_barrier
s_sub_u32 s{G_X}, s{S_TEAM}, 4
s_and_b32 s{S_T1}, s{S_RANK}, 7
JRED1B:
s_lshl_b32 s{R_TG}, s{G_X}, 1
s_and_b32 s{S_T2}, s{S_T1}, 1
s_add_u32 s{R_TG}, s{R_TG}, s{S_T2}
s_mov_b32 s{R_T[1]}, s{R_TG}
s_bfe_u32 s{R_S[0]}, s{S_T1}, 0x10001
s_add_u32 s{R_S[1]}, s{R_S[0]}, 2
s_mov_b32 s{R_M}, {5 if R5 else 4}
s_mov_b32 s{R_END}, {26 if R5 else 32}
s_branch JRED1C
JRED5:
s_lshl_b32 s{R_TG}, s{G_X}, 1
s_add_u32 s{R_T[1]}, s{R_TG}, 1
s_mov_b32 s{R_S[0]}, 4
s_mov_b32 s{R_S[1]}, 4
s_mov_b32 s{R_M}, 5
s_mov_b32 s{R_END}, 24
JRED1C:""")
red(e,True,"ABORT","DONE")
e(f"""JR2:
s_and_b32 s{R_TG}, s{S_RANK}, 7
s_mov_b32 s{R_T[1]}, s{R_TG}
s_lshr_b32 s{R_S[0]}, s{S_RANK}, 3
s_lshl_b32 s{S_T0}, s{S_TEAM}, 2
s_add_u32 s{R_S[0]}, s{R_S[0]}, s{S_T0}
s_add_u32 s{R_S[1]}, s{R_S[0]}, 16
s_mov_b32 s{R_M}, 32
s_mov_b32 s{R_END}, 4""")
tl(e); red(e,False,"ABORT","DONE")
AE=OPT.get('ae',16)
e(f"""JMISC:
s_cmp_lt_u32 s{S_T1}, 4
s_cselect_b32 s{A_END}, 64, {AE}""")
if AE==0: e("s_cbranch_scc0 JRED1B")
e(f"""s_lshl_b32 s{S_T1}, s{S_T1}, 2
s_add_u32 s{S_T1}, s{S_T1}, s{S_W}
s_lshr_b32 s{G_SEG}, s{S_T1}, 3
s_and_b32 s{S_T1}, s{S_T1}, 7
s_lshl_b32 s{A_H}, s{G_X}, 3
s_add_u32 s{A_H}, s{A_H}, s{S_T1}""")
att(e,"ABORT","JRED1")
e("DONE:"); tl(e); e("s_waitcnt vmcnt(0)\ns_endpgm")
abort_code(e,"ABORT","EXIT")
ref=open("cdna_kernels/"+KNAME+".s.ref").read()
head=ref[:ref.index("; @launch")]
txt=head+"; @launch grid=(256,1,1) block=(256,1,1) lds=147456\n.amdgcn_target \"amdgcn-amd-amdhsa--gfx950\"\n"+e.finish()+kdesc(N)
open(out,"w").write(txt); print("nops",e.nops,"lines",txt.count("\n"),"bytes",len(txt))
```

```python
from layout import *
OPT=dict(sp=2,pf=30)
S_WG=2; S_XCC=3
SRD_WS=8
SRD_A=12
SRD_B=16
SRD_DBG=20
S_P=24
P_X,P_MEM0,P_WQ,P_WK,P_WV,P_WO,P_SEG,P_BX,P_W1,P_W2,P_C,P_WMOD,P_OUT,P_DBG,P_WS = [24+2*i for i in range(15)]
S_W=54; S_TEAM=55; S_RANK=56; S_BUD=57; S_STEP=58
S_T0=59; S_T1=60; S_T2=61; S_T3=62; S_T4=63
S_MEM=64; S_MEMN=65; S_SC=66; S_O=67; S_PART=68; S_KV=69; S_KM=70; S_FL=71; S_MODE=72
S_PR=74
L_X=0
L_WO=9216
L_V=18432
L_KV=24576
L_STAGE=0
def srd(e, d, p, size):
    e(f"s_mov_b32 s{d}, s{p}\ns_mov_b32 s{d+1}, s{p+1}\ns_mov_b32 s{d+2}, {hex(size)}\ns_mov_b32 s{d+3}, 0x00020000")
WS=f"s[{SRD_WS}:{SRD_WS+3}]"
vL=0; vT=1; vT2=2; vT3=3; vG=4; vIdx=5; vXw=6; vVw=7; vXr=8; vVr=9; vWr=10; vKr=11; vVk=12
vSCw=13; vSCw0=14; vSCr=15; vSCr0=16; vOw=17; vPw=18; vPr=19; vMw=20; vPois=21
vZ=22; vKMw=23
vP4=24
vA=28
vD=44
vX=172
vXb=76
vK=80
vVV=88
vS=96
vC=108
vVm=128
vVq=204
vPb=136
vO=144
vU=152
vZ4=168
def lane_setup(e):
    e(f"""v_and_b32 v{vT}, 15, v{vL}
v_lshrrev_b32 v{vT2}, 4, v{vL}
s_lshl_b32 s{S_T0}, s{S_TEAM}, 16
s_lshl_b32 s{S_T1}, s{S_W}, 12
s_add_u32 s{S_T1}, s{S_T1}, s{S_T0}
v_lshlrev_b32 v{vG}, 4, v{vL}
v_add_u32 v{vG}, s{S_T1}, v{vG}
v_mov_b32 v{vIdx}, 0x4444
v_mov_b32 v{vT3}, 0xeeee
v_cmp_le_u32 vcc, 8, v{vT}
v_cndmask_b32 v{vIdx}, v{vIdx}, v{vT3}, vcc
v_and_b32 v{vT3}, 1, v{vT2}
v_mul_u32_u24 v{vXw}, 576, v{vT3}
v_lshl_add_u32 v{vXw}, v{vT}, 2, v{vXw}
v_lshrrev_b32 v{vU}, 1, v{vT2}
v_lshl_add_u32 v{vXw}, v{vU}, 6, v{vXw}
s_mul_i32 s{S_T1}, s{S_W}, 2304
v_add_u32 v{vXw}, s{S_T1}, v{vXw}
v_lshlrev_b32 v{vVw}, 4, v{vT3}
v_lshl_add_u32 v{vVw}, v{vT}, 5, v{vVw}
v_lshl_add_u32 v{vVw}, v{vU}, 9, v{vVw}
s_lshl_b32 s{S_T1}, s{S_W}, 10
v_add_u32 v{vVw}, s{S_T1}, v{vVw}
v_mul_u32_u24 v{vXr}, 144, v{vT}
v_lshl_add_u32 v{vXr}, v{vT3}, 4, v{vXr}
v_lshl_add_u32 v{vXr}, v{vU}, 6, v{vXr}
v_lshlrev_b32 v{vVr}, 5, v{vT}
v_lshl_add_u32 v{vVr}, v{vT2}, 3, v{vVr}
v_bfe_u32 v{vU+1}, v{vL}, 1, 3
v_mul_u32_u24 v{vWr}, 144, v{vU+1}
v_lshl_add_u32 v{vWr}, v{vT2}, 5, v{vWr}
v_and_b32 v{vU+1}, 1, v{vL}
v_lshl_add_u32 v{vWr}, v{vU+1}, 4, v{vWr}
v_lshlrev_b32 v{vVk}, 10, v{vU}
v_lshl_add_u32 v{vVk}, v{vT3}, 9, v{vVk}
v_add_u32 v{vVk}, {L_KV}, v{vVk}
v_lshrrev_b32 v{vU+1}, 3, v{vT}
v_lshl_add_u32 v{vKr}, v{vU+1}, 8, v{vVk}
v_and_b32 v{vU+2}, 7, v{vL}
v_lshl_add_u32 v{vKr}, v{vU+2}, 4, v{vKr}
v_lshl_add_u32 v{vVk}, v{vT}, 4, v{vVk}
s_mul_i32 s{S_T1}, s{S_TEAM}, 163840
s_mul_i32 s{S_T2}, s{S_RANK}, 1280
s_add_u32 s{S_T2}, s{S_T2}, s{S_T1}
v_lshlrev_b32 v{vSCw}, 7, v{vT2}
v_lshl_add_u32 v{vSCw}, v{vT}, 4, v{vSCw}
s_lshl_b32 s{S_T3}, s{S_RANK}, 9
s_add_u32 s{S_T3}, s{S_T3}, s{S_T0}
v_add_u32 v{vOw}, s{S_T3}, v{vSCw}
v_add_u32 v{vSCw}, s{S_T2}, v{vSCw}
v_add_u32 v{vSCw0}, 768, v{vSCw}
v_mov_b32 v{vU+3}, {hex(OOB)}
v_cmp_le_u32 vcc, 8, v{vT}
v_cndmask_b32 v{vSCw}, v{vSCw}, v{vU+3}, vcc
v_cndmask_b32 v{vOw}, v{vOw}, v{vU+3}, vcc
v_cndmask_b32 v{vSCw0}, v{vSCw0}, v{vU+3}, vcc
v_cmp_gt_u32 vcc, 2, v{vT2}
v_cndmask_b32 v{vSCw0}, v{vSCw0}, v{vU+3}, vcc
s_and_b32 s{S_T2}, s{S_RANK}, 28
s_mul_i32 s{S_T2}, s{S_T2}, 1280
s_add_u32 s{S_T2}, s{S_T2}, s{S_T1}
v_lshlrev_b32 v{vSCr}, 9, v{vU+1}
v_lshl_add_u32 v{vSCr}, v{vT2}, 7, v{vSCr}
v_lshl_add_u32 v{vSCr}, v{vU+2}, 4, v{vSCr}
v_add_u32 v{vSCr}, s{S_T2}, v{vSCr}
v_lshrrev_b32 v{vSCr0}, 5, v{vL}
v_lshlrev_b32 v{vSCr0}, 7, v{vSCr0}
v_lshl_add_u32 v{vSCr0}, v{vU+2}, 4, v{vSCr0}
v_bfe_u32 v{vU+4}, v{vL}, 3, 2
v_lshl_add_u32 v{vSCr0}, v{vU+4}, 2, v{vSCr0}
s_add_u32 s{S_T2}, s{S_T2}, 1024
v_add_u32 v{vSCr0}, s{S_T2}, v{vSCr0}
s_lshl_b32 s{S_T2}, s{S_RANK}, 12
v_lshlrev_b32 v{vPr}, 4, v{vL}
v_add_u32 v{vPr}, s{S_T2}, v{vPr}
s_lshl_b32 s{S_T2}, s{S_TEAM}, 10
v_add_u32 v{vPw}, s{S_T2}, v{vPr}
v_lshlrev_b32 v{vMw}, 3, v{vL}
v_add_u32 v{vMw}, s{S_T3}, v{vMw}
v_mov_b32 v{vZ}, 0""")
    for i in range(4): e(f"v_mov_b32 v{vP4+i}, -1\nv_mov_b32 v{vZ4+i}, 0")
    e(f"v_mov_b32 v{vPb+5}, 0\nv_mov_b32 v{vVm+5}, 0\nv_mov_b32 v{vVm+7}, 0")

def poison(e, slotreg, st, m=vP4):
    e(f"""s_lshl_b32 s{S_T0}, s{slotreg}, 14
s_add_u32 s{S_T1}, s{S_T0}, {CH_O}""")
    if m is not None: e(f"buffer_store_dwordx2 v[{m}:{m+1}], v{vMw}, {WS}, s{S_T0} offen {st}")
    e(f"""buffer_store_dwordx2 v[{vP4}:{vP4+1}], v{vMw}, {WS}, s{S_T1} offen {st}
s_mul_i32 s{S_T0}, s{slotreg}, 40960
s_add_u32 s{S_T0}, s{S_T0}, {CH_SC}
s_lshl_b32 s{S_T1}, s{slotreg}, 17
s_add_u32 s{S_T1}, s{S_T1}, {CH_PART}
buffer_store_dwordx4 v[{vP4}:{vP4+3}], v{vU+8}, {WS}, s{S_T0} offen {st}
buffer_store_dword v{vP4}, v{vU+9}, {WS}, s{S_T0} offen {st}
buffer_store_dwordx4 v[{vP4}:{vP4+3}], v{vPw}, {WS}, s{S_T1} offen sc1""")

def load_weights(e, h1=None):
    vR=vU; vB1=vU+1; vB2=vU+2; vAd=vU+3
    e(f"""v_lshrrev_b32 v{vR}, 2, v{vL}
v_and_b32 v{vT3}, 3, v{vL}
v_lshlrev_b32 v{vT3}, 4, v{vT3}
s_lshl_b32 s{S_T0}, s{S_W}, 8
v_add_u32 v{vR}, s{S_T0}, v{vR}
s_lshl_b32 s{S_T1}, s{S_TEAM}, 11
s_lshl_b32 s{S_T2}, s{S_RANK}, 6
s_add_u32 s{S_T1}, s{S_T1}, s{S_T2}
v_lshl_add_u32 v{vB1}, v{vR}, 13, v{vT3}
v_add_u32 v{vB1}, s{S_T1}, v{vB1}
s_lshl_b32 s{S_T1}, s{S_TEAM}, 21
s_add_u32 s{S_T1}, s{S_T1}, s{S_T2}
v_lshl_add_u32 v{vB2}, v{vR}, 11, v{vT3}
v_add_u32 v{vB2}, s{S_T1}, v{vB2}
s_lshl_b32 s{S_T4}, s{S_W}, 15
s_add_u32 s{S_T4}, s{S_T4}, {L_STAGE}""")
    vq=vU+4; vo=vU+5; t=vU+6; t2=vU+7
    e(f"""v_lshrrev_b32 v{t}, 1, v{vT2}
v_and_b32 v{t2}, 1, v{vT2}
v_lshlrev_b32 v{vq}, 4, v{t}
v_lshl_add_u32 v{vq}, v{t2}, 2, v{vq}
v_lshlrev_b32 v{vo}, 3, v{t}
v_lshl_add_u32 v{vo}, v{t2}, 4, v{vo}
v_bfe_u32 v{t}, v{vL}, 3, 1
v_lshl_add_u32 v{vq}, v{t}, 3, v{vq}
v_lshl_add_u32 v{vo}, v{t}, 2, v{vo}
v_bfe_u32 v{t}, v{vL}, 2, 1
v_add_u32 v{vq}, v{vq}, v{t}
v_add_u32 v{vo}, v{vo}, v{t}
v_and_b32 v{t}, 3, v{vL}
v_lshlrev_b32 v{t}, 3, v{t}
v_add_u32 v{t}, s{S_T4}, v{t}
v_lshl_add_u32 v{vq}, v{vq}, 6, v{t}
v_lshl_add_u32 v{vo}, v{vo}, 6, v{t}""")
    def dma(blk):
        p=[P_WQ,P_WK,P_WV,P_WO][blk]
        sr = SRD_A if blk%2==0 else SRD_B
        srd(e, sr, p, 0x800000)
        for i in range(16):
            e(f"s_add_u32 m0, s{S_T4}, {(blk%2)*16384+i*1024}")
            step = i*16*(8192 if blk<3 else 2048)
            e(f"s_mov_b32 s{S_T0}, {step}")
            e(f"buffer_load_dwordx4 v{vB1 if blk<3 else vB2}, s[{sr}:{sr+3}], s{S_T0} offen lds")
    def tr(blk):
        for tile in range(2):
            for t_ in range(4):
                base = (blk*2+tile)*32 + t_*8 if blk<3 else 192 + tile*32 + t_*8
                for p in range(4):
                    off=(blk%2)*16384 + (64*t_+32*(p>>1)+2*(p&1))*64 + tile*32
                    e(f"ds_read_b64_tr_b16 a[{base+2*p}:{base+2*p+1}], v{vq if blk<3 else vo} offset:{off}")
    W=OPT.get('wt',0)
    def st():
        if W: tl(e,226)
    if h1: h1(dma)
    else: dma(0); dma(1)
    e("s_waitcnt vmcnt(16)"); tr(0); e("s_waitcnt lgkmcnt(0)"); st(); dma(2)
    e(f"s_waitcnt vmcnt({16+W})"); tr(1); e("s_waitcnt lgkmcnt(0)"); st(); dma(3)
    e(f"s_waitcnt vmcnt({16+W})"); tr(2); st()
    e("s_waitcnt vmcnt(0)"); tr(3); e("s_waitcnt lgkmcnt(0)")

def chain_init(e, st):
    chain_pre(e, st); load_weights(e)
def chain_pre(e, st):
    chain_pre1(e)
    poison(e, S_W, st, None)
    l=e.lab("ci"); l2=e.lab("cj")
    e(f"""s_lshl_b32 s{S_T0}, s{S_W}, 14
s_cmp_lg_u32 s{S_W}, 0
s_cbranch_scc1 {l}
s_waitcnt vmcnt(4)
buffer_store_dwordx2 v[{vU+14}:{vU+15}], v{vMw}, {WS}, s{S_T0} offen {st}
s_branch {l2}
{l}:
buffer_store_dwordx2 v[{vP4}:{vP4+1}], v{vMw}, {WS}, s{S_T0} offen {st}
{l2}:""")
def chain_pre1(e):
    lane_setup(e)
    e(f"""s_mul_i32 s{S_T1}, s{S_TEAM}, 163840
s_mul_i32 s{S_T2}, s{S_RANK}, 1280
s_add_u32 s{S_T2}, s{S_T2}, s{S_T1}
v_lshl_add_u32 v{vU+8}, v{vL}, 4, s{S_T2}
s_add_u32 s{S_T2}, s{S_T2}, 1024
v_lshl_add_u32 v{vU+9}, v{vL}, 2, s{S_T2}""")
    srd(e, SRD_A, P_MEM0, 16384)
    e(f"""v_bfe_u32 v{vU}, v{vL}, 1, 3
v_lshlrev_b32 v{vU}, 11, v{vU}
v_lshl_add_u32 v{vU}, v{vT2}, 4, v{vU}
v_and_b32 v{vU+1}, 1, v{vL}
v_lshl_add_u32 v{vU}, v{vU+1}, 3, v{vU}
s_lshl_b32 s{S_T0}, s{S_RANK}, 6
buffer_load_dwordx2 v[{vU+14}:{vU+15}], v{vU}, s[{SRD_A}:{SRD_A+3}], s{S_T0} offen""")
def chain_pre2(e, st):
    for i in range(4): e(f"v_mov_b32 v{vZ4+i}, 0")
    l=e.lab("ci"); l2=e.lab("cj")
    e(f"s_cmp_lg_u32 s{S_W}, 0\ns_cbranch_scc1 {l}")
    poison(e, S_W, st, vU+14)
    e(f"s_branch {l2}\n{l}:")
    poison(e, S_W, st)
    e(f"{l2}:")

TL=[False]
def tl_init(e):
    if TL[0]: e(f"s_lshl_b32 s6, s2, 10\ns_add_u32 s6, s6, {PROF+0x10000}\ns_cmp_eq_u32 s{S_W}, 0\ns_cselect_b32 s7, 0, {hex(OOB)}")
def tl_get(e):
    if TL[0]: e("s_memrealtime s[4:5]")
def tl_put(e, wait=True, v=14):
    if TL[0]:
        if wait: e("s_waitcnt lgkmcnt(0)")
        e(f"v_mov_b32 v{v}, s4\nv_mov_b32 v{v+1}, s7\nbuffer_store_dword v{v}, v{v+1}, {WS}, s6 offen\ns_add_u32 s6, s6, 4")
def tl(e,v=14):
    tl_get(e); tl_put(e,True,v)
def stamp(e, prof, i):
    if prof: e(f"s_memtime s[{S_PR+2*i}:{S_PR+2*i+1}]")

PF=[None]
def failc(e,i):
    if PF[0]: e(f'v_add_u32 v{246+i}, 1, v{246+i}')
def gather(e, sreg, abort, pre=None, fc=None):
    lp=e.lab("g"); ok=e.lab("gok")
    e(f"{lp}:")
    for t in range(4): e(f"buffer_load_dwordx4 v[{vA+4*t}:{vA+4*t+3}], v{vG}, {WS}, s{sreg} offen offset:{t*1024} sc1")
    if pre: pre()
    e(f"""s_waitcnt vmcnt(0)
v_max3_u32 v{vU}, v{vA}, v{vA+2}, v{vA+4}
v_max3_u32 v{vU+1}, v{vA+6}, v{vA+8}, v{vA+10}
v_max3_u32 v{vU}, v{vU}, v{vA+12}, v{vA+14}
v_max_u32 v{vU}, v{vU}, v{vU+1}
v_cmp_eq_u32 vcc, -1, v{vU}
s_cbranch_vccz {ok}""")
    if fc is not None: failc(e,fc)
    e(f"""s_sub_u32 s{S_BUD}, s{S_BUD}, 1
s_cbranch_scc0 {lp}
s_branch {abort}
{ok}:""")
def gather2(e, sreg, abort, work, fc=None, st=None):
    C=[e.lab("gc") for _ in range(4)]; R=[e.lab("gr") for _ in range(4)]
    ld=lambda t: e(f"buffer_load_dwordx4 v[{vA+4*t}:{vA+4*t+3}], v{vG}, {WS}, s{sreg} offen offset:{t*1024} sc1")
    for t in range(4): ld(t)
    for t in range(4):
        e(f"""{C[t]}:
s_waitcnt vmcnt({3-t})
v_max_u32 v{vU}, v{vA+4*t}, v{vA+4*t+2}
v_cmp_eq_u32 vcc, -1, v{vU}
s_cbranch_vccnz {R[t]}""")
        if t==3 and st: st()
        work(t)
    def tail():
        for t in range(4):
            e(f"{R[t]}:")
            for u in range(t,4): ld(u)
            if fc is not None: failc(e,fc)
            e(f"s_sub_u32 s{S_BUD}, s{S_BUD}, 1\ns_cbranch_scc0 {C[t]}\ns_branch {abort}")
    return tail
def smf(e, d, t, a): e(f"v_smfmac_f32_16x16x64_bf16 v[{d}:{d+3}], v[{vA+4*t}:{vA+4*t+3}], a[{a}:{a+7}], v{vIdx}")
def fold(e, d):
    for i in range(4): e(f"v_permlane32_swap_b32 v{d+i}, v{d+4+i}")
    e(f"v_pk_add_f32 v[{d}:{d+1}], v[{d}:{d+1}], v[{d+4}:{d+5}]\nv_pk_add_f32 v[{d+2}:{d+3}], v[{d+2}:{d+3}], v[{d+6}:{d+7}]")
def qk_phase(e,st=None):
    for p in range(2):
        fold(e, vD+8*p)
        for i in range(4): e(f"ds_write_b32 v{vXw}, v{vD+8*p+i} offset:{L_X+p*1152+i*144}")
    if st: st()
    e("s_waitcnt lgkmcnt(0)\ns_barrier")
def v_phase(e,pre=None):
    for t in range(4):
        for tile in range(2): smf(e, vD+16+4*tile, t, (4+tile)*32+t*8)
    fold(e, vD+16)
    e(f"ds_write_b128 v{vVw}, v[{vD+16}:{vD+19}] offset:{L_V}")
    if pre: pre()
    e("s_waitcnt lgkmcnt(0)\ns_barrier")
def qk_work(e): return lambda t: [smf(e, vD+4*tile, t, tile*32+t*8) for tile in range(4)]
def wo_work(e): return lambda t: [smf(e, vD+4*tile, t, 192+tile*32+t*8) for tile in range(2)]
def wo_phase(e):
    fold(e, vD)
    for i in range(4): e(f"ds_write_b32 v{vXw}, v{vD+i} offset:{L_WO+i*144}")
    e("s_waitcnt lgkmcnt(0)\ns_barrier")
def sum4(e, b, n, stride, waits=None):
    for k in range(0,n,2): e(f"v_pk_add_f32 v[{b+k}:{b+k+1}], v[{b+k}:{b+k+1}], v[{b+stride+k}:{b+stride+k+1}]")
    if waits: e(waits)
    for k in range(0,n,2): e(f"v_pk_add_f32 v[{b+2*stride+k}:{b+2*stride+k+1}], v[{b+2*stride+k}:{b+2*stride+k+1}], v[{b+3*stride+k}:{b+3*stride+k+1}]")
    for k in range(0,n,2): e(f"v_pk_add_f32 v[{b+k}:{b+k+1}], v[{b+k}:{b+k+1}], v[{b+2*stride+k}:{b+2*stride+k+1}]")
def zero_acc(e, lo, n):
    for i in range(n): e(f"v_mov_b32 v{vD+lo+i}, 0")
def slots(e):
    e(f"""s_and_b32 s{S_T0}, s{S_STEP}, 3
s_lshl_b32 s{S_MEM}, s{S_T0}, 14
s_add_u32 s{S_O}, s{S_MEM}, {CH_O}
s_mul_i32 s{S_SC}, s{S_T0}, 40960
s_add_u32 s{S_SC}, s{S_SC}, {CH_SC}
s_lshl_b32 s{S_PART}, s{S_T0}, 17
s_add_u32 s{S_PART}, s{S_PART}, {CH_PART}
s_add_u32 s{S_MEMN}, s{S_MEM}, 16384
s_and_b32 s{S_MEMN}, s{S_MEMN}, 0xffff""")
def read_x(e):
    for w in range(4): e(f"ds_read_b128 v[{vX+8*w}:{vX+8*w+3}], v{vXr} offset:{L_X+2304*w}\nds_read_b128 v[{vX+8*w+4}:{vX+8*w+7}], v{vXr} offset:{L_X+2304*w+32}")
def cvt_x(e):
    for i in range(4): e(f"v_cvt_pk_bf16_f32 v{vXb+i}, v{vX+2*i}, v{vX+2*i+1}")
def kv_prefetch(e, abort, check):
    if check:
        lp=e.lab("kf"); ok=e.lab("kok")
        if check==2: e(f"v_cmp_ne_u32 vcc, 1, v{vU+12}\ns_cbranch_vccz {ok}")
        e(f"""s_mul_i32 s{S_T0}, s{S_KV}, 1536
s_add_u32 s{S_T0}, s{S_T0}, {F_KV}
{lp}:
buffer_load_dword v{vU+12}, v{vU+11}, {WS}, s{S_T0} offen sc1
s_waitcnt vmcnt(0)
v_cmp_ne_u32 vcc, 1, v{vU+12}
s_cbranch_vccz {ok}
s_sub_u32 s{S_BUD}, s{S_BUD}, 1
s_cbranch_scc0 {lp}
s_branch {abort}
{ok}:""")
    e(f"""s_and_b32 s{S_T1}, s{S_KV}, 1
s_lshl_b32 s{S_T1}, s{S_T1}, 12
s_lshl_b32 s{S_T0}, s{S_KV}, 18
s_add_u32 m0, s{S_T1}, {L_KV}
s_add_u32 s{S_T2}, s{S_T0}, {KB}
buffer_load_dwordx4 v{vU+10}, {WS}, s{S_T2} offen sc1 lds
buffer_load_dwordx4 v{vU+10}, {WS}, s{S_T2} offen offset:1024 sc1 lds
s_add_u32 m0, s{S_T1}, {L_KV+2048}
s_add_u32 s{S_T2}, s{S_T0}, {VB}
buffer_load_dwordx4 v{vU+10}, {WS}, s{S_T2} offen sc1 lds
buffer_load_dwordx4 v{vU+10}, {WS}, s{S_T2} offen offset:1024 sc1 lds""")

def chain_main(e, st, abort, done, check_kv=True, prof=False, NSTEP=64):
    lead=e.lab("lead");
    e(f"s_mov_b32 s{S_STEP}, 0")
    slots(e); zero_acc(e,0,24)
    e(f"s_cmp_eq_u32 s{S_W}, 0\ns_cbranch_scc1 {lead}")
    e(f"""s_lshl_b32 s{S_T0}, s{S_TEAM}, 5
s_add_u32 s{S_T0}, s{S_T0}, s{S_RANK}
s_lshl_b32 s{S_T1}, s{S_T0}, 11
v_lshl_add_u32 v{vU+10}, v{vL}, 4, s{S_T1}
s_lshl_b32 s{S_T1}, s{S_T0}, 2
v_and_b32 v{vU+11}, 1, v{vL}
v_lshl_add_u32 v{vU+11}, v{vU+11}, 9, s{S_T1}
s_lshl_b32 s{S_T1}, s{S_T0}, 9
v_lshlrev_b32 v{vKMw}, 7, v{vT2}
v_lshl_add_u32 v{vKMw}, v{vT}, 4, v{vKMw}
v_subrev_u32 v{vKMw}, 128, v{vKMw}
v_add_u32 v{vKMw}, s{S_T1}, v{vKMw}
v_mov_b32 v{vU+3}, {hex(OOB)}
v_cmp_gt_u32 vcc, 8, v{vT}
v_cndmask_b32 v{vKMw}, v{vKMw}, v{vU+3}, vcc
v_lshl_add_u32 v{vU+13}, v{vL}, 3, s{S_T1}
v_and_b32 v{vVr}, 31, v{vL}
v_lshlrev_b32 v{vVr}, 5, v{vVr}
v_lshrrev_b32 v{vU+3}, 5, v{vL}
v_lshl_add_u32 v{vVr}, v{vU+3}, 4, v{vVr}
s_lshl_b32 s{S_T1}, s{S_T0}, 2
v_mov_b32 v{vU+14}, s{S_T1}
v_mov_b32 v{vU+15}, 1
v_lshlrev_b32 v{vU+7}, 4, v{vL}
s_mov_b32 s{S_KV}, 0""")
    ZA=OPT.get('za',24); OW=OPT.get('ow',0)
    if OW:
        for x in range(1,4): e(f"v_xor_b32 v{219+x}, {x*1024}, v{vPw}")
    def kvflag(add): e(f"s_mul_i32 s{S_T0}, s{S_STEP}, 1536\ns_add_u32 s{S_T0}, s{S_T0}, {F_KV+1536*add}\nbuffer_load_dword v{vU+12}, v{vU+11}, {WS}, s{S_T0} offen sc1")
    def kmflag(d): e(f"s_lshl_b32 s{S_T0}, s{S_STEP}, 9\ns_add_u32 s{S_T0}, s{S_T0}, {F_KM+512*d}\nbuffer_store_dword v{vU+15}, v{vU+14}, {WS}, s{S_T0} offen sc1")
    h0=e.lab("h0")
    e(f"s_cmp_lg_u32 s{S_W}, 2\ns_cbranch_scc1 {h0}")
    kv_prefetch(e, abort, 1); kvflag(1)
    e(f"{h0}:")
    if prof: e(f"v_mov_b32 v250, 0\nds_write_b32 v{vZ}, v250 offset:40000")
    hl=e.lab("hl"); e(f"{hl}:")
    t1=gather2(e, S_MEM, abort, qk_work(e))
    KW=OPT.get('kw',1)
    qk_phase(e)
    if KW==3:
        k3=e.lab("k3"); e(f"s_cmp_lg_u32 s{S_W}, 3\ns_cbranch_scc1 {k3}\ns_cmp_eq_u32 s{S_STEP}, 0\ns_cbranch_scc1 {k3}"); kmflag(-1); e(f"{k3}:")
    v_phase(e)
    b=e.lab("b"); c=e.lab("c"); b3=e.lab("b3")
    e(f"s_cmp_lg_u32 s{S_W}, 1\ns_cbranch_scc1 {b}")
    if KW==3: e(f"s_cmp_lt_u32 s{S_STEP}, {NSTEP-1}\ns_cbranch_scc1 {c}")
    def kmred():
        read_x(e)
        for w in range(4): e(f"ds_read_b128 v[{vVq+4*w}:{vVq+4*w+3}], v{vVr} offset:{L_V+1024*w}")
        e("s_waitcnt lgkmcnt(0)")
        sum4(e, vX, 8, 8); sum4(e, vVq, 4, 4)
        cvt_x(e)
        e(f"""v_cvt_pk_bf16_f32 v{vVm+4}, v{vVq}, v{vVq+1}
v_cvt_pk_bf16_f32 v{vVm+5}, v{vVq+2}, v{vVq+3}""")
    kmred()
    def kmst(): e(f"""s_lshl_b32 s{S_T0}, s{S_STEP}, 16
s_add_u32 s{S_T1}, s{S_T0}, {VM}
s_add_u32 s{S_T0}, s{S_T0}, {KM}
buffer_store_dwordx4 v[{vXb}:{vXb+3}], v{vKMw}, {WS}, s{S_T0} offen sc1
buffer_store_dwordx2 v[{vVm+4}:{vVm+5}], v{vU+13}, {WS}, s{S_T1} offen sc1""")
    def pois():
        e(f"s_add_u32 s{S_T4}, s{S_STEP}, 2\ns_and_b32 s{S_T4}, s{S_T4}, 3"); poison(e, S_T4, st)
    PO=OPT.get('po',2)
    e(f"s_cmp_lt_u32 s{S_STEP}, {NSTEP-1}\ns_cbranch_scc1 {c}")
    KF=OPT.get('kf',1)
    if not KF: kmflag(-1)
    kmst(); e("s_waitcnt vmcnt(0)"); kmflag(0)
    e(f"""s_branch {done}
{b}:
s_cmp_lt_u32 s{S_STEP}, {NSTEP-1}
s_cbranch_scc0 {done}""")
    if PO==1:
        e(f"s_cmp_lg_u32 s{S_W}, 3\ns_cbranch_scc1 {c}"); pois()
    SZ=OPT.get('sz',0); NZ=24 if SZ else 8
    e(f"{c}:")
    if SZ==0: zero_acc(e,ZA,24-ZA)
    if SZ==2: zero_acc(e,0,8)
    e("s_barrier")
    if SZ<2: zero_acc(e,0,8 if SZ else ZA)
    t2=gather2(e, S_O, abort, wo_work(e))
    wo_phase(e)
    f=e.lab("f"); g=e.lab("g"); f3=e.lab("f3"); f0=e.lab("f0")
    LB=OPT.get('lb',0)
    if LB: e("s_barrier")
    e(f"s_cmp_lg_u32 s{S_W}, 1\ns_cbranch_scc1 {f}")
    if not KF: e(f"s_cmp_eq_u32 s{S_STEP}, 0\ns_cbranch_scc1 {f0}"); kmflag(-1); e(f"{f0}:")
    if KW!=3: kmst()
    if PO==2: pois()
    bb="" if LB==1 else "s_barrier\n"
    e(bb)
    if KF and KW!=3: assert PO==2; e("s_waitcnt vmcnt(5)"); kmflag(0)
    lp=e.lab("pp"); ok=e.lab("ppok"); DP=OPT.get('dp',0)
    e(f"s_branch {lp if DP else g}\n{f}:\ns_cmp_lg_u32 s{S_W}, 2\ns_cbranch_scc1 {f3}\ns_add_u32 s{S_KV}, s{S_STEP}, 1")
    if not OPT.get('x1'): kv_prefetch(e, abort, 2); kvflag(2)
    e(f"{bb}s_branch {g}\n{f3}:")
    if LB==2: zero_acc(e,0,8)
    e(bb)
    if LB!=2: zero_acc(e,0,NZ)
    SL=OPT.get('sl',0); SP_,SM_=(S_KV,S_KM) if SL else (S_PART,S_MEMN)
    if SL:
        assert not (LB or DP or OW or KW==3)
        e(f"s_mov_b32 s{SP_}, s{S_PART}\ns_mov_b32 s{SM_}, s{S_MEMN}\ns_add_u32 s{S_STEP}, s{S_STEP}, 1"); slots(e)
    if DP==2: e(f"s_branch {g}")
    def pld():
        for x in range(4):
            if OW and x: e(f"buffer_load_dwordx4 v[{vC+4*x}:{vC+4*x+3}], v{219+x}, {WS}, s{S_PART} offen sc1")
            elif not OW: e(f"buffer_load_dwordx4 v[{vC+4*x}:{vC+4*x+3}], v{vPr}, {WS}, s{SP_} offen offset:{x*1024} sc1")
    P0=vX if OW else vC
    if OW:
        if OW==2: pld()
        for w in range(4): e(f"ds_read_b128 v[{vX+4*w}:{vX+4*w+3}], v{vWr} offset:{L_WO+2304*w}")
        e("s_waitcnt lgkmcnt(2)")
        sum4(e, vX, 4, 4, "s_waitcnt lgkmcnt(0)")
        if OW==2: e(f"s_branch {lp}_c")
    def pchk(n): e(f"""s_waitcnt vmcnt({2+n})
v_pk_add_f32 v[{vC}:{vC+1}], v[{P0}:{P0+1}], v[{vC+4}:{vC+5}]
v_pk_add_f32 v[{vC+2}:{vC+3}], v[{P0+2}:{P0+3}], v[{vC+6}:{vC+7}]
s_waitcnt vmcnt({n})
v_pk_add_f32 v[{vC+8}:{vC+9}], v[{vC+8}:{vC+9}], v[{vC+12}:{vC+13}]
v_pk_add_f32 v[{vC+10}:{vC+11}], v[{vC+10}:{vC+11}], v[{vC+14}:{vC+15}]
v_pk_add_f32 v[{vC}:{vC+1}], v[{vC}:{vC+1}], v[{vC+8}:{vC+9}]
v_pk_add_f32 v[{vC+2}:{vC+3}], v[{vC+2}:{vC+3}], v[{vC+10}:{vC+11}]
v_cmp_u_f32 vcc, v{vC}, v{vC}
v_cvt_pk_bf16_f32 v{vC+4}, v{vC}, v{vC+1}
v_cvt_pk_bf16_f32 v{vC+5}, v{vC+2}, v{vC+3}
s_cbranch_vccz {ok}""")
    if KW==3: assert KF; kmred(); pld(); kmst(); pchk(2)
    e(f"{lp}:"); pld(); e(f"{lp}_c:"); pchk(0)
    if prof: e(f"v_add_u32 v250, 1, v250\nds_write_b32 v{vZ}, v250 offset:40000")
    e(f"""s_sub_u32 s{S_BUD}, s{S_BUD}, 1
s_cbranch_scc0 {lp}
s_branch {abort}
{ok}:
buffer_store_dwordx2 v[{vC+4}:{vC+5}], v{vMw}, {WS}, s{SM_} offen {st}""")
    if SL: e(f"s_barrier\ns_branch {hl}")
    e(f"{g}:")
    if SL!=1: e("s_barrier")
    e(f"s_add_u32 s{S_STEP}, s{S_STEP}, 1")
    slots(e); zero_acc(e,0,NZ)
    if SL==1: e("s_barrier")
    e(f"s_branch {hl}")
    t1(); t2()
    e(f"{lead}:")
    if prof:
        for i in range(20): e(f"v_mov_b32 v{230+i}, 0")
    PF[0]=prof
    ll=e.lab("ll"); e(f"{ll}:")
    tl_get(e); tl_put(e,True,226)
    stamp(e,prof,0)
    t1=gather2(e, S_MEM, abort, qk_work(e), 0, lambda: stamp(e,prof,1))
    qk_phase(e,lambda: stamp(e,prof,2))
    stamp(e,prof,3)
    read_x(e)
    e(f"ds_read_b128 v[{vK}:{vK+3}], v{vKr}\nds_read_b128 v[{vK+4}:{vK+7}], v{vKr} offset:128\ns_waitcnt lgkmcnt(6)")
    sum4(e, vX, 8, 8, "s_waitcnt lgkmcnt(2)")
    cvt_x(e)
    stamp(e,prof,4)
    X=f"v[{vXb}:{vXb+3}]"
    e(f"""v_mfma_f32_16x16x32_bf16 v[{vS}:{vS+3}], {X}, {X}, 0
s_waitcnt lgkmcnt(0)
v_mfma_f32_16x16x32_bf16 v[{vS+4}:{vS+7}], v[{vK}:{vK+3}], {X}, 0
v_mfma_f32_16x16x32_bf16 v[{vS+8}:{vS+11}], v[{vK+4}:{vK+7}], {X}, 0
ds_read_b128 v[{vVV}:{vVV+3}], v{vVk} offset:2048
ds_read_b128 v[{vVV+4}:{vVV+7}], v{vVk} offset:2304
v_xor_b32 v{vKr}, 4096, v{vKr}
v_xor_b32 v{vVk}, 4096, v{vVk}
buffer_store_dwordx4 v[{vS}:{vS+3}], v{vSCw0}, {WS}, s{S_SC} offen {st}
buffer_store_dwordx4 v[{vS+4}:{vS+7}], v{vSCw}, {WS}, s{S_SC} offen {st}
buffer_store_dwordx4 v[{vS+8}:{vS+11}], v{vSCw}, {WS}, s{S_SC} offen offset:512 {st}""")
    stamp(e,prof,5)
    def scl():
        for c_ in range(4):
            e(f"buffer_load_dwordx4 v[{vC+4*c_}:{vC+4*c_+3}], v{vSCr}, {WS}, s{S_SC} offen offset:{c_*1280} sc1")
            e(f"buffer_load_dword v{vC+16+c_}, v{vSCr0}, {WS}, s{S_SC} offen offset:{c_*1280} sc1")
    ES=OPT.get('es',1)
    v_phase(e, scl if ES else None)
    stamp(e,prof,6)
    e(f"s_cmp_lt_u32 s{S_STEP}, {NSTEP-1}\ns_cbranch_scc0 LEADEND_{ll}")
    lp=e.lab("sc"); ok=e.lab("scok")
    for w in range(4): e(f"ds_read_b64 v[{vVq+4*w}:{vVq+4*w+1}], v{vVr} offset:{L_V+1024*w}\nds_read_b64 v[{vVq+4*w+2}:{vVq+4*w+3}], v{vVr} offset:{L_V+1024*w+512}")
    zero_acc(e,ZA,24-ZA)
    e("s_waitcnt lgkmcnt(0)")
    sum4(e, vVq, 4, 4)
    e(f"v_cvt_pk_bf16_f32 v{vVm+4}, v{vVq}, v{vVq+1}\nv_cvt_pk_bf16_f32 v{vVm+6}, v{vVq+2}, v{vVq+3}")
    stamp(e,prof,7)
    sk=e.lab("sk")
    if ES: e(f"s_branch {sk}")
    e(f"{lp}:"); scl(); e(f"{sk}:")
    e(f"""s_waitcnt vmcnt(0)
v_pk_add_f32 v[{vC}:{vC+1}], v[{vC}:{vC+1}], v[{vC+4}:{vC+5}]
v_pk_add_f32 v[{vC+8}:{vC+9}], v[{vC+8}:{vC+9}], v[{vC+12}:{vC+13}]
v_pk_add_f32 v[{vC+16}:{vC+17}], v[{vC+16}:{vC+17}], v[{vC+18}:{vC+19}]
v_pk_add_f32 v[{vC+2}:{vC+3}], v[{vC+2}:{vC+3}], v[{vC+6}:{vC+7}]
v_pk_add_f32 v[{vC+10}:{vC+11}], v[{vC+10}:{vC+11}], v[{vC+14}:{vC+15}]
v_pk_add_f32 v[{vC}:{vC+1}], v[{vC}:{vC+1}], v[{vC+8}:{vC+9}]
v_add_f32 v{vC+4}, v{vC+16}, v{vC+17}
v_pk_add_f32 v[{vC+2}:{vC+3}], v[{vC+2}:{vC+3}], v[{vC+10}:{vC+11}]
v_cmp_u_f32 vcc, v{vC}, v{vC+4}
v_max3_f32 v{vU}, v{vC}, v{vC+1}, v{vC+4}
s_cbranch_vccz {ok}""")
    failc(e,1)
    e(f"""s_sub_u32 s{S_BUD}, s{S_BUD}, 1
s_cbranch_scc0 {lp}
s_branch {abort}
{ok}:""")
    stamp(e,prof,8)
    m=vU; t=vU+1
    e(f"""v_max3_f32 v{m}, v{m}, v{vC+2}, v{vC+3}
v_max_f32_dpp v{m}, v{m}, v{m} row_ror:8 row_mask:0xf bank_mask:0xf
v_mov_b32 v{t}, v{m}
v_permlane16_swap_b32 v{t}, v{m}
v_max_f32 v{m}, v{m}, v{t}
v_mov_b32 v{t}, v{m}
v_permlane32_swap_b32 v{t}, v{m}
v_max_f32 v{m}, v{m}, v{t}
v_mul_f32 v{m}, s{S_FL}, v{m}""")
    for i in [4,0,1,2,3]: e(f"v_fma_f32 v{vC+i}, v{vC+i}, s{S_FL}, -v{m}")
    for i in [4,0,1,2,3]: e(f"v_exp_f32 v{vC+i}, v{vC+i}")
    e(f"""v_mov_b32_dpp v{t}, v{vC+4} row_ror:8 row_mask:0xf bank_mask:0xf
v_cvt_pk_bf16_f32 v{vPb}, v{vC}, v{vC+1}
v_cvt_pk_bf16_f32 v{vPb+1}, v{vC+2}, v{vC+3}
v_cvt_pk_bf16_f32 v{vPb+4}, v{vC+4}, v{t}
v_mov_b32_dpp v{vPb+2}, v{vPb} row_ror:8 row_mask:0xf bank_mask:0xf
v_mov_b32_dpp v{vPb+3}, v{vPb+1} row_ror:8 row_mask:0xf bank_mask:0xf
v_mfma_f32_16x16x16_bf16 v[{vO}:{vO+3}], v[{vVm+4}:{vVm+5}], v[{vPb+4}:{vPb+5}], 0
v_pk_add_f32 v[{vC}:{vC+1}], v[{vC}:{vC+1}], v[{vC+2}:{vC+3}]
v_add_f32 v{m}, v{vC}, v{vC+4}
v_mfma_f32_16x16x16_bf16 v[{vO+4}:{vO+7}], v[{vVm+6}:{vVm+7}], v[{vPb+4}:{vPb+5}], 0
v_add_f32 v{m}, v{m}, v{vC+1}
v_mfma_f32_16x16x32_bf16 v[{vO}:{vO+3}], v[{vVV}:{vVV+3}], v[{vPb}:{vPb+3}], v[{vO}:{vO+3}]
v_add_f32_dpp v{m}, v{m}, v{m} row_ror:8 row_mask:0xf bank_mask:0xf
v_mov_b32 v{t}, v{m}
v_mfma_f32_16x16x32_bf16 v[{vO+4}:{vO+7}], v[{vVV+4}:{vVV+7}], v[{vPb}:{vPb+3}], v[{vO+4}:{vO+7}]
v_permlane16_swap_b32 v{t}, v{m}
v_add_f32 v{m}, v{m}, v{t}
v_mov_b32 v{t}, v{m}
v_permlane32_swap_b32 v{t}, v{m}
v_add_f32 v{m}, v{m}, v{t}
v_rcp_f32 v{m}, v{m}""")
    for i in range(8): e(f"v_mul_f32 v{vO+i}, v{vO+i}, v{m}")
    for i in range(4): e(f"v_cvt_pk_bf16_f32 v{vO+i}, v{vO+2*i}, v{vO+2*i+1}")
    e(f"buffer_store_dwordx4 v[{vO}:{vO+3}], v{vOw}, {WS}, s{S_O} offen {st}\ns_barrier")
    stamp(e,prof,9)
    zero_acc(e,0,ZA)
    t2=gather2(e, S_O, abort, wo_work(e), 2, lambda: stamp(e,prof,10))
    wo_phase(e)
    stamp(e,prof,11)
    lp=e.lab("pp"); ok=e.lab("ppok")
    for w in range(4): e(f"ds_read_b128 v[{vX+4*w}:{vX+4*w+3}], v{vWr} offset:{L_WO+2304*w}")
    e("s_waitcnt lgkmcnt(2)")
    sum4(e, vX, 4, 4, "s_waitcnt lgkmcnt(0)")
    e(f"""buffer_store_dwordx4 v[{vX}:{vX+3}], v{vPw}, {WS}, s{S_PART} offen sc1""")
    stamp(e,prof,12)
    e("s_barrier" if SL==1 else "s_barrier\ns_barrier")
    if LB==2: e("s_barrier")
    stamp(e,prof,13)
    e(f"s_add_u32 s{S_STEP}, s{S_STEP}, 1")
    slots(e); zero_acc(e,0,8)
    if SL==1: e("s_barrier")
    if prof:
        e("s_waitcnt lgkmcnt(0)")
        for i in range(13): e(f"s_sub_u32 s{S_T0}, s{S_PR+2*i+2}, s{S_PR+2*i}\nv_add_u32 v{230+i}, s{S_T0}, v{230+i}")
    e(f"s_branch {ll}"); t1(); t2(); e(f"LEADEND_{ll}:")
    if prof:
        e(f"s_lshl_b32 s{S_T0}, s{S_TEAM}, 5\ns_add_u32 s{S_T0}, s{S_T0}, s{S_RANK}\ns_lshl_b32 s{S_T0}, s{S_T0}, 7\ns_add_u32 s{S_T0}, s{S_T0}, {PROF}")
        e(f"ds_read_b32 v249, v{vZ} offset:40000\ns_waitcnt lgkmcnt(0)")
        for i in range(5): e(f"buffer_store_dwordx4 v[{230+4*i}:{233+4*i}], v{vZ}, {WS}, s{S_T0} offen offset:{16*i}")
    PF[0]=False
    e(f"s_branch {done}")
```
